```python
import torch

def _softmax(x, axis=-1):
    return torch.softmax(x, dim=axis)
def _gelu(x):
    return torch.nn.functional.gelu(x, approximate="tanh")
def _silu(x):
    return torch.nn.functional.silu(x)
def _sigmoid(x):
    return torch.sigmoid(x)
def _layernorm(x, axis=-1, eps=1e-5):
    m = x.mean(dim=axis, keepdim=True)
    v = x.var(dim=axis, keepdim=True, unbiased=False)
    return (x - m) / torch.sqrt(v + eps)
def _scatter_add(tgt, idx, src, axis=0):
    return tgt.clone().index_add_(axis, idx, src)
def _segment_sum(src, seg, n):
    out = torch.zeros((n,) + src.shape[1:], dtype=src.dtype)
    return out.index_add_(0, seg, src)
def _pad(x, pw):
    flat = tuple(v for pair in reversed(pw) for v in pair)
    return torch.nn.functional.pad(x, flat)

kernel_name = 'gated_mix__ssm_conv_s5__swiglu_ffn__prompt'

def setup_inputs():

    _w = (lambda a: (lambda t: t.to(torch.bfloat16) if t.is_floating_point() else t)(torch.as_tensor(a)))
    def _A_setup():
        B, S, D = 1, 2048, 512
        P = D
        Lambda_re = -0.5 * (lambda _x: torch.exp(torch.as_tensor(_x)))((lambda *s: torch.randn(*s, dtype=torch.bfloat16) * 0.2)(P))
        Lambda_im = (lambda *s: torch.randn(*s, dtype=torch.bfloat16) * 0.4)(P) * 1.0
        B_re = (lambda *s: torch.randn(*s, dtype=torch.bfloat16) * 0.2)(P, D) * (D ** -0.5)
        B_im = (lambda *s: torch.randn(*s, dtype=torch.bfloat16) * 0.2)(P, D) * (D ** -0.5)
        C_re = (lambda *s: torch.randn(*s, dtype=torch.bfloat16) * 0.2)(D, P) * (P ** -0.5)
        C_im = (lambda *s: torch.randn(*s, dtype=torch.bfloat16) * 0.2)(D, P) * (P ** -0.5)
        log_dt = (lambda *s: torch.randn(*s, dtype=torch.bfloat16) * 0.2)(P) * 0.3 - 2.0
        Dskip = (lambda *s: torch.randn(*s, dtype=torch.bfloat16) * 0.05)(D)
        return {
            "x": _w((lambda *s: torch.randn(*s, dtype=torch.bfloat16) * 0.05)(B, S, D)),
            "Lambda_re": _w(Lambda_re),
            "Lambda_im": _w(Lambda_im),
            "B_re": _w(B_re),
            "B_im": _w(B_im),
            "C_re": _w(C_re),
            "C_im": _w(C_im),
            "log_dt": _w(log_dt),
            "Dskip": _w(Dskip),
        }
    _A_in = _A_setup()

    def _B_setup():
        B, S, D, F = 1, 2048, 512, 1792
        return {
            "x": _w((lambda *s: torch.randn(*s, dtype=torch.bfloat16) * 0.05)(B, S, D)),
            "w_gate": _w((lambda *s: torch.randn(*s, dtype=torch.bfloat16) * 0.05)(D, F)),
            "w_up": _w((lambda *s: torch.randn(*s, dtype=torch.bfloat16) * 0.05)(D, F)),
            "w_down": _w((lambda *s: torch.randn(*s, dtype=torch.bfloat16) * 0.05)(F, D)),
        }
    _B_in = _B_setup()

    return {
        "A_x": _A_in["x"],
        "A_Lambda_re": _A_in["Lambda_re"],
        "A_Lambda_im": _A_in["Lambda_im"],
        "A_B_re": _A_in["B_re"],
        "A_B_im": _A_in["B_im"],
        "A_C_re": _A_in["C_re"],
        "A_C_im": _A_in["C_im"],
        "A_log_dt": _A_in["log_dt"],
        "A_Dskip": _A_in["Dskip"],
        "B_x": _B_in["x"],
        "B_w_gate": _B_in["w_gate"],
        "B_w_up": _B_in["w_up"],
        "B_w_down": _B_in["w_down"],
        "gate_w": _w((lambda *s: torch.randn(*s, dtype=torch.bfloat16) * 0.05)(512) * 16.0),
    }

def reference(A_x, A_Lambda_re, A_Lambda_im, A_B_re, A_B_im, A_C_re, A_C_im, A_log_dt, A_Dskip, B_x, B_w_gate, B_w_up, B_w_down, gate_w):
    def _A_ref(x, Lambda_re, Lambda_im, B_re, B_im, C_re, C_im, log_dt, Dskip):
        Bsz, L, H = x.shape
        Lam = Lambda_re + 1j * Lambda_im
        Bmat = B_re + 1j * B_im
        Cmat = C_re + 1j * C_im
        dt = torch.exp(log_dt)
        Lam_bar = torch.exp(dt * Lam)
        B_bar = ((Lam_bar - 1.0) / Lam)[:, None] * Bmat
        Bu = torch.einsum("bld,pd->blp", x + 0j, B_bar)
        h = torch.zeros_like(Bu[:, 0, :])
        hs = []
        for t in range(L):
            h = Lam_bar[None, :] * h + Bu[:, t, :]
            hs.append(h)
        hseq = torch.stack(hs, 1)
        y = 2.0 * torch.einsum("blp,dp->bld", hseq, Cmat).real + x * Dskip[None, None, :]
        return y

    def _B_ref(x, w_gate, w_up, w_down):
        g = _silu(x @ w_gate)
        u = x @ w_up
        return (g * u) @ w_down

    x = A_x
    g = _sigmoid((x * gate_w).sum(-1, keepdims=True))
    a = _A_ref(x, A_Lambda_re, A_Lambda_im, A_B_re, A_B_im, A_C_re, A_C_im, A_log_dt, A_Dskip)
    b = _B_ref(x, B_w_gate, B_w_up, B_w_down)
    return g * a + (1 - g) * b
```

```python
def v(i, n=1):
    return f"v{i}" if n == 1 else f"v[{i}:{i + n - 1}]"


def s(i, n=1):
    return f"s{i}" if n == 1 else f"s[{i}:{i + n - 1}]"


class Emit:
    def __init__(self):
        self.lines = []
        self.vm_seq = 0
        self.vm_done = 0
        self.lg_seq = 0
        self.lg_done = 0

    def fork(self):
        e = Emit()
        e.vm_seq, e.vm_done, e.lg_seq, e.lg_done = self.vm_seq, self.vm_done, self.lg_seq, self.lg_done
        return e

    def __call__(self, txt):
        self.lines.append("    " + txt)

    def label(self, name):
        self.lines.append(name + ":")

    def comment(self, txt):
        self.lines.append("    ; " + txt)

    def vm(self, txt):
        self(txt)
        self.vm_seq += 1
        return self.vm_seq - 1

    def lds(self, txt):
        self(txt)
        self.lg_seq += 1
        return self.lg_seq - 1

    def wait(self, vm=None, lg=None):
        parts = []
        if vm is not None and vm >= self.vm_done:
            n = self.vm_seq - 1 - vm
            assert n >= 0
            if n > 63:
                n = 63
            parts.append(f"vmcnt({n})")
            self.vm_done = self.vm_seq - n
        if lg is not None and lg >= self.lg_done:
            n = self.lg_seq - 1 - lg
            assert n >= 0
            if n > 15:
                n = 15
            parts.append(f"lgkmcnt({n})")
            self.lg_done = self.lg_seq - n
        if parts:
            self("s_waitcnt " + " ".join(parts))

    def wait_all_vm(self):
        self("s_waitcnt vmcnt(0)")
        self.vm_done = self.vm_seq

    def wait_all_lg(self):
        self("s_waitcnt lgkmcnt(0)")
        self.lg_done = self.lg_seq

    def nop(self, n):
        while n > 0:
            k = min(n, 16)
            self(f"s_nop {k - 1}")
            n -= k

    def text(self):
        return "\n".join(self.lines) + "\n"

    def extend(self, other):
        self.lines.extend(other.lines)
```

```python
import sys, os
sys.path.insert(0, os.path.dirname(os.path.abspath(__file__)))
from asmlib import Emit, v, s

NAME = "gated_mix__ssm_conv_s5__swiglu_ffn__prompt"

KS = 176
WS_A2 = 0
A2_BYTES = 64 * KS * 1024
WS_B2 = WS_A2 + A2_BYTES
B2_BYTES = 16 * KS * 1024
WS_G = WS_B2 + B2_BYTES
WS_AGG = WS_G + 8192
AGG_BYTES = 32 * 8 * 512
WS_END = WS_AGG + AGG_BYTES

REG = 16384
L_TR = 131072
L_PRE = 147456
L_SEX = 151552
L_PAR = 156672
LDS1 = 163840

LOG2E = 0x3FB8AA3B
NLOG2E = 0xBFB8AA3B
INV2PI = 0x3E22F983

S_WG, S_WV, S_W, S_HALF, S_I, S_CQ, S_JJ, S_UA, S_UB, S_ST0 = 2, 3, 4, 5, 6, 7, 8, 9, 10, 11
P_X, P_LRE, P_LIM, P_BRE, P_BIM, P_CRE, P_CIM, P_LDT = 16, 18, 20, 22, 24, 26, 28, 30
P_DSK, P_BX, P_WG, P_WU, P_WD, P_GW, P_OUT, P_DBG = 32, 34, 36, 38, 40, 42, 44, 46
P_WS = 48
SRD_X, SRD_S, SRD_G, SRD_U, SRD_WS, SRD_WD = 52, 56, 60, 64, 68, 72
S_K0, S_K1 = 76, 77
S_LB0, S_LB1, S_LB2 = 78, 79, 80
S_NL2E = 81
S_A2A, S_A2B, S_A2S = 82, 83, 84
S_COL = 85
S_T0, S_T1, S_T2, S_T3 = 12, 13, 14, 15
S_SPIN = 86
S_EX = 88
S_M0, S_M1 = 90, 92
S_AGG = 94

V_DA = 1
V_DB = 6
V_XA = 10
V_SA = 14
V_TA = 18
V_TB = 21
V_ST = 23
V_FR = 24
ACC = [48, 64, 80, 96, 112]
V_X = 128

DPP_X1 = "quad_perm:[1,0,3,2] row_mask:0xf bank_mask:0xf"
DPP_X2 = "quad_perm:[2,3,0,1] row_mask:0xf bank_mask:0xf"


def srd(e, d, ptr, nbytes):
    e(f"s_mov_b32 {s(d)}, {s(ptr)}")
    e(f"s_and_b32 {s(d + 1)}, {s(ptr + 1)}, 0xffff")
    e(f"s_mov_b32 {s(d + 2)}, {nbytes}")
    e(f"s_mov_b32 {s(d + 3)}, 0x00020000")


def mfma(e, d, a, b, first):
    c = "0" if first else v(d, 16)
    e(f"v_mfma_f32_32x32x16_bf16 {v(d, 16)}, {v(a, 4)}, {v(b, 4)}, {c}")


def k1_prologue(e):
    e(f"s_cmp_ge_u32 s2, 256")
    e(f"s_cbranch_scc1 L1_exit")
    e(f"s_load_dwordx16 {s(16, 16)}, s[0:1], 0")
    e(f"s_load_dwordx16 {s(32, 16)}, s[0:1], 64")
    e(f"s_load_dwordx2 {s(48, 2)}, s[0:1], 128")
    e("v_lshrrev_b32 v1, 6, v0")
    e("v_and_b32 v0, 63, v0")
    e(f"v_readfirstlane_b32 {s(S_WV)}, v1")
    e(f"s_and_b32 {s(S_T0)}, s2, 7")
    e(f"s_lshr_b32 {s(S_T1)}, s2, 3")
    e(f"s_lshr_b32 {s(S_CQ)}, {s(S_T0)}, 1")
    e(f"s_and_b32 {s(S_T2)}, {s(S_T0)}, 1")
    e(f"s_lshl_b32 {s(S_T2)}, {s(S_T2)}, 3")
    e(f"s_and_b32 {s(S_I)}, {s(S_T1)}, 7")
    e(f"s_add_u32 {s(S_I)}, {s(S_I)}, {s(S_T2)}")
    e(f"s_lshr_b32 {s(S_JJ)}, {s(S_T1)}, 3")
    e(f"s_and_b32 {s(S_W)}, {s(S_WV)}, 3")
    e(f"s_lshr_b32 {s(S_HALF)}, {s(S_WV)}, 2")
    e(f"s_mul_i32 {s(S_UA)}, {s(S_CQ)}, 7")
    e(f"s_lshl_b32 {s(S_T2)}, {s(S_JJ)}, 1")
    e(f"s_add_u32 {s(S_UA)}, {s(S_UA)}, {s(S_T2)}")
    e(f"s_add_u32 {s(S_UB)}, {s(S_UA)}, 1")
    e(f"s_cmp_eq_u32 {s(S_JJ)}, 3")
    e(f"s_cselect_b32 {s(S_UB)}, {s(S_UA)}, {s(S_UB)}")
    e(f"s_lshl_b32 {s(S_ST0)}, {s(S_CQ)}, 3")
    e(f"s_add_u32 {s(S_ST0)}, {s(S_ST0)}, {s(S_JJ)}")
    e(f"s_lshl_b32 {s(S_COL)}, {s(S_CQ)}, 2")
    e(f"s_add_u32 {s(S_COL)}, {s(S_COL)}, {s(S_JJ)}")
    e(f"s_mov_b32 {s(S_NL2E)}, {NLOG2E:#x}")
    e(f"v_lshlrev_b32 {v(V_ST)}, 4, v0")
    e(f"s_lshl_b32 {s(S_T3)}, {s(S_T0)}, 5")
    e(f"s_add_u32 {s(S_T3)}, {s(S_T3)}, {s(S_T1)}")
    e(f"s_lshl_b32 {s(S_T3)}, {s(S_T3)}, 2")
    e(f"s_add_u32 {s(S_T3)}, {s(S_T3)}, {s(S_W)}")
    e(f"s_lshl_b32 {s(S_T0)}, {s(S_I)}, 2")
    e(f"s_add_u32 {s(S_T0)}, {s(S_T0)}, {s(S_W)}")
    e(f"s_mul_i32 {s(S_T0)}, {s(S_T0)}, {KS * 1024}")
    e(f"s_lshl_b32 {s(S_T1)}, {s(S_UA)}, 12")
    e(f"s_add_u32 {s(S_A2A)}, {s(S_T0)}, {s(S_T1)}")
    e(f"s_lshl_b32 {s(S_T1)}, {s(S_UB)}, 12")
    e(f"s_add_u32 {s(S_A2B)}, {s(S_T0)}, {s(S_T1)}")
    e(f"s_lshl_b32 {s(S_T1)}, {s(S_ST0)}, 11")
    e(f"s_add_u32 {s(S_A2S)}, {s(S_T0)}, {s(S_T1)}")
    e(f"s_add_u32 {s(S_A2S)}, {s(S_A2S)}, {112 * 1024}")
    e(f"s_lshl_b32 {s(S_AGG)}, {s(S_ST0)}, 12")
    e(f"s_add_u32 {s(S_AGG)}, {s(S_AGG)}, {WS_AGG}")

    T = 128
    e(f"v_lshrrev_b32 {v(T)}, 3, v0")
    e(f"v_and_b32 {v(T + 1)}, 7, v0")
    e(f"v_lshrrev_b32 {v(T + 2)}, 4, v0")
    e(f"v_lshrrev_b32 {v(T + 3)}, 5, v0")
    e(f"v_and_b32 {v(T + 4)}, 31, v0")
    e(f"v_and_b32 {v(T + 5)}, 1, {v(T + 2)}")
    e(f"v_lshlrev_b32 {v(T + 5)}, 1, {v(T + 5)}")
    e(f"v_xor_b32 {v(T + 5)}, {v(T + 5)}, {v(T + 1)}")
    e(f"v_lshlrev_b32 {v(T + 5)}, 4, {v(T + 5)}")
    e(f"v_mul_u32_u24 {v(T + 6)}, 3584, {v(T)}")
    e(f"v_add_u32 {v(T + 5)}, {v(T + 5)}, {v(T + 6)}")
    e(f"s_mul_i32 {s(S_T0)}, {s(S_WV)}, {16 * 3584}")
    e(f"s_lshl_b32 {s(S_T1)}, {s(S_UB)}, 7")
    e(f"s_add_u32 {s(S_T0)}, {s(S_T0)}, {s(S_T1)}")
    e(f"v_add_u32 {v(V_DB)}, {s(S_T0)}, {v(T + 5)}")
    e(f"v_add_u32 {v(V_DB + 1)}, {8 * 3584 - 1024}, {v(V_DB)}")
    e(f"v_xor_b32 {v(V_DB + 2)}, 64, {v(V_DB)}")
    e(f"v_xor_b32 {v(V_DB + 3)}, 64, {v(V_DB + 1)}")
    e(f"v_bfe_u32 {v(T + 6)}, v0, 1, 3")
    e(f"v_xor_b32 {v(T + 6)}, {v(T + 6)}, {v(T + 3)}")
    e(f"v_lshlrev_b32 {v(T + 6)}, 4, {v(T + 6)}")
    e(f"v_lshl_add_u32 {v(T + 6)}, {v(T + 4)}, 7, {v(T + 6)}")
    e(f"s_lshl_b32 {s(S_T0)}, {s(S_W)}, 14")
    e(f"v_add_u32 {v(V_XA)}, {s(S_T0)}, {v(T + 6)}")
    for u in range(1, 4):
        e(f"v_xor_b32 {v(V_XA + u)}, {32 * u}, {v(V_XA)}")
    e(f"v_bfe_u32 {v(T + 7)}, v0, 2, 2")
    e(f"v_lshl_add_u32 {v(T + 8)}, {v(T + 3)}, 3, {v(T + 7)}")
    e(f"v_lshlrev_b32 {v(T + 8)}, 7, {v(T + 8)}")
    e(f"v_and_b32 {v(T + 9)}, 3, v0")
    e(f"v_lshl_add_u32 {v(T + 8)}, {v(T + 9)}, 3, {v(T + 8)}")
    e(f"v_and_b32 {v(T + 9)}, 1, {v(T + 2)}")
    e(f"v_lshrrev_b32 {v(T + 10)}, 1, {v(T + 7)}")
    e(f"v_lshl_add_u32 {v(T + 10)}, {v(T + 9)}, 1, {v(T + 10)}")
    e(f"v_lshl_add_u32 {v(T + 8)}, {v(T + 10)}, 5, {v(T + 8)}")
    e(f"v_lshl_add_u32 {v(T + 10)}, {v(T + 9)}, 16, {v(T + 8)}")
    e(f"s_lshl_b32 {s(S_T0)}, {s(S_HALF)}, 6")
    e(f"v_xor_b32 {v(V_TB)}, {s(S_T0)}, {v(T + 10)}")
    e(f"v_xor_b32 {v(V_TB + 1)}, 32, {v(V_TB)}")
    e(f"v_lshl_add_u32 {v(T + 10)}, {v(T + 9)}, 15, {v(T + 8)}")
    e(f"v_add_u32 {v(T + 10)}, {4 * REG}, {v(T + 10)}")
    e(f"v_and_b32 {v(T + 11)}, 1, v0")
    e(f"v_lshrrev_b32 {v(T + 12)}, 1, {v(T + 4)}")
    e(f"v_lshl_add_u32 {v(T + 12)}, {v(T + 11)}, 4, {v(T + 12)}")
    e(f"v_bfe_u32 {v(T + 13)}, {v(T + 12)}, 1, 2")
    e(f"v_lshl_add_u32 {v(T + 13)}, {v(T + 11)}, 2, {v(T + 13)}")
    e(f"v_xor_b32 {v(T + 13)}, {v(T + 13)}, {v(T + 3)}")
    e(f"v_lshlrev_b32 {v(T + 13)}, 4, {v(T + 13)}")
    e(f"v_lshl_add_u32 {v(T + 13)}, {v(T + 12)}, 7, {v(T + 13)}")
    e("s_waitcnt lgkmcnt(0)")
    srd(e, SRD_X, P_X, 2048 * 1024)
    srd(e, SRD_G, P_WG, 512 * 3584)
    srd(e, SRD_U, P_WU, 512 * 3584)
    srd(e, SRD_WS, P_WS, WS_END)
    srd(e, SRD_WD, P_WD, 1792 * 1024)
    e(f"s_cmp_lt_u32 {s(S_W)}, 2")
    e(f"s_cselect_b32 {s(SRD_S)}, {s(P_BRE)}, {s(P_BIM)}")
    e(f"s_cselect_b32 {s(SRD_S + 1)}, {s(P_BRE + 1)}, {s(P_BIM + 1)}")
    e(f"s_and_b32 {s(SRD_S + 1)}, {s(SRD_S + 1)}, 0xffff")
    e(f"s_mov_b32 {s(SRD_S + 2)}, {512 * 1024}")
    e(f"s_mov_b32 {s(SRD_S + 3)}, 0x00020000")
    e(f"s_lshr_b32 {s(S_LB2)}, {s(S_WV)}, 1")
    e(f"s_lshl_b32 {s(S_LB2)}, {s(S_LB2)}, 14")
    e(f"s_and_b32 {s(S_T0)}, {s(S_WV)}, 1")
    e(f"s_lshl_b32 {s(S_T0)}, {s(S_T0)}, 11")
    e(f"s_add_u32 {s(S_LB2)}, {s(S_LB2)}, {s(S_T0)}")

    G = 160
    e(f"s_lshl_b32 {s(S_T0)}, {s(S_I)}, 7")
    e(f"s_lshl_b32 {s(S_T1)}, {s(S_COL)}, 3")
    e(f"s_add_u32 {s(S_T0)}, {s(S_T0)}, {s(S_T1)}")
    e(f"s_add_u32 {s(S_T0)}, {s(S_T0)}, {s(S_WV)}")
    e(f"s_lshl_b32 {s(S_T1)}, {s(S_T0)}, 10")
    e(f"s_lshl_b32 {s(S_T2)}, {s(S_T0)}, 2")
    e(f"s_add_u32 {s(S_T2)}, {s(S_T2)}, {WS_G}")
    tok = {}
    tok['gx'] = e.vm(f"buffer_load_dwordx4 {v(G, 4)}, {v(V_ST)}, {s(SRD_X, 4)}, {s(S_T1)} offen")
    tok['gw'] = e.vm(f"global_load_dwordx4 {v(G + 4, 4)}, {v(V_ST)}, {s(P_GW, 2)}")
    e(f"s_min_u32 {s(S_T0)}, {s(S_WV)}, 4")
    e(f"s_add_u32 {s(S_T0)}, {s(S_T0)}, {s(S_ST0)}")
    e(f"s_lshl_b32 {s(S_T0)}, {s(S_T0)}, 5")
    e(f"v_and_b32 {v(G + 8)}, 30, v0")
    e(f"v_add_u32 {v(G + 8)}, {s(S_T0)}, {v(G + 8)}")
    e.vm(f"global_load_ushort {v(G + 9)}, {v(G + 8)}, {s(P_LRE, 2)}")
    e.vm(f"global_load_ushort {v(G + 10)}, {v(G + 8)}, {s(P_LIM, 2)}")
    tok['par'] = e.vm(f"global_load_ushort {v(G + 11)}, {v(G + 8)}, {s(P_LDT, 2)}")
    return tok


def k1_gate_and_params(e, tok):
    G = 160
    T = 176
    e.wait(vm=tok['gw'])
    for j in range(4):
        e(f"v_lshlrev_b32 {v(T + 2 * j)}, 16, {v(G + j)}")
        e(f"v_and_b32 {v(T + 2 * j + 1)}, 0xffff0000, {v(G + j)}")
        e(f"v_lshlrev_b32 {v(T + 8 + 2 * j)}, 16, {v(G + 4 + j)}")
        e(f"v_and_b32 {v(T + 8 + 2 * j + 1)}, 0xffff0000, {v(G + 4 + j)}")
    for j in range(8):
        e(f"v_mul_f32 {v(T + j)}, {v(T + j)}, {v(T + 8 + j)}")
    for j in range(4):
        e(f"v_cvt_pk_bf16_f32 {v(T + 8 + j)}, {v(T + 2 * j)}, {v(T + 2 * j + 1)}")
    for j in range(4):
        e(f"v_lshlrev_b32 {v(T + 2 * j)}, 16, {v(T + 8 + j)}")
        e(f"v_and_b32 {v(T + 2 * j + 1)}, 0xffff0000, {v(T + 8 + j)}")
    for j in range(4):
        e(f"v_add_f32 {v(T + j)}, {v(T + j)}, {v(T + 4 + j)}")
    e(f"v_add_f32 {v(T)}, {v(T)}, {v(T + 2)}")
    e(f"v_add_f32 {v(T + 1)}, {v(T + 1)}, {v(T + 3)}")
    e(f"v_add_f32 {v(T)}, {v(T)}, {v(T + 1)}")
    for d in (DPP_X1, DPP_X2, "row_half_mirror row_mask:0xf bank_mask:0xf", "row_mirror row_mask:0xf bank_mask:0xf"):
        e.nop(2)
        e(f"v_add_f32_dpp {v(T + 1)}, {v(T)}, {v(T)} {d}")
        e(f"v_mov_b32 {v(T)}, {v(T + 1)}")
    e.nop(1)
    e(f"v_readlane_b32 {s(S_T0)}, {v(T)}, 16")
    e(f"v_readlane_b32 {s(S_T1)}, {v(T)}, 32")
    e(f"v_readlane_b32 {s(S_M0)}, {v(T)}, 48")
    e.nop(2)
    e(f"v_add_f32 {v(T)}, {s(S_T0)}, {v(T)}")
    e(f"v_mov_b32 {v(T + 1)}, {s(S_T1)}")
    e(f"v_add_f32 {v(T + 1)}, {s(S_M0)}, {v(T + 1)}")
    e(f"v_add_f32 {v(T)}, {v(T)}, {v(T + 1)}")
    e(f"v_cvt_pk_bf16_f32 {v(T)}, {v(T)}, {v(T)}")
    e(f"v_lshlrev_b32 {v(T)}, 16, {v(T)}")
    e(f"v_mul_f32 {v(T)}, {s(S_NL2E)}, {v(T)}")
    e(f"v_exp_f32 {v(T)}, {v(T)}")
    e.nop(1)
    e(f"v_add_f32 {v(T)}, 1.0, {v(T)}")
    e(f"v_rcp_f32 {v(T)}, {v(T)}")
    e.nop(1)
    e(f"v_cvt_pk_bf16_f32 {v(T)}, {v(T)}, {v(T)}")
    e(f"v_lshlrev_b32 {v(T)}, 16, {v(T)}")
    e(f"v_mov_b32 {v(T + 1)}, 0")
    e("s_mov_b64 exec, 1")
    e.vm(f"buffer_store_dword {v(T)}, {v(T + 1)}, {s(SRD_WS, 4)}, {s(S_T2)} offen")
    e("s_mov_b64 exec, -1")
    e.wait(vm=tok['par'])
    e(f"s_cmp_ge_u32 {s(S_WV)}, 5")
    lab = e.newlabel("par_skip")
    e(f"s_cbranch_scc1 {lab}")
    LRE, LIM, LD = G + 9, G + 10, G + 11
    P = 192
    e(f"v_lshlrev_b32 {v(LRE)}, 16, {v(LRE)}")
    e(f"v_lshlrev_b32 {v(LIM)}, 16, {v(LIM)}")
    e(f"v_lshlrev_b32 {v(LD)}, 16, {v(LD)}")
    e(f"v_mul_f32 {v(LD)}, {LOG2E:#x}, {v(LD)}")
    e(f"v_exp_f32 {v(LD)}, {v(LD)}")
    e.nop(1)
    e(f"v_cvt_pk_bf16_f32 {v(LD)}, {v(LD)}, {v(LD)}")
    e(f"v_lshlrev_b32 {v(LD)}, 16, {v(LD)}")
    e(f"v_mul_f32 {v(T)}, {v(LD)}, {v(LRE)}")
    e(f"v_mul_f32 {v(T + 1)}, {v(LD)}, {v(LIM)}")
    e(f"v_mul_f32 {v(T)}, {LOG2E:#x}, {v(T)}")
    e(f"v_exp_f32 {v(T)}, {v(T)}")
    e(f"v_mul_f32 {v(T + 1)}, {INV2PI:#x}, {v(T + 1)}")
    e(f"v_rndne_f32 {v(T + 2)}, {v(T + 1)}")
    e(f"v_sub_f32 {v(T + 1)}, {v(T + 1)}, {v(T + 2)}")
    e(f"v_cos_f32 {v(T + 2)}, {v(T + 1)}")
    e(f"v_sin_f32 {v(T + 3)}, {v(T + 1)}")
    e.nop(1)
    e(f"v_mul_f32 {v(T + 2)}, {v(T)}, {v(T + 2)}")
    e(f"v_mul_f32 {v(T + 3)}, {v(T)}, {v(T + 3)}")
    e(f"v_add_f32 {v(T + 4)}, -1.0, {v(T + 2)}")
    e(f"v_mul_f32 {v(T + 5)}, {v(LRE)}, {v(LRE)}")
    e(f"v_fmac_f32 {v(T + 5)}, {v(LIM)}, {v(LIM)}")
    e(f"v_rcp_f32 {v(T + 5)}, {v(T + 5)}")
    e(f"v_mul_f32 {v(T + 6)}, {v(T + 4)}, {v(LRE)}")
    e(f"v_fmac_f32 {v(T + 6)}, {v(T + 3)}, {v(LIM)}")
    e(f"v_mul_f32 {v(T + 7)}, {v(T + 3)}, {v(LRE)}")
    e(f"v_fma_f32 {v(T + 7)}, -{v(T + 4)}, {v(LIM)}, {v(T + 7)}")
    e(f"v_add_f32 {v(T + 5)}, {v(T + 5)}, {v(T + 5)}")
    e(f"v_mul_f32 {v(T + 6)}, {v(T + 6)}, {v(T + 5)}")
    e(f"v_mul_f32 {v(T + 7)}, {v(T + 7)}, {v(T + 5)}")
    e(f"v_and_b32 {v(T + 8)}, 1, v0")
    e(f"v_lshlrev_b32 {v(T + 8)}, 31, {v(T + 8)}")
    e(f"v_xor_b32 {v(T + 9)}, 0x80000000, {v(T + 8)}")
    e(f"v_xor_b32 {v(P)}, {v(T + 8)}, {v(T + 6)}")
    e(f"v_xor_b32 {v(P + 1)}, 0x80000000, {v(T + 7)}")
    e(f"v_mov_b32 {v(P + 2)}, {v(T + 2)}")
    e(f"v_xor_b32 {v(P + 3)}, {v(T + 9)}, {v(T + 3)}")

    def square():
        e(f"v_mul_f32 {v(T + 4)}, {v(T + 3)}, {v(T + 3)}")
        e(f"v_mul_f32 {v(T + 5)}, {v(T + 2)}, {v(T + 3)}")
        e(f"v_fma_f32 {v(T + 2)}, {v(T + 2)}, {v(T + 2)}, -{v(T + 4)}")
        e(f"v_add_f32 {v(T + 3)}, {v(T + 5)}, {v(T + 5)}")
    for _ in range(4):
        square()
    e(f"v_mov_b32 {v(P + 4)}, {v(T + 2)}")
    e(f"v_xor_b32 {v(P + 5)}, {v(T + 9)}, {v(T + 3)}")
    for _ in range(3):
        square()
    e(f"v_mov_b32 {v(P + 6)}, {v(T + 2)}")
    e(f"v_xor_b32 {v(P + 7)}, {v(T + 9)}, {v(T + 3)}")
    e(f"s_lshl_b32 {s(S_T0)}, {s(S_WV)}, 10")
    e(f"s_add_u32 {s(S_T0)}, {s(S_T0)}, {L_PAR}")
    e(f"v_and_b32 {v(T)}, 31, v0")
    e(f"v_lshlrev_b32 {v(T)}, 5, {v(T)}")
    e(f"v_add_u32 {v(T)}, {s(S_T0)}, {v(T)}")
    e(f"ds_write_b128 {v(T)}, {v(P, 4)}")
    e(f"ds_write_b128 {v(T)}, {v(P + 4, 4)} offset:16")
    e.label(lab)


class Path(Emit):
    cnt = 0

    def newlabel(self, base):
        Path.cnt += 1
        return f"L_{base}_{Path.cnt}"

    def fork(self):
        e = Path()
        e.vm_seq, e.vm_done, e.lg_seq, e.lg_done = self.vm_seq, self.vm_done, self.lg_seq, self.lg_done
        return e


def dma(e, voff, srd_, soff, off=0):
    o = f" offset:{off}" if off else ""
    return e.vm(f"buffer_load_dwordx4 {v(voff)}, {s(srd_, 4)}, {s(soff)} offen{o} lds")


def k1_issue_unit(e, typ, half, unit):
    slot = unit % 4
    if unit >= 8:
        c = unit - 8
        e(f"s_mov_b32 {s(S_K1)}, {c * 128 * 3584}")
        e(f"s_add_u32 m0, {s(S_LB2)}, {slot * 4096}")
        e("s_nop 0")
        dma(e, V_DB, SRD_G, S_K1)
        dma(e, V_DB + 1, SRD_G, S_K1, 1024)
        e(f"s_add_u32 m0, {s(S_LB2)}, {4 * REG + slot * 4096}")
        e("s_nop 0")
        dma(e, V_DB + 2, SRD_U, S_K1)
        return dma(e, V_DB + 3, SRD_U, S_K1, 1024)
    if half == 1:
        e(f"s_add_u32 m0, {s(S_LB0)}, {slot * 4096}")
        e(f"s_mov_b32 {s(S_K0)}, {unit * 128}")
        for q in range(4):
            t = dma(e, V_DA + q, SRD_X, S_K0, 1024 * q)
        return t
    if typ == 'X':
        e(f"s_add_u32 m0, {s(S_LB0)}, {8 * REG + slot * 4096}")
        e(f"s_mov_b32 {s(S_K0)}, {unit * 128}")
        dma(e, V_DA, SRD_S, S_K0)
        e(f"s_add_u32 m0, {s(S_LB1)}, {4 * REG + slot * 4096}")
        e(f"s_mov_b32 {s(S_K1)}, {unit * 64 * 3584}")
        dma(e, V_DA + 1, SRD_G, S_K1)
        dma(e, V_DA + 2, SRD_G, S_K1, 1024)
        e(f"s_add_u32 m0, {s(S_LB1)}, {6 * REG + slot * 4096}")
        e("s_nop 0")
        dma(e, V_DA + 3, SRD_U, S_K1)
        return dma(e, V_DA + 4, SRD_U, S_K1, 1024)
    for m in range(5):
        e(f"s_add_u32 m0, {s(S_LB0)}, {(4 + m) * REG + slot * 4096}")
        e(f"s_mov_b32 {s(S_K0)}, {unit * 128 + m * 16384}")
        t = dma(e, V_DA, SRD_S, S_K0)
    return t


def ffn_epilogue(e, A, T, sbase, t):
    G, U = A, A + 8
    for k in range(8):
        e(f"v_mul_f32 {v(T + k)}, {s(S_NL2E)}, {v(G + k)}")
    for k in range(8):
        e(f"v_exp_f32 {v(T + k)}, {v(T + k)}")
    for k in range(8):
        e(f"v_mul_f32 {v(U + k)}, {v(G + k)}, {v(U + k)}")
    for k in range(8):
        e(f"v_add_f32 {v(T + k)}, 1.0, {v(T + k)}")
    for k in range(8):
        e(f"v_rcp_f32 {v(T + k)}, {v(T + k)}")
    e.nop(1)
    for k in range(8):
        e(f"v_mul_f32 {v(U + k)}, {v(U + k)}, {v(T + k)}")
    for p in range(4):
        e(f"v_cvt_pk_bf16_f32 {v(G + p)}, {v(U + 2 * p)}, {v(U + 2 * p + 1)}")
    o = f" offset:{1024 * t}" if t else ""
    e.vm(f"buffer_store_dwordx4 {v(G, 4)}, {v(V_ST)}, {s(SRD_WS, 4)}, {s(sbase)} offen{o}")


def k1_path(e, typ, half, tok):
    T = 128
    if half == 1:
        e(f"v_bfe_u32 {v(T + 14)}, v0, 3, 2")
        e(f"v_lshl_add_u32 {v(T + 14)}, {v(T + 3)}, 4, {v(T + 14)}")
        e(f"v_xor_b32 {v(T + 15)}, {v(T + 1)}, {v(T + 2)}")
        e(f"v_lshlrev_b32 {v(T + 15)}, 4, {v(T + 15)}")
        e(f"v_lshl_add_u32 {v(T + 14)}, {v(T + 14)}, 10, {v(T + 15)}")
        e(f"s_lshl_b32 {s(S_T0)}, {s(S_I)}, 17")
        e(f"s_lshl_b32 {s(S_T1)}, {s(S_W)}, 15")
        e(f"s_add_u32 {s(S_T0)}, {s(S_T0)}, {s(S_T1)}")
        e(f"v_add_u32 {v(V_DA)}, {s(S_T0)}, {v(T + 14)}")
        e(f"v_xor_b32 {v(T + 14)}, 64, {v(V_DA)}")
        e(f"v_add_u32 {v(V_DA + 1)}, {4096 - 1024}, {v(T + 14)}")
        e(f"v_add_u32 {v(V_DA + 2)}, {2 * (4096 - 1024)}, {v(V_DA)}")
        e(f"v_add_u32 {v(V_DA + 3)}, {3 * (4096 - 1024)}, {v(T + 14)}")
        e(f"s_lshl_b32 {s(S_LB0)}, {s(S_W)}, 14")
    else:
        e(f"s_lshr_b32 {s(S_T0)}, {s(S_W)}, 1")
        e(f"s_lshl_b32 {s(S_T0)}, {s(S_T0)}, 2")
        e(f"v_xor_b32 {v(T + 14)}, {v(T + 1)}, {v(T + 2)}")
        e(f"v_xor_b32 {v(T + 14)}, {s(S_T0)}, {v(T + 14)}")
        e(f"v_lshlrev_b32 {v(T + 14)}, 4, {v(T + 14)}")
        e(f"v_lshl_add_u32 {v(T + 14)}, {v(T)}, 10, {v(T + 14)}")
        e(f"s_lshl_b32 {s(S_T0)}, {s(S_ST0)}, 14")
        e(f"s_and_b32 {s(S_T1)}, {s(S_W)}, 1")
        e(f"s_lshl_b32 {s(S_T1)}, {s(S_T1)}, 13")
        e(f"s_add_u32 {s(S_T0)}, {s(S_T0)}, {s(S_T1)}")
        e(f"v_add_u32 {v(V_DA)}, {s(S_T0)}, {v(T + 14)}")
        e(f"s_lshl_b32 {s(S_LB0)}, {s(S_W)}, 10")
        if typ == 'X':
            e(f"s_mul_i32 {s(S_T0)}, {s(S_W)}, {16 * 3584}")
            e(f"s_lshl_b32 {s(S_T1)}, {s(S_UA)}, 7")
            e(f"s_add_u32 {s(S_T0)}, {s(S_T0)}, {s(S_T1)}")
            e(f"v_add_u32 {v(V_DA + 1)}, {s(S_T0)}, {v(T + 5)}")
            e(f"v_add_u32 {v(V_DA + 2)}, {8 * 3584 - 1024}, {v(V_DA + 1)}")
            e(f"v_xor_b32 {v(V_DA + 3)}, 64, {v(V_DA + 1)}")
            e(f"v_xor_b32 {v(V_DA + 4)}, 64, {v(V_DA + 2)}")
            e(f"s_lshr_b32 {s(S_LB1)}, {s(S_W)}, 1")
            e(f"s_lshl_b32 {s(S_LB1)}, {s(S_LB1)}, 14")
            e(f"s_and_b32 {s(S_T0)}, {s(S_W)}, 1")
            e(f"s_lshl_b32 {s(S_T0)}, {s(S_T0)}, 11")
            e(f"s_add_u32 {s(S_LB1)}, {s(S_LB1)}, {s(S_T0)}")
    if typ == 'X':
        tilesA = [('S', 0), ('F', 0)] if half == 0 else [('F', 1), ('F', 2), ('F', 3)]
    else:
        tilesA = [('S', 0), ('S', 1)] if half == 0 else [('S', 2), ('S', 3), ('S', 4)]
    stiles = [m for k, m in tilesA if k == 'S']
    ntile_wg = 1 if typ == 'X' else 5
    if stiles:
        base = (8 * REG) if typ == 'X' else (4 + stiles[0]) * REG
        e(f"v_add_u32 {v(V_SA)}, {base}, {v(T + 13)}")
        for u in range(1, 4):
            e(f"v_xor_b32 {v(V_SA + u)}, {32 * u}, {v(V_SA)}")
    ft = [m for k, m in tilesA if k == 'F']
    for idx, t in enumerate(ft):
        e(f"v_xor_b32 {v(V_TA + idx)}, {32 * t}, {v(T + 10)}")

    PP = 208
    if half == 0:
        lab = e.newlabel("clr_skip")
        e(f"s_cmp_lg_u32 {s(S_W)}, 0")
        e(f"s_cbranch_scc1 {lab}")
        e(f"s_lshr_b32 {s(S_T0)}, {s(S_I)}, 1")
        e(f"s_lshl_b32 {s(S_T0)}, {s(S_T0)}, 9")
        e(f"s_and_b32 {s(S_T1)}, {s(S_I)}, 1")
        e(f"s_lshl_b32 {s(S_T1)}, {s(S_T1)}, 3")
        e(f"s_add_u32 {s(S_T0)}, {s(S_T0)}, {s(S_T1)}")
        e(f"s_add_u32 {s(S_T0)}, {s(S_T0)}, {s(S_AGG)}")
        e(f"v_mov_b32 {v(PP)}, 0")
        e(f"v_mov_b32 {v(PP + 1)}, 0")
        e("s_mov_b32 exec_hi, 0")
        for m in range(ntile_wg):
            e(f"buffer_store_dwordx2 {v(PP, 2)}, {v(V_ST)}, {s(SRD_WS, 4)}, {s(S_T0)} offen sc1")
            if m + 1 < ntile_wg:
                e(f"s_add_u32 {s(S_T0)}, {s(S_T0)}, 4096")
        e("s_mov_b64 exec, -1")
        e.label(lab)
        e(f"s_lshl_b32 {s(S_T0)}, s2, 2")
        e(f"s_add_u32 {s(S_T0)}, {s(S_T0)}, {s(S_W)}")
        e(f"s_lshr_b32 {s(S_T1)}, {s(S_T0)}, 3")
        e(f"s_and_b32 {s(S_T0)}, {s(S_T0)}, 7")
        e(f"s_lshl_b32 {s(S_K0)}, {s(S_T1)}, 14")
        e(f"s_lshl_b32 {s(S_K1)}, {s(S_T0)}, 7")
        e(f"s_add_u32 {s(S_K0)}, {s(S_K0)}, {s(S_K1)}")
        e(f"v_lshlrev_b32 {v(PP)}, 4, {v(T + 1)}")
        e(f"v_lshl_add_u32 {v(PP)}, {v(T)}, 10, {v(PP)}")
        e(f"v_add_u32 {v(PP + 1)}, {8192 - 1024}, {v(PP)}")
        e(f"s_lshl_b32 {s(S_K1)}, {s(S_W)}, 11")
        e(f"s_add_u32 m0, {s(S_K1)}, {L_PRE}")
        e(f"s_mul_i32 {s(S_T3)}, {s(S_T0)}, {2 * KS}")
        dma(e, PP, SRD_WD, S_K0)
        tok['pre'] = dma(e, PP + 1, SRD_WD, S_K0, 1024)
        e(f"s_add_u32 {s(S_T3)}, {s(S_T3)}, {s(S_T1)}")
        e(f"s_lshl_b32 {s(S_T3)}, {s(S_T3)}, 10")
        e(f"s_add_u32 {s(S_T3)}, {s(S_T3)}, {WS_B2}")
        e(f"v_lshl_add_u32 {v(PP + 2)}, {v(T + 3)}, 2, {v(T + 7)}")
        e(f"v_lshlrev_b32 {v(PP + 2)}, 7, {v(PP + 2)}")
        e(f"v_lshl_add_u32 {v(PP + 2)}, {v(T + 9)}, 5, {v(PP + 2)}")
        e(f"v_and_b32 {v(PP + 3)}, 3, v0")
        e(f"v_lshl_add_u32 {v(PP + 2)}, {v(PP + 3)}, 3, {v(PP + 2)}")
        e(f"s_add_u32 {s(S_K1)}, {s(S_K1)}, {L_PRE}")
        e(f"v_add_u32 {v(PP + 2)}, {s(S_K1)}, {v(PP + 2)}")
    else:
        e(f"s_lshr_b32 {s(S_T0)}, {s(S_T3)}, 6")
        e(f"s_and_b32 {s(S_T1)}, {s(S_T3)}, 63")
        e(f"s_lshl_b32 {s(S_K0)}, {s(S_T0)}, 15")
        e(f"s_lshl_b32 {s(S_K1)}, {s(S_T1)}, 4")
        e(f"s_add_u32 {s(S_K0)}, {s(S_K0)}, {s(S_K1)}")
        e(f"v_lshlrev_b32 {v(PP)}, 10, {v(T + 4)}")
        e(f"v_add_u32 {v(PP)}, {s(S_K0)}, {v(PP)}")
        e("s_mov_b32 exec_hi, 0")
        e.vm(f"global_load_dwordx4 {v(PP + 4, 4)}, {v(PP)}, {s(P_CRE, 2)}")
        e("s_mov_b32 exec_lo, 0")
        e("s_mov_b32 exec_hi, -1")
        tok['pre'] = e.vm(f"global_load_dwordx4 {v(PP + 4, 4)}, {v(PP)}, {s(P_CIM, 2)}")
        e("s_mov_b64 exec, -1")
        e(f"s_mul_i32 {s(S_T3)}, {s(S_T0)}, {KS}")
        e(f"s_add_u32 {s(S_T3)}, {s(S_T3)}, {s(S_T1)}")
        e(f"s_lshl_b32 {s(S_T3)}, {s(S_T3)}, 10")
        e(f"s_add_u32 {s(S_T3)}, {s(S_T3)}, {WS_B2 + 112 * 1024}")

    utok = {}
    for u in range(4):
        utok[u] = k1_issue_unit(e, typ, half, u)

    k1_gate_and_params(e, tok)

    e.wait(vm=tok['pre'])
    if half == 0:
        for h2 in range(2):
            for rd in range(2):
                lt = e.lds(f"ds_read_b64_tr_b16 {v(PP + 4 + 4 * h2 + 2 * rd, 2)}, {v(PP + 2)} offset:{rd * 1024 + h2 * 64}")
        e.wait(lg=lt)
        lab = e.newlabel("pre_skip")
        e("s_cmp_ge_u32 s2, 224")
        e(f"s_cbranch_scc1 {lab}")
        e(f"buffer_store_dwordx4 {v(PP + 4, 4)}, {v(V_ST)}, {s(SRD_WS, 4)}, {s(S_T3)} offen")
        e(f"s_add_u32 {s(S_T3)}, {s(S_T3)}, {KS * 1024}")
        e(f"buffer_store_dwordx4 {v(PP + 8, 4)}, {v(V_ST)}, {s(SRD_WS, 4)}, {s(S_T3)} offen")
        e.label(lab)
    else:
        e.vm(f"buffer_store_dwordx4 {v(PP + 4, 4)}, {v(V_ST)}, {s(SRD_WS, 4)}, {s(S_T3)} offen")

    e.wait(vm=utok[0])
    e.wait_all_lg()
    if half == 0:
        lab = e.newlabel("flag_skip")
        e(f"s_cmp_lg_u32 {s(S_W)}, 0")
        e(f"s_cbranch_scc1 {lab}")
        e(f"s_lshl_b32 {s(S_T0)}, {s(S_COL)}, 4")
        e(f"s_add_u32 {s(S_T0)}, {s(S_T0)}, {s(S_I)}")
        e(f"v_mov_b32 {v(PP)}, {s(S_T0)}")
        e(f"v_mov_b32 {v(PP + 1)}, 1")
        e("s_mov_b64 exec, 1")
        e(f"global_store_byte {v(PP)}, {v(PP + 1)}, {s(P_DBG, 2)} sc1")
        e("s_mov_b64 exec, -1")
        e.label(lab)
    e("s_barrier")

    nA = len(tilesA)

    def readsA(S):
        st, u = S // 4, S % 4
        slot = st % 4
        buf = V_FR + 12 * (S % 2)
        lt = e.lds(f"ds_read_b128 {v(V_X + 4 * S, 4)}, {v(V_XA + u)} offset:{slot * 4096}")
        fi = 0
        for idx, (k, m) in enumerate(tilesA):
            d = buf + 4 * idx
            if k == 'S':
                rel = 0 if typ == 'X' else (m - stiles[0]) * REG
                lt = e.lds(f"ds_read_b128 {v(d, 4)}, {v(V_SA + u)} offset:{rel + slot * 4096}")
            else:
                for rd in range(2):
                    off = (u >> 1) * REG + slot * 4096 + (16 * (u & 1) + 4 * rd) * 128
                    lt = e.lds(f"ds_read_b64_tr_b16 {v(d + 2 * rd, 2)}, {v(V_TA + fi)} offset:{off}")
                fi += 1
        return lt

    def mfmasA(S):
        buf = V_FR + 12 * (S % 2)
        for idx, (k, m) in enumerate(tilesA):
            if k == 'S':
                mfma(e, ACC[idx], V_X + 4 * S, buf + 4 * idx, S == 0)
            else:
                mfma(e, ACC[idx], buf + 4 * idx, V_X + 4 * S, S == 0)

    def readsB(S):
        c, u = S // 8, S % 8
        buf = V_FR + 8 * (S % 2)
        for idx in range(2):
            for rd in range(2):
                off = (u >> 1) * REG + c * 4096 + (16 * (u & 1) + 4 * rd) * 128
                lt = e.lds(f"ds_read_b64_tr_b16 {v(buf + 4 * idx + 2 * rd, 2)}, {v(V_TB + idx)} offset:{off}")
        return lt

    def mfmasB(S):
        buf = V_FR + 8 * (S % 2)
        for idx in range(2):
            mfma(e, ACC[3 + idx], buf + 4 * idx, V_X + 4 * S, S == 0)

    cur = readsA(0)
    for S in range(32):
        st, u = S // 4, S % 4
        if u == 3:
            e.wait(vm=utok[st + 1], lg=cur)
            e("s_barrier")
            utok[st + 4] = k1_issue_unit(e, typ, half, st + 4)
            nxt = readsA(S + 1) if S < 31 else readsB(0)
            mfmasA(S)
        else:
            nxt = readsA(S + 1)
            e.wait(lg=cur)
            mfmasA(S)
        cur = nxt

    TMP = 40
    TS = 1
    SC = 10

    def job_pass1():
        e.nop(16)
        pa = SC + 10
        e(f"v_and_b32 {v(pa)}, 31, v0")
        e(f"v_lshlrev_b32 {v(pa)}, 5, {v(pa)}")
        e(f"v_add_u32 {v(pa)}, {L_PAR}, {v(pa)}")
        for j, m in enumerate(stiles):
            lt = e.lds(f"ds_read_b64 {v(TMP + 2 * j, 2)}, {v(pa)} offset:{m * 1024 + 8}")
        e.wait(lg=lt)
        ns = len(stiles)
        for j in range(ns):
            e(f"v_mov_b32 {v(SC + 2 * j)}, {v(ACC[j])}")
        for u in range(1, 16):
            src, dst = (u + 1) % 2, u % 2
            for j in range(ns):
                e(f"v_fma_f32 {v(SC + 2 * j + dst)}, {v(TMP + 2 * j)}, {v(SC + 2 * j + src)}, {v(ACC[j] + u)}")
            if ns == 1:
                e.nop(1)
            for j in range(ns):
                e(f"v_fmac_f32_dpp {v(SC + 2 * j + dst)}, {v(SC + 2 * j + src)}, {v(TMP + 2 * j + 1)} {DPP_X1}")
        e(f"v_lshlrev_b32 {v(TS)}, 2, v0")
        e(f"s_lshl_b32 {s(S_T0)}, {s(S_W)}, 8")
        e(f"s_add_u32 {s(S_T0)}, {s(S_T0)}, {L_SEX}")
        e(f"v_add_u32 {v(TS)}, {s(S_T0)}, {v(TS)}")
        for j, m in enumerate(stiles):
            e.lds(f"ds_write_b32 {v(TS)}, {v(SC + 2 * j + 1)} offset:{m * 1024}")

    def job_publish():
        pa = SC + 10
        e(f"v_and_b32 {v(TS + 1)}, 31, v0")
        e(f"v_lshlrev_b32 {v(TS + 1)}, 2, {v(TS + 1)}")
        e(f"v_add_u32 {v(TS + 1)}, {L_SEX}, {v(TS + 1)}")
        for j, m in enumerate(stiles):
            lab = e.newlabel("pub_skip")
            e(f"s_cmp_lg_u32 {s(S_W)}, {j}")
            e(f"s_cbranch_scc1 {lab}")
            e(f"ds_read_b64 {v(SC + 8, 2)}, {v(pa)} offset:{m * 1024 + 16}")
            for q in range(8):
                e(f"ds_read_b32 {v(TMP + q)}, {v(TS + 1)} offset:{m * 1024 + q * 128}")
            e("s_waitcnt lgkmcnt(0)")
            for q in range(1, 8):
                e(f"v_fmac_f32 {v(TMP + q)}, {v(SC + 8)}, {v(TMP + q - 1)}")
                e.nop(1)
                e(f"v_fmac_f32_dpp {v(TMP + q)}, {v(TMP + q - 1)}, {v(SC + 9)} {DPP_X1}")
            e(f"v_mov_b32 {v(SC)}, {v(TMP + 7)}")
            e(f"v_mov_b32 {v(SC + 1)}, 1")
            e(f"s_lshr_b32 {s(S_T0)}, {s(S_I)}, 1")
            e(f"s_lshl_b32 {s(S_T0)}, {s(S_T0)}, 9")
            e(f"s_and_b32 {s(S_T1)}, {s(S_I)}, 1")
            e(f"s_lshl_b32 {s(S_T1)}, {s(S_T1)}, 3")
            e(f"s_add_u32 {s(S_T0)}, {s(S_T0)}, {s(S_T1)}")
            e(f"s_add_u32 {s(S_T0)}, {s(S_T0)}, {s(S_AGG)}")
            e(f"s_add_u32 {s(S_T0)}, {s(S_T0)}, {m * 4096}")
            e("s_mov_b32 exec_hi, 0")
            e(f"buffer_store_dwordx2 {v(SC, 2)}, {v(V_ST)}, {s(SRD_WS, 4)}, {s(S_T0)} offen sc1")
            e("s_mov_b64 exec, -1")
            e.label(lab)
        e.lg_done = e.lg_done

    jobs = [[] for _ in range(4)]
    if stiles:
        jobs[0].append(job_pass1)
        jobs[1].append(job_publish)
    fidx = [(idx, m) for idx, (k, m) in enumerate(tilesA) if k == 'F']
    slots_for_f = [2] if stiles else [0, 1, 2]
    for (idx, m), sl in zip(fidx, slots_for_f):
        jobs[sl].append(lambda idx=idx, m=m: (e.nop(16) if True else None, ffn_epilogue(e, ACC[idx], TMP, S_A2A, m)))

    for c in range(4):
        if half == 0:
            for j in jobs[c]:
                j()
        for u in range(8):
            S = 8 * c + u
            if u == 7:
                if half == 1:
                    for j in jobs[c]:
                        j()
                if c < 3:
                    e.wait(vm=utok[9 + c])
                    e.wait_all_lg()
                    e("s_barrier")
                    nxt = readsB(S + 1)
                else:
                    e.wait(lg=cur)
                    nxt = None
                mfmasB(S)
            else:
                nxt = readsB(S + 1)
                e.wait(lg=cur)
                mfmasB(S)
            cur = nxt

    e.nop(16)
    ffn_epilogue(e, ACC[3], TMP, S_A2B, 2 * half)
    ffn_epilogue(e, ACC[4], TMP, S_A2B, 2 * half + 1)

    if stiles:
        GR = V_X
        CAR = 24
        pa = SC + 10
        for j in range(len(stiles)):
            e(f"v_mov_b32 {v(CAR + 2 * j)}, 0")
        ldone = e.newlabel("carry_done")
        e(f"s_cmp_eq_u32 {s(S_I)}, 0")
        e(f"s_cbranch_scc1 {ldone}")
        e(f"s_mov_b32 {s(S_SPIN)}, 0")
        e(f"s_lshl_b32 {s(S_T0)}, {s(S_COL)}, 4")
        e(f"v_and_b32 {v(TMP)}, 15, v0")
        e(f"v_add_u32 {v(TMP + 1)}, {s(S_T0)}, {v(TMP)}")
        e(f"v_cmp_gt_u32 {s(S_M0, 2)}, {s(S_I)}, {v(TMP)}")
        lp = e.newlabel("poll_flag")
        lpo = e.newlabel("poll_flag_ok")
        e.label(lp)
        e(f"global_load_ubyte {v(TMP + 2)}, {v(TMP + 1)}, {s(P_DBG, 2)} sc1")
        e("s_waitcnt vmcnt(0)")
        e(f"v_cmp_eq_u32 vcc, 0, {v(TMP + 2)}")
        e(f"s_and_b64 {s(S_M1, 2)}, vcc, {s(S_M0, 2)}")
        e(f"s_cbranch_scc0 {lpo}")
        e("s_sleep 2")
        e(f"s_add_u32 {s(S_SPIN)}, {s(S_SPIN)}, 1")
        e(f"s_cmp_lt_u32 {s(S_SPIN)}, 0x8000")
        e(f"s_cbranch_scc1 {lp}")
        e.label(lpo)
        for j, m in enumerate(stiles):
            e(f"ds_read_b64 {v(TMP + 2 * j, 2)}, {v(pa)} offset:{m * 1024 + 24}")
        e(f"v_and_b32 {v(TS + 2)}, 31, v0")
        e(f"v_lshlrev_b32 {v(TS + 2)}, 4, {v(TS + 2)}")
        e(f"s_mov_b32 {s(S_SPIN)}, 0")
        lg = e.newlabel("poll_gr")
        lgo = e.newlabel("poll_gr_ok")
        e.label(lg)
        for j, m in enumerate(stiles):
            e(f"s_add_u32 {s(S_T0)}, {s(S_AGG)}, {m * 4096}")
            for q in range(8):
                e(f"buffer_load_dwordx4 {v(GR + 32 * j + 4 * q, 4)}, {v(TS + 2)}, {s(SRD_WS, 4)}, {s(S_T0)} offen offset:{q * 512} sc1")
        e("s_waitcnt vmcnt(0) lgkmcnt(0)")
        e(f"s_mov_b64 {s(S_M1, 2)}, 0")
        lchk = e.newlabel("chk_done")
        for ip in range(15):
            for j in range(len(stiles)):
                e(f"v_cmp_ne_u32 vcc, 1, {v(GR + 32 * j + 2 * ip + 1)}")
                e(f"s_or_b64 {s(S_M1, 2)}, {s(S_M1, 2)}, vcc")
            if ip < 14:
                e(f"s_cmp_eq_u32 {s(S_I)}, {ip + 1}")
                e(f"s_cbranch_scc1 {lchk}")
        e.label(lchk)
        e(f"s_cmp_eq_u64 {s(S_M1, 2)}, 0")
        e(f"s_cbranch_scc1 {lgo}")
        e("s_sleep 2")
        e(f"s_add_u32 {s(S_SPIN)}, {s(S_SPIN)}, 1")
        e(f"s_cmp_lt_u32 {s(S_SPIN)}, 0x8000")
        e(f"s_cbranch_scc1 {lg}")
        e.label(lgo)
        for j in range(len(stiles)):
            e(f"v_mov_b32 {v(CAR + 2 * j)}, {v(GR + 32 * j)}")
        for ip in range(1, 15):
            e(f"s_cmp_eq_u32 {s(S_I)}, {ip}")
            e(f"s_cbranch_scc1 {ldone}")
            for j in range(len(stiles)):
                e(f"v_fmac_f32 {v(GR + 32 * j + 2 * ip)}, {v(TMP + 2 * j)}, {v(CAR + 2 * j)}")
            e.nop(1)
            for j in range(len(stiles)):
                e(f"v_fmac_f32_dpp {v(GR + 32 * j + 2 * ip)}, {v(CAR + 2 * j)}, {v(TMP + 2 * j + 1)} {DPP_X1}")
            for j in range(len(stiles)):
                e(f"v_mov_b32 {v(CAR + 2 * j)}, {v(GR + 32 * j + 2 * ip)}")
        e.label(ldone)
        e.vm_done = e.vm_done
        e(f"v_lshrrev_b32 {v(TS + 3)}, 5, v0")
        e(f"s_lshl_b32 {s(S_T0)}, {s(S_W)}, 1")
        e(f"v_add_u32 {v(TS + 3)}, {s(S_T0)}, {v(TS + 3)}")
        e(f"v_lshrrev_b32 {v(SC)}, 5, v0")
        e(f"v_mul_u32_u24 {v(SC)}, 320, {v(SC)}")
        e(f"v_bfe_u32 {v(SC + 1)}, v0, 4, 1")
        e(f"v_lshl_add_u32 {v(SC)}, {v(SC + 1)}, 5, {v(SC)}")
        e(f"v_and_b32 {v(SC + 1)}, 1, v0")
        e(f"v_lshl_add_u32 {v(SC)}, {v(SC + 1)}, 4, {v(SC)}")
        e(f"v_and_b32 {v(SC + 1)}, 14, v0")
        e(f"v_add_u32 {v(SC)}, {v(SC)}, {v(SC + 1)}")
        e(f"s_mul_i32 {s(S_T0)}, {s(S_WV)}, 2560")
        e(f"s_add_u32 {s(S_T0)}, {s(S_T0)}, {L_TR}")
        e(f"v_add_u32 {v(SC)}, {s(S_T0)}, {v(SC)}")
        e(f"v_and_b32 {v(SC + 1)}, 31, v0")
        e(f"v_mul_u32_u24 {v(SC + 1)}, 80, {v(SC + 1)}")
        e(f"v_lshrrev_b32 {v(SC + 2)}, 5, v0")
        e(f"v_lshl_add_u32 {v(SC + 1)}, {v(SC + 2)}, 4, {v(SC + 1)}")
        e(f"v_add_u32 {v(SC + 1)}, {s(S_T0)}, {v(SC + 1)}")
        PR = 32
        for j, m in enumerate(stiles):
            Z = ACC[j]
            e.lds(f"ds_read_b128 {v(PR, 4)}, {v(pa)} offset:{m * 1024}")
            e.lds(f"ds_read_b64 {v(PR + 4, 2)}, {v(pa)} offset:{m * 1024 + 16}")
            for q in range(7):
                lt = e.lds(f"ds_read_b32 {v(TMP + q)}, {v(TS + 1)} offset:{m * 1024 + q * 128}")
            e.wait(lg=lt)
            E = SC + 2
            e(f"v_mov_b32 {v(E)}, {v(CAR + 2 * j)}")
            prev = CAR + 2 * j
            for q in range(7):
                e(f"v_fmac_f32 {v(TMP + q)}, {v(PR + 4)}, {v(prev)}")
                e(f"v_cmp_eq_u32 vcc, {q + 1}, {v(TS + 3)}")
                e(f"v_fmac_f32_dpp {v(TMP + q)}, {v(prev)}, {v(PR + 5)} {DPP_X1}")
                e.nop(1)
                e(f"v_cndmask_b32 {v(E)}, {v(E)}, {v(TMP + q)}, vcc")
                prev = TMP + q
            O = GR
            prev = E
            e.nop(1)
            for u in range(16):
                e(f"v_fmac_f32 {v(Z + u)}, {v(PR + 2)}, {v(prev)}")
                if u >= 2:
                    e(f"v_mul_f32 {v(O + u - 2)}, {v(PR)}, {v(Z + u - 2)}")
                else:
                    e.nop(1)
                e(f"v_fmac_f32_dpp {v(Z + u)}, {v(prev)}, {v(PR + 3)} {DPP_X1}")
                if u >= 2:
                    e(f"v_fmac_f32_dpp {v(O + u - 2)}, {v(Z + u - 2)}, {v(PR + 1)} {DPP_X1}")
                prev = Z + u
            for u in (14, 15):
                e(f"v_mul_f32 {v(O + u)}, {v(PR)}, {v(Z + u)}")
            e.nop(1)
            for u in (14, 15):
                e(f"v_fmac_f32_dpp {v(O + u)}, {v(Z + u)}, {v(PR + 1)} {DPP_X1}")
            for p in range(8):
                e(f"v_cvt_pk_bf16_f32 {v(O + 16 + p)}, {v(O + 2 * p)}, {v(O + 2 * p + 1)}")
            for u in range(16):
                a, rr = u >> 2, u & 3
                off = (8 * a + rr) * 80
                op = "ds_write_b16" if u % 2 == 0 else "ds_write_b16_d16_hi"
                lt = e.lds(f"{op} {v(SC)}, {v(O + 16 + u // 2)} offset:{off}")
            e.wait(lg=lt)
            R = O + 24 + 8 * (j % 2)
            e.lds(f"ds_read_b128 {v(R, 4)}, {v(SC + 1)}")
            lt = e.lds(f"ds_read_b128 {v(R + 4, 4)}, {v(SC + 1)} offset:32")
            e.wait(lg=lt)
            e(f"s_add_u32 {s(S_T0)}, {s(S_A2S)}, {m * 2048}")
            e.vm(f"buffer_store_dwordx4 {v(R, 4)}, {v(V_ST)}, {s(SRD_WS, 4)}, {s(S_T0)} offen")
            e.vm(f"buffer_store_dwordx4 {v(R + 4, 4)}, {v(V_ST)}, {s(SRD_WS, 4)}, {s(S_T0)} offen offset:1024")
    e("s_endpgm")


def gen_k1():
    e = Path()
    tok = k1_prologue(e)
    e(f"s_cmp_eq_u32 {s(S_JJ)}, 3")
    e("s_cbranch_scc1 L1_Y")
    e(f"s_cmp_eq_u32 {s(S_HALF)}, 1")
    e("s_cbranch_scc1 L1_X1")
    out = [e]
    for typ, half, lab in (('X', 0, None), ('X', 1, 'L1_X1'), ('Y', 0, 'L1_Y'), ('Y', 1, 'L1_Y1')):
        p = e.fork()
        if lab:
            p.label(lab)
        if lab == 'L1_Y':
            p(f"s_cmp_eq_u32 {s(S_HALF)}, 1")
            p("s_cbranch_scc1 L1_Y1")
        k1_path(p, typ, half, dict(tok))
        out.append(p)
    z = Path()
    z.label("L1_exit")
    z("s_endpgm")
    out.append(z)
    return "".join(x.text() for x in out)


LDS2 = 8 * 64 * 272
ROLES = [(112, 21, 1), (133, 21, 1), (154, 22, 1), (0, 22, 0), (22, 23, 0), (45, 23, 0), (68, 22, 0), (90, 22, 0)]


def gen_k2():
    e = Path()
    WV, MT, NT, KS0, NS, SSM = 3, 4, 5, 6, 7, 8
    T0, T1, T2, T3 = 12, 13, 14, 15
    SA0, SA1, SB0, SB1, SX, SO = 52, 56, 60, 64, 68, 72
    SOFF = 76
    e("s_cmp_ge_u32 s2, 256")
    e("s_cbranch_scc1 L2_exit")
    e(f"s_load_dwordx2 {s(P_X, 2)}, s[0:1], 0")
    e(f"s_load_dwordx2 {s(P_DSK, 2)}, s[0:1], 64")
    e(f"s_load_dwordx2 {s(P_OUT, 2)}, s[0:1], 112")
    e(f"s_load_dwordx2 {s(P_WS, 2)}, s[0:1], 128")
    e("v_lshrrev_b32 v1, 6, v0")
    e("v_and_b32 v0, 63, v0")
    e(f"v_readfirstlane_b32 {s(WV)}, v1")
    e(f"s_and_b32 {s(T0)}, s2, 7")
    e(f"s_lshr_b32 {s(T1)}, s2, 3")
    e(f"s_lshr_b32 {s(MT)}, {s(T0)}, 1")
    e(f"s_lshl_b32 {s(MT)}, {s(MT)}, 3")
    e(f"s_lshr_b32 {s(T2)}, {s(T1)}, 2")
    e(f"s_add_u32 {s(MT)}, {s(MT)}, {s(T2)}")
    e(f"s_and_b32 {s(NT)}, {s(T0)}, 1")
    e(f"s_lshl_b32 {s(NT)}, {s(NT)}, 2")
    e(f"s_and_b32 {s(T2)}, {s(T1)}, 3")
    e(f"s_add_u32 {s(NT)}, {s(NT)}, {s(T2)}")
    e(f"s_mov_b32 {s(KS0)}, {ROLES[0][0]}")
    e(f"s_mov_b32 {s(NS)}, {ROLES[0][1]}")
    for w in range(1, 8):
        e(f"s_cmp_eq_u32 {s(WV)}, {w}")
        e(f"s_cselect_b32 {s(KS0)}, {ROLES[w][0]}, {s(KS0)}")
        e(f"s_cselect_b32 {s(NS)}, {ROLES[w][1]}, {s(NS)}")
    VL = 192
    LN = 232
    e(f"v_mov_b32 {v(LN)}, v0")
    e(f"v_lshlrev_b32 {v(VL)}, 4, v0")
    TA = 193
    e(f"v_and_b32 {v(TA)}, 3, v0")
    e(f"v_bfe_u32 {v(TA + 1)}, v0, 3, 2")
    e(f"v_lshl_add_u32 {v(TA)}, {v(TA + 1)}, 2, {v(TA)}")
    e(f"v_bfe_u32 {v(TA + 1)}, v0, 2, 1")
    e(f"v_lshl_add_u32 {v(TA)}, {v(TA + 1)}, 4, {v(TA)}")
    e(f"v_lshlrev_b32 {v(TA)}, 2, {v(TA)}")
    FR = 196
    e(f"s_and_b32 {s(T2)}, {s(WV)}, 3")
    e(f"s_lshl_b32 {s(T2)}, {s(T2)}, 2")
    e(f"s_lshr_b32 {s(T3)}, {s(WV)}, 2")
    e(f"s_lshl_b32 {s(T3)}, {s(T3)}, 5")
    e(f"s_add_u32 {s(T2)}, {s(T2)}, {s(T3)}")
    e(f"s_lshl_b32 {s(T3)}, {s(MT)}, 6")
    e(f"s_add_u32 {s(T2)}, {s(T2)}, {s(T3)}")
    e(f"v_lshrrev_b32 {v(FR)}, 4, v0")
    e(f"v_add_u32 {v(FR)}, {s(T2)}, {v(FR)}")
    e(f"v_and_b32 {v(FR + 1)}, 15, v0")
    e(f"s_lshl_b32 {s(T3)}, {s(NT)}, 6")
    e(f"v_lshl_add_u32 {v(FR + 1)}, {v(FR + 1)}, 2, {s(T3)}")
    e(f"v_lshlrev_b32 {v(FR + 2)}, 1, {v(FR + 1)}")
    e(f"v_lshl_add_u32 {v(FR + 3)}, {v(FR)}, 10, {v(FR + 2)}")
    e(f"v_lshlrev_b32 {v(FR + 4)}, 1, {v(FR + 3)}")
    e(f"v_lshlrev_b32 {v(FR + 5)}, 2, {v(FR)}")
    e("s_waitcnt lgkmcnt(0)")

    def srd_off(d, tile_s, mul, add, base):
        e(f"s_mul_i32 {s(T2)}, {s(tile_s)}, {mul * KS}")
        e(f"s_add_u32 {s(T2)}, {s(T2)}, {add * KS}")
        e(f"s_add_u32 {s(T2)}, {s(T2)}, {s(KS0)}")
        e(f"s_lshl_b32 {s(T2)}, {s(T2)}, 10")
        e(f"s_add_u32 {s(T2)}, {s(T2)}, {base}")
        e(f"s_add_u32 {s(d)}, {s(P_WS)}, {s(T2)}")
        e(f"s_addc_u32 {s(d + 1)}, {s(P_WS + 1)}, 0")
        e(f"s_and_b32 {s(d + 1)}, {s(d + 1)}, 0xffff")
        e(f"s_lshl_b32 {s(d + 2)}, {s(NS)}, 10")
        e(f"s_mov_b32 {s(d + 3)}, 0x00020000")
    srd_off(SA0, MT, 2, 0, WS_A2)
    srd_off(SA1, MT, 2, 1, WS_A2)
    srd_off(SB0, NT, 2, 0, WS_B2)
    srd_off(SB1, NT, 2, 1, WS_B2)
    srd(e, SX, P_X, 2048 * 1024)
    srd(e, SO, P_OUT, 2048 * 2048)
    e(f"s_add_u32 {s(T2)}, {s(P_WS)}, {WS_G}")
    e(f"s_addc_u32 {s(T3)}, {s(P_WS + 1)}, 0")
    GP = 14
    EP = 204
    e(f"s_lshl_b32 {s(T0)}, {s(MT)}, 8")
    e(f"v_add_u32 {v(TA)}, {s(T0)}, {v(TA)}")
    e.vm(f"global_load_dword {v(EP)}, {v(TA)}, {s(GP, 2)}")
    e.vm(f"global_load_dword {v(EP + 1)}, {v(TA)}, {s(GP, 2)} offset:128")
    e.vm(f"global_load_dword {v(EP + 2)}, {v(FR + 5)}, {s(GP, 2)}")
    e.vm(f"global_load_dword {v(EP + 3)}, {v(FR + 5)}, {s(GP, 2)} offset:64")
    e.vm(f"global_load_dwordx2 {v(EP + 4, 2)}, {v(FR + 2)}, {s(P_DSK, 2)}")
    e.vm(f"buffer_load_dwordx2 {v(EP + 6, 2)}, {v(FR + 3)}, {s(SX, 4)}, 0 offen")
    e(f"s_mov_b32 {s(T0)}, {16 * 1024}")
    e.vm(f"buffer_load_dwordx2 {v(EP + 8, 2)}, {v(FR + 3)}, {s(SX, 4)}, {s(T0)} offen")
    D = 8
    R0 = 64

    def loads(d, off):
        o = f" offset:{off}" if off else ""
        for k, sr in enumerate((SB0, SA0, SA1, SB1)):
            e.vm(f"buffer_load_dwordx4 {v(R0 + 16 * d + 4 * k, 4)}, {v(VL)}, {s(sr, 4)}, {s(SOFF)} offen{o}")
    e(f"s_mov_b32 {s(SOFF)}, 0")
    for d in range(D):
        if d == 4:
            e(f"s_mov_b32 {s(SOFF)}, 4096")
        loads(d, (d % 4) * 1024)
    for k in range(64):
        e(f"v_mov_b32 {v(k)}, 0")
    e(f"s_mov_b32 {s(SOFF)}, 8192")
    e.label("L2_loop")
    for d in range(D):
        b = R0 + 16 * d
        B0, A0, A1, B1 = b, b + 4, b + 8, b + 12
        e(f"s_waitcnt vmcnt({4 * D - 2})")
        mfma(e, 0, B0, A0, False)
        e(f"s_waitcnt vmcnt({4 * D - 3})")
        mfma(e, 32, B0, A1, False)
        e(f"s_waitcnt vmcnt({4 * D - 4})")
        mfma(e, 16, B1, A0, False)
        mfma(e, 48, B1, A1, False)
        e(f"s_sub_u32 {s(NS)}, {s(NS)}, 1")
        e(f"s_cmp_eq_u32 {s(NS)}, 0")
        e("s_cbranch_scc1 L2_done")
        loads(d, (d % 4) * 1024)
        if d % 4 == 3:
            e(f"s_add_u32 {s(SOFF)}, {s(SOFF)}, 4096")
    e("s_branch L2_loop")
    e.label("L2_done")
    for k in range(2):
        e(f"v_sub_f32 {v(EP + 10 + k)}, 1.0, {v(EP + k)}")
        e(f"v_cvt_pk_bf16_f32 {v(EP + 10 + k)}, {v(EP + 10 + k)}, {v(EP + 10 + k)}")
        e(f"v_lshlrev_b32 {v(EP + 10 + k)}, 16, {v(EP + 10 + k)}")
    e(f"s_cmp_lt_u32 {s(WV)}, 3")
    e(f"s_cselect_b64 vcc, -1, 0")
    e.nop(2)
    for k in range(2):
        e(f"v_cndmask_b32 {v(EP + k)}, {v(EP + 10 + k)}, {v(EP + k)}, vcc")
    WA = EP + 12
    e(f"v_and_b32 {v(WA)}, 31, {v(LN)}")
    e(f"v_mul_u32_u24 {v(WA)}, 272, {v(WA)}")
    e(f"v_lshrrev_b32 {v(WA + 1)}, 5, {v(LN)}")
    e(f"v_lshl_add_u32 {v(WA)}, {v(WA + 1)}, 4, {v(WA)}")
    e(f"s_mul_i32 {s(T0)}, {s(WV)}, {64 * 272}")
    e(f"v_add_u32 {v(WA)}, {s(T0)}, {v(WA)}")
    e.nop(8)
    for mi in range(2):
        for ni in range(2):
            A = 32 * mi + 16 * ni
            for k in range(16):
                e(f"v_mul_f32 {v(A + k)}, {v(EP + mi)}, {v(A + k)}")
            for a in range(4):
                e.lds(f"ds_write_b128 {v(WA)}, {v(A + 4 * a, 4)} offset:{mi * 32 * 272 + ni * 128 + a * 32}")
    e(f"v_lshrrev_b32 {v(WA + 1)}, 4, {v(LN)}")
    e(f"v_mul_u32_u24 {v(WA + 1)}, 272, {v(WA + 1)}")
    e(f"v_and_b32 {v(WA + 2)}, 15, {v(LN)}")
    e(f"v_lshl_add_u32 {v(WA + 1)}, {v(WA + 2)}, 4, {v(WA + 1)}")
    e(f"s_mul_i32 {s(T0)}, {s(WV)}, {8 * 272}")
    e(f"v_add_u32 {v(WA + 1)}, {s(T0)}, {v(WA + 1)}")
    e(f"v_add_u32 {v(WA + 2)}, {4 * 64 * 272}, {v(WA + 1)}")
    SK = EP + 16
    DS = EP + 24
    for k in range(2):
        e(f"v_lshlrev_b32 {v(DS + 2 * k)}, 16, {v(EP + 4 + k)}")
        e(f"v_and_b32 {v(DS + 2 * k + 1)}, 0xffff0000, {v(EP + 4 + k)}")
    for p in range(2):
        for k in range(2):
            e(f"v_lshlrev_b32 {v(SK + 4 * p + 2 * k)}, 16, {v(EP + 6 + 2 * p + k)}")
            e(f"v_and_b32 {v(SK + 4 * p + 2 * k + 1)}, 0xffff0000, {v(EP + 6 + 2 * p + k)}")
        for k in range(4):
            e(f"v_mul_f32 {v(SK + 4 * p + k)}, {v(SK + 4 * p + k)}, {v(DS + k)}")
        for k in range(2):
            e(f"v_cvt_pk_bf16_f32 {v(WA + 3)}, {v(SK + 4 * p + 2 * k)}, {v(SK + 4 * p + 2 * k + 1)}")
            e(f"v_lshlrev_b32 {v(SK + 4 * p + 2 * k)}, 16, {v(WA + 3)}")
            e(f"v_and_b32 {v(SK + 4 * p + 2 * k + 1)}, 0xffff0000, {v(WA + 3)}")
        for k in range(4):
            e(f"v_mul_f32 {v(SK + 4 * p + k)}, {v(SK + 4 * p + k)}, {v(EP + 2 + p)}")
    e.wait_all_lg()
    e("s_barrier")
    toks = []
    for q in range(8):
        for p in range(2):
            ar = WA + 1 if q < 4 else WA + 2
            toks.append(e.lds(f"ds_read_b128 {v(8 * q + 4 * p, 4)}, {v(ar)} offset:{(q % 4) * 64 * 272 + p * 4 * 272}"))
    for q in range(8):
        e.wait(lg=toks[2 * q + 1])
        for k in range(8):
            e(f"v_add_f32 {v(SK + k)}, {v(SK + k)}, {v(8 * q + k)}")
    e.vm(f"buffer_store_dwordx4 {v(SK, 4)}, {v(FR + 4)}, {s(SO, 4)}, 0 offen")
    e(f"s_mov_b32 {s(T0)}, {16 * 2048}")
    e.vm(f"buffer_store_dwordx4 {v(SK + 4, 4)}, {v(FR + 4)}, {s(SO, 4)}, {s(T0)} offen")
    e.label("L2_exit")
    e("s_endpgm")
    return e.text()


HEADER = open(os.path.join(os.path.dirname(os.path.abspath(__file__)), "..", "cdna_kernels", NAME + ".s.ref")).read()


def kd(name, vg, sg):
    return f""".p2align 6
.amdhsa_kernel {name}
  .amdhsa_next_free_vgpr {vg}
  .amdhsa_next_free_sgpr {sg}
  .amdhsa_accum_offset {((vg + 3) // 4) * 4}
  .amdhsa_group_segment_fixed_size 0
  .amdhsa_kernarg_size 136
  .amdhsa_user_sgpr_count 2
  .amdhsa_user_sgpr_kernarg_segment_ptr 1
  .amdhsa_system_sgpr_workgroup_id_x 1
  .amdhsa_float_denorm_mode_32 3
  .amdhsa_float_denorm_mode_16_64 3
.end_amdhsa_kernel
"""


def main():
    hdr = []
    for line in HEADER.splitlines():
        if line.startswith(";") and "@launch" not in line and "Override launch" not in line and "grid=ceil" not in line:
            hdr.append(line)
        elif not line.startswith(";"):
            break
    out = "\n".join(hdr) + "\n"
    out += f"; @launch kernel=phase1_kernel grid=(256,1,1) block=(512,1,1) lds={LDS1}\n"
    out += f"; @launch kernel=phase2_kernel grid=(256,1,1) block=(512,1,1) lds={LDS2}\n"
    out += '.amdgcn_target "amdgcn-amd-amdhsa--gfx950"\n.text\n'
    for name, body in (("phase1_kernel", gen_k1()), ("phase2_kernel", gen_k2())):
        out += f".globl {name}\n.p2align 8\n.type {name},@function\n{name}:\n" + body
    out += '.section .rodata,"a"\n'
    out += kd("phase1_kernel", 256, 102)
    out += kd("phase2_kernel", 256, 102)
    dst = sys.argv[1] if len(sys.argv) > 1 else os.path.join(os.path.dirname(os.path.abspath(__file__)), "..", "cdna_kernels", NAME + ".s")
    open(dst, "w").write(out)
    print("wrote", dst, len(out), "bytes")


if __name__ == "__main__":
    main()
```

```python
import sys, os
sys.path.insert(0, os.path.dirname(os.path.abspath(__file__)))
from asmlib import Emit, v, s

NAME = "gated_mix__ssm_conv_s5__swiglu_ffn__prompt"
STAMPS = os.environ.get("STAMPS", "0") == "1"
NTIN = " nt" if os.environ.get("NTIN", "0") == "1" else ""
S_TOUCH = int(os.environ.get("S_TOUCH", "-1"))
S_BSTART = int(os.environ.get("S_BSTART", "40"))
BRATE = int(os.environ.get("BRATE", "2"))
LDP = os.environ.get("LDP", " sc1")
STP = os.environ.get("STP", " sc1")
ROTMASK = int(os.environ.get("ROTMASK", "7"))
ROT2MASK = int(os.environ.get("ROT2MASK", "0"))
FINE = os.environ.get("FINE", "0") == "1"
NT0 = int(os.environ.get("NT0", "0"))
TSCHED = [int(x) for x in os.environ.get("TSCHED", "0,4,8,12").split(",")]
TAILB = int(os.environ.get("TAILB", "1000"))
JR0 = int(os.environ.get("JR0", "4"))
JR1 = int(os.environ.get("JR1", "3"))

KS = 176
WS_A2 = 0
A2_BYTES = 64 * KS * 1024
WS_B2 = WS_A2 + A2_BYTES
B2_BYTES = 16 * KS * 1024
WS_G = WS_B2 + B2_BYTES
WS_AGG = WS_G + 8192
AGG_BYTES = 32 * 8192
WS_DONE = WS_AGG + AGG_BYTES
WS_EF = WS_DONE + 32768
WS_END = WS_EF + 8192
WS_STAMP = 24 << 20

REG = 16384
L_SEX = 131072
L_PRE = 147456
L_PAR = 156672
L_MISC = 161792
LDS_BYTES = 163840
PITCH2 = 272

LOG2E = 0x3FB8AA3B
NLOG2E = 0xBFB8AA3B
INV2PI = 0x3E22F983

S_WV, S_W, S_HALF, S_I, S_CQ, S_JJ, S_UA, S_UB, S_ST0 = 3, 4, 5, 6, 7, 8, 9, 10, 11
S_T0, S_T1, S_T2, S_T3 = 12, 13, 14, 15
P_X, P_LRE, P_LIM, P_BRE, P_BIM, P_CRE, P_CIM, P_LDT = 16, 18, 20, 22, 24, 26, 28, 30
P_DSK, P_BX, P_WG, P_WU, P_WD, P_GW, P_OUT, P_DBG = 32, 34, 36, 38, 40, 42, 44, 46
P_WS = 48
S_MT, S_NT = 50, 51
SRD_X, SRD_S, SRD_G, SRD_U, SRD_WS, SRD_WD = 52, 56, 60, 64, 68, 72
S_K0, S_K1 = 76, 77
S_LB0, S_LB1, S_LB2 = 78, 79, 80
S_NL2E = 81
S_A2A, S_A2B, S_A2S = 82, 83, 84
S_COL = 85
S_SPIN = 86
S_GOFF = 87
S_M0, S_M1 = 88, 90
S_AGG = 92
S_PUB = 93
S_PRE = 94
S_B0, S_B1, S_A0, S_A1 = 95, 34, 35, 75
S_ROT = 1
S_ROT2 = 0
S_NS = 19
S_TP = 90
S_TS = 89
S_EPOCH = 18

V_DA = 1
V_DB = 6
V_XA = 10
V_SA = 14
V_TA = 18
V_TB = 21
V_ST = 23
V_FR = 24
ACC = [48, 64, 80, 96, 112]
V_X = 128

DPP_X1 = "quad_perm:[1,0,3,2] row_mask:0xf bank_mask:0xf"
DPP_X2 = "quad_perm:[2,3,0,1] row_mask:0xf bank_mask:0xf"

ROLES = [(112, 24), (136, 20), (156, 20), (0, 24), (24, 20), (44, 24), (68, 24), (92, 20)]
NSMAX = 24
AHEAD = int(os.environ.get("AHEAD", "1"))


def vorder():
    order = [(g, 0) for g in range(AHEAD)]
    for g in range(5):
        order += [(g, d) for d in (1, 2, 3)]
        if g + AHEAD < 5:
            order.append((g + AHEAD, 0))
    order += [(5, d) for d in range(4)]
    assert sorted(order) == [(g, d) for g in range(6) for d in range(4)]
    return order


VORD = vorder()
NBPRE = 16


class Path(Emit):
    cnt = 0

    def newlabel(self, base):
        Path.cnt += 1
        return f"L_{base}_{Path.cnt}"

    def fork(self):
        e = Path()
        e.vm_seq, e.vm_done, e.lg_seq, e.lg_done = self.vm_seq, self.vm_done, self.lg_seq, self.lg_done
        return e


class Sched:
    def __init__(self):
        self.q = []

    def add(self, gen):
        self.q.append(gen)

    def pump(self, n):
        while n > 0 and self.q:
            try:
                next(self.q[0])
                n -= 1
            except StopIteration:
                self.q.pop(0)

    def drain(self):
        self.pump(1 << 30)

    def empty(self):
        return not self.q


def srd(e, d, ptr, nbytes):
    e(f"s_mov_b32 {s(d)}, {s(ptr)}")
    e(f"s_and_b32 {s(d + 1)}, {s(ptr + 1)}, 0xffff")
    e(f"s_mov_b32 {s(d + 2)}, {nbytes}")
    e(f"s_mov_b32 {s(d + 3)}, 0x00020000")


def stamp(e, vr, idx, real=False):
    if not STAMPS:
        return
    e(f"{'s_memrealtime' if real else 's_memtime'} s[96:97]")
    e("s_waitcnt lgkmcnt(0)")
    e(f"v_writelane_b32 {v(vr)}, s96, {idx}")


def mfma(e, d, a, b, first):
    c = "0" if first else v(d, 16)
    e(f"v_mfma_f32_32x32x16_bf16 {v(d, 16)}, {v(a, 4)}, {v(b, 4)}, {c}")


def dma(e, voff, srd_, soff, off=0):
    o = f" offset:{off}" if off else ""
    return e.vm(f"buffer_load_dwordx4 {v(voff)}, {s(srd_, 4)}, {s(soff)} offen{o}{NTIN} lds")


def lam_params(e, LRE, LIM, LD, T):
    e(f"v_lshlrev_b32 {v(LRE)}, 16, {v(LRE)}"); yield
    e(f"v_lshlrev_b32 {v(LIM)}, 16, {v(LIM)}"); yield
    e(f"v_lshlrev_b32 {v(LD)}, 16, {v(LD)}"); yield
    e(f"v_mul_f32 {v(LD)}, {LOG2E:#x}, {v(LD)}"); yield
    e(f"v_exp_f32 {v(LD)}, {v(LD)}"); yield
    e(f"v_mul_f32 {v(T + 5)}, {v(LRE)}, {v(LRE)}"); yield
    e(f"v_cvt_pk_bf16_f32 {v(LD)}, {v(LD)}, {v(LD)}"); yield
    e(f"v_lshlrev_b32 {v(LD)}, 16, {v(LD)}"); yield
    e(f"v_mul_f32 {v(T)}, {v(LD)}, {v(LRE)}"); yield
    e(f"v_mul_f32 {v(T + 1)}, {v(LD)}, {v(LIM)}"); yield
    e(f"v_mul_f32 {v(T)}, {LOG2E:#x}, {v(T)}"); yield
    e(f"v_exp_f32 {v(T)}, {v(T)}"); yield
    e(f"v_mul_f32 {v(T + 1)}, {INV2PI:#x}, {v(T + 1)}"); yield
    e(f"v_rndne_f32 {v(T + 2)}, {v(T + 1)}"); yield
    e(f"v_sub_f32 {v(T + 1)}, {v(T + 1)}, {v(T + 2)}"); yield
    e(f"v_cos_f32 {v(T + 2)}, {v(T + 1)}"); yield
    e(f"v_sin_f32 {v(T + 3)}, {v(T + 1)}"); yield
    e(f"v_fmac_f32 {v(T + 5)}, {v(LIM)}, {v(LIM)}"); yield
    e(f"v_mul_f32 {v(T + 2)}, {v(T)}, {v(T + 2)}"); yield
    e(f"v_mul_f32 {v(T + 3)}, {v(T)}, {v(T + 3)}"); yield
    e(f"v_rcp_f32 {v(T + 5)}, {v(T + 5)}"); yield
    e(f"v_add_f32 {v(T + 4)}, -1.0, {v(T + 2)}"); yield
    e(f"v_mul_f32 {v(T + 6)}, {v(T + 4)}, {v(LRE)}"); yield
    e(f"v_fmac_f32 {v(T + 6)}, {v(T + 3)}, {v(LIM)}"); yield
    e(f"v_mul_f32 {v(T + 7)}, {v(T + 3)}, {v(LRE)}"); yield
    e(f"v_fma_f32 {v(T + 7)}, -{v(T + 4)}, {v(LIM)}, {v(T + 7)}"); yield
    e(f"v_add_f32 {v(T + 5)}, {v(T + 5)}, {v(T + 5)}"); yield
    e(f"v_mul_f32 {v(T + 6)}, {v(T + 6)}, {v(T + 5)}"); yield
    e(f"v_mul_f32 {v(T + 7)}, {v(T + 7)}, {v(T + 5)}"); yield


def prologue_common(e):
    e("s_cmp_ge_u32 s2, 256")
    e("s_cbranch_scc1 L_exit")
    if STAMPS:
        e("s_memtime s[98:99]")
        e("s_memrealtime s[100:101]")
    e(f"s_load_dwordx16 {s(16, 16)}, s[0:1], 0")
    e(f"s_load_dwordx16 {s(32, 16)}, s[0:1], 64")
    e(f"s_load_dwordx2 {s(48, 2)}, s[0:1], 128")
    e("v_lshrrev_b32 v1, 6, v0")
    e("v_and_b32 v0, 63, v0")
    e(f"v_readfirstlane_b32 {s(S_WV)}, v1")
    e(f"s_and_b32 {s(S_T0)}, s2, 7")
    e(f"s_lshr_b32 {s(S_T1)}, s2, 3")
    e(f"s_lshr_b32 {s(S_CQ)}, {s(S_T0)}, 1")
    e(f"s_and_b32 {s(S_T2)}, {s(S_T0)}, 1")
    e(f"s_lshl_b32 {s(S_T3)}, {s(S_T2)}, 3")
    e(f"s_and_b32 {s(S_I)}, {s(S_T1)}, 7")
    e(f"s_add_u32 {s(S_I)}, {s(S_I)}, {s(S_T3)}")
    e(f"s_lshr_b32 {s(S_JJ)}, {s(S_T1)}, 3")
    e(f"s_and_b32 {s(S_W)}, {s(S_WV)}, 3")
    e(f"s_lshr_b32 {s(S_HALF)}, {s(S_WV)}, 2")
    e(f"s_lshl_b32 {s(S_MT)}, {s(S_CQ)}, 3")
    e(f"s_lshr_b32 {s(S_T3)}, {s(S_T1)}, 2")
    e(f"s_add_u32 {s(S_MT)}, {s(S_MT)}, {s(S_T3)}")
    e(f"s_lshl_b32 {s(S_NT)}, {s(S_T2)}, 2")
    e(f"s_and_b32 {s(S_T3)}, {s(S_T1)}, 3")
    e(f"s_add_u32 {s(S_NT)}, {s(S_NT)}, {s(S_T3)}")
    e(f"s_mul_i32 {s(S_UA)}, {s(S_CQ)}, 7")
    e(f"s_lshl_b32 {s(S_T2)}, {s(S_JJ)}, 1")
    e(f"s_add_u32 {s(S_UA)}, {s(S_UA)}, {s(S_T2)}")
    e(f"s_add_u32 {s(S_UB)}, {s(S_UA)}, 1")
    e(f"s_cmp_eq_u32 {s(S_JJ)}, 3")
    e(f"s_cselect_b32 {s(S_UB)}, {s(S_UA)}, {s(S_UB)}")
    e(f"s_lshl_b32 {s(S_ST0)}, {s(S_CQ)}, 3")
    e(f"s_add_u32 {s(S_ST0)}, {s(S_ST0)}, {s(S_JJ)}")
    e(f"s_lshl_b32 {s(S_COL)}, {s(S_CQ)}, 2")
    e(f"s_add_u32 {s(S_COL)}, {s(S_COL)}, {s(S_JJ)}")
    e(f"s_lshl_b32 {s(S_PRE)}, {s(S_T0)}, 5")
    e(f"s_add_u32 {s(S_PRE)}, {s(S_PRE)}, {s(S_T1)}")
    e(f"s_lshl_b32 {s(S_PRE)}, {s(S_PRE)}, 2")
    e(f"s_add_u32 {s(S_PRE)}, {s(S_PRE)}, {s(S_W)}")
    T = 96
    e(f"v_lshrrev_b32 {v(T)}, 3, v0")
    e(f"v_and_b32 {v(T + 1)}, 7, v0")
    e(f"v_lshrrev_b32 {v(T + 2)}, 4, v0")
    e(f"v_lshrrev_b32 {v(T + 3)}, 5, v0")
    e(f"v_and_b32 {v(T + 4)}, 31, v0")
    e(f"v_and_b32 {v(T + 5)}, 1, {v(T + 2)}")
    e(f"v_lshlrev_b32 {v(T + 5)}, 1, {v(T + 5)}")
    e(f"v_xor_b32 {v(T + 5)}, {v(T + 5)}, {v(T + 1)}")
    e(f"v_lshlrev_b32 {v(T + 5)}, 4, {v(T + 5)}")
    e(f"v_mul_u32_u24 {v(T + 6)}, 3584, {v(T)}")
    e(f"v_add_u32 {v(T + 5)}, {v(T + 5)}, {v(T + 6)}")
    e(f"v_lshlrev_b32 {v(V_ST)}, 4, v0")


def krot(e, dst, add, mul):
    e(f"s_add_u32 {s(dst)}, {s(S_ROT)}, {add}")
    e(f"s_and_b32 {s(dst)}, {s(dst)}, 7")
    e(f"s_mul_i32 {s(dst)}, {s(dst)}, {mul}")


def rot_off(e, dst, j, base):
    g, d = VORD[j]
    e(f"s_add_u32 {s(dst)}, {s(S_ROT2)}, {d}")
    e(f"s_and_b32 {s(dst)}, {s(dst)}, 3")
    e(f"s_lshl_b32 {s(dst)}, {s(dst)}, 10")
    e(f"s_add_u32 {s(dst)}, {s(dst)}, {s(base)}")
    if g:
        e(f"s_add_u32 {s(dst)}, {s(dst)}, {g * 4096}")
    if g == 5:
        e(f"s_cmp_le_u32 {s(S_NS)}, 20")
        e(f"s_cselect_b32 {s(dst)}, {WS_END}, {s(dst)}")


def unit_gen(e, typ, half, unit, utok):
    slot = unit % 4
    if unit >= 8:
        c = unit - 8
        e(f"s_add_u32 m0, {s(S_LB2)}, {slot * 4096}")
        krot(e, S_K1, 2 * c + half, 64 * 3584)
        dma(e, V_DB, SRD_G, S_K1); yield
        dma(e, V_DB + 1, SRD_G, S_K1, 1024); yield
        e(f"s_add_u32 m0, {s(S_LB2)}, {4 * REG + slot * 4096}")
        e("s_nop 0")
        dma(e, V_DB + 2, SRD_U, S_K1); yield
        utok[unit] = dma(e, V_DB + 3, SRD_U, S_K1, 1024); yield
        return
    if half == 1:
        e(f"s_add_u32 m0, {s(S_LB0)}, {slot * 4096}")
        krot(e, S_K0, unit, 128)
        for q in range(4):
            utok[unit] = dma(e, V_DA + q, SRD_X, S_K0, 1024 * q); yield
        return
    if typ == 'X':
        e(f"s_add_u32 m0, {s(S_LB0)}, {8 * REG + slot * 4096}")
        krot(e, S_K0, unit, 128)
        dma(e, V_DA, SRD_S, S_K0); yield
        e(f"s_add_u32 m0, {s(S_LB1)}, {4 * REG + slot * 4096}")
        e(f"s_mul_i32 {s(S_K1)}, {s(S_K0)}, {64 * 3584 // 128}")
        dma(e, V_DA + 1, SRD_G, S_K1); yield
        dma(e, V_DA + 2, SRD_G, S_K1, 1024); yield
        e(f"s_add_u32 m0, {s(S_LB1)}, {6 * REG + slot * 4096}")
        e("s_nop 0")
        dma(e, V_DA + 3, SRD_U, S_K1); yield
        utok[unit] = dma(e, V_DA + 4, SRD_U, S_K1, 1024); yield
        return
    for m in range(5):
        e(f"s_add_u32 m0, {s(S_LB0)}, {(4 + m) * REG + slot * 4096}")
        if m == 0:
            krot(e, S_K0, unit, 128)
        else:
            e(f"s_add_u32 {s(S_K0)}, {s(S_K0)}, 16384")
        utok[unit] = dma(e, V_DA, SRD_S, S_K0); yield


def run(gen):
    for _ in gen:
        pass


def ffn_epilogue(e, A, T, sbase, t):
    G, U = A, A + 8
    for k in range(8):
        e(f"v_mul_f32 {v(T + k)}, {s(S_NL2E)}, {v(G + k)}"); yield
    for k in range(8):
        e(f"v_exp_f32 {v(T + k)}, {v(T + k)}"); yield
        e(f"v_mul_f32 {v(U + k)}, {v(G + k)}, {v(U + k)}"); yield
    for k in range(8):
        e(f"v_add_f32 {v(T + k)}, 1.0, {v(T + k)}"); yield
    for k in range(8):
        e(f"v_rcp_f32 {v(T + k)}, {v(T + k)}"); yield
        if k >= 2:
            e(f"v_mul_f32 {v(U + k - 2)}, {v(U + k - 2)}, {v(T + k - 2)}"); yield
    e(f"v_mul_f32 {v(U + 6)}, {v(U + 6)}, {v(T + 6)}"); yield
    e(f"v_mul_f32 {v(U + 7)}, {v(U + 7)}, {v(T + 7)}"); yield
    for p in range(4):
        e(f"v_cvt_pk_bf16_f32 {v(G + p)}, {v(U + 2 * p)}, {v(U + 2 * p + 1)}"); yield
    o = f" offset:{1024 * t}" if t else ""
    e.last_store = e.vm(f"buffer_store_dwordx4 {v(G, 4)}, {v(V_ST)}, {s(SRD_WS, 4)}, {s(sbase)} offen{o}{STP}"); yield


def path(e, typ, half):
    T = 96
    SV = 95 if half == 0 else 5
    if STAMPS:
        e(f"v_mov_b32 {v(SV)}, 0")
    if half == 1:
        e("s_setprio 1")
    G = 224
    PP = 236
    GX = PP + 13 if half == 0 else PP + 1
    tok = {}
    e(f"s_lshl_b32 {s(S_T0)}, {s(S_I)}, 7")
    e(f"s_lshl_b32 {s(S_T1)}, {s(S_COL)}, 3")
    e(f"s_add_u32 {s(S_T0)}, {s(S_T0)}, {s(S_T1)}")
    e(f"s_add_u32 {s(S_T0)}, {s(S_T0)}, {s(S_WV)}")
    e(f"s_lshl_b32 {s(S_T1)}, {s(S_T0)}, 10")
    e(f"s_lshl_b32 {s(S_GOFF)}, {s(S_T0)}, 2")
    e(f"s_add_u32 {s(S_GOFF)}, {s(S_GOFF)}, {WS_G}")
    e(f"v_add_u32 {v(GX)}, {s(S_T1)}, {v(V_ST)}")
    ntile_wg = 1 if typ == 'X' else 5
    own0 = 0 if half == 0 else 2
    e(f"s_add_u32 {s(S_AGG)}, {s(S_ST0)}, {s(S_W)}")
    e(f"s_lshl_b32 {s(S_AGG)}, {s(S_AGG)}, 13")
    e(f"s_add_u32 {s(S_AGG)}, {s(S_AGG)}, {WS_AGG + own0 * 8192}")
    e(f"s_lshl_b32 {s(S_T0)}, {s(S_I)}, 8")
    e(f"s_add_u32 {s(S_PUB)}, {s(S_T0)}, {s(S_AGG)}")
    TO = 216
    e(f"s_and_b32 {s(S_T2)}, {s(S_I)}, 7")
    if half == 1:
        e(f"s_lshl_b32 {s(S_T0)}, {s(S_I)}, 17")
        e(f"s_lshl_b32 {s(S_T1)}, {s(S_JJ)}, 15")
        e(f"s_add_u32 {s(S_T0)}, {s(S_T0)}, {s(S_T1)}")
        e(f"s_lshl_b32 {s(S_T1)}, {s(S_W)}, 13")
        e(f"s_add_u32 {s(S_T0)}, {s(S_T0)}, {s(S_T1)}")
        e(f"v_bfe_u32 {v(TO)}, v0, 3, 1")
        e(f"v_lshlrev_b32 {v(TO)}, 7, {v(TO)}")
        e(f"v_lshl_add_u32 {v(TO)}, {v(T + 1)}, 10, {v(TO)}")
        e(f"v_add_u32 {v(TO)}, {s(S_T0)}, {v(TO)}")
        e(f"s_mov_b32 {s(S_TS)}, 256")
    else:
        e(f"v_and_b32 {v(TO + 1)}, 15, v0")
        e(f"v_lshl_add_u32 {v(TO + 1)}, {v(TO + 1)}, 3, {s(S_T2)}")
        e(f"v_mul_u32_u24 {v(TO + 1)}, 3584, {v(TO + 1)}")
        if typ == 'X':
            e(f"v_and_b32 {v(TO)}, 1, v0")
            e(f"v_lshl_add_u32 {v(TO)}, {s(S_T2)}, 1, {v(TO)}")
        else:
            e(f"v_min_u32 {v(TO)}, 4, {v(T + 1)}")
            e(f"s_mul_i32 {s(S_T0)}, {s(S_T2)}, 10")
            e(f"s_and_b32 {s(S_T1)}, {s(S_W)}, 1")
            e(f"s_mul_i32 {s(S_T1)}, {s(S_T1)}, 5")
            e(f"s_add_u32 {s(S_T0)}, {s(S_T0)}, {s(S_T1)}")
            e(f"v_add_u32 {v(TO)}, {s(S_T0)}, {v(TO)}")
        e(f"v_lshlrev_b32 {v(TO)}, 10, {v(TO)}")
        e(f"v_bfe_u32 {v(TO + 2)}, v0, {1 if typ == 'X' else 3}, 1")
        e(f"v_lshl_add_u32 {v(TO)}, {v(TO + 2)}, 7, {v(TO)}")
        e(f"s_lshl_b32 {s(S_T0)}, {s(S_ST0)}, 14")
        e(f"v_add_u32 {v(TO)}, {s(S_T0)}, {v(TO)}")
        e(f"s_mov_b32 {s(S_TS)}, 256")
        if typ == 'X':
            e(f"s_lshl_b32 {s(S_T0)}, {s(S_UA)}, 7")
            e(f"v_add_u32 {v(TO + 2)}, {s(S_T0)}, {v(TO + 1)}")
            e(f"s_cmp_lt_u32 {s(S_W)}, 2")
            e(f"s_cselect_b64 vcc, -1, 0")
            e(f"s_cselect_b32 {s(S_TS)}, {128 * 3584}, {s(S_TS)}")
            e(f"v_cndmask_b32 {v(TO)}, {v(TO)}, {v(TO + 2)}, vcc")
        e(f"s_lshr_b32 {s(S_T0)}, {s(S_W)}, 1")
        e(f"s_mul_i32 {s(S_T0)}, {s(S_T0)}, {128 * 3584}")
        e(f"s_lshl_b32 {s(S_T1)}, {s(S_UB)}, 7")
        e(f"s_add_u32 {s(S_T0)}, {s(S_T0)}, {s(S_T1)}")
        e(f"v_add_u32 {v(TO + 1)}, {s(S_T0)}, {v(TO + 1)}")

    def touch():
        e.vm(f"global_load_dword {v(TO + 3)}, {v(TO)}, {s(S_TP, 2)}")
        e(f"v_add_u32 {v(TO)}, {s(S_TS)}, {v(TO)}")

    def touch_b(rb):
        if rb == 0:
            e(f"s_bitcmp1_b32 {s(S_W)}, 0")
            e(f"s_cselect_b32 {s(S_TP)}, {s(P_WU)}, {s(P_WG)}")
            e(f"s_cselect_b32 {s(S_TP + 1)}, {s(P_WU + 1)}, {s(P_WG + 1)}")
        e.vm(f"global_load_dword {v(TO + 3)}, {v(TO + 1)}, {s(S_TP, 2)}")
        e(f"v_add_u32 {v(TO + 1)}, {256 * 3584}, {v(TO + 1)}")
    if half == 0:
        e(f"s_cmp_eq_u32 {s(S_W)}, 0")
        e(f"s_cselect_b32 {s(S_T1)}, 4, 0")
        e(f"v_mul_u32_u24 {v(G + 8)}, {s(S_T1)}, {v(T + 3)}")
        e(f"s_add_u32 {s(S_T0)}, {s(S_ST0)}, {s(S_W)}")
        e(f"v_add_u32 {v(G + 8)}, {s(S_T0)}, {v(G + 8)}")
        e(f"v_min_u32 {v(G + 8)}, 31, {v(G + 8)}")
        e(f"v_and_b32 {v(G + 9)}, 30, v0")
        e(f"v_lshl_add_u32 {v(G + 8)}, {v(G + 8)}, 5, {v(G + 9)}")
        e(f"v_mov_b32 {v(PP)}, 0")
        e(f"s_lshl_b32 {s(S_T0)}, s2, 2")
        e(f"s_add_u32 {s(S_T0)}, {s(S_T0)}, {s(S_W)}")
        e(f"s_lshr_b32 {s(S_T1)}, {s(S_T0)}, 3")
        e(f"s_and_b32 {s(S_T0)}, {s(S_T0)}, 7")
        e(f"s_lshl_b32 {s(S_T2)}, {s(S_T1)}, 14")
        e(f"s_lshl_b32 {s(S_T3)}, {s(S_T0)}, 7")
        e(f"s_add_u32 {s(S_T2)}, {s(S_T2)}, {s(S_T3)}")
        e(f"v_lshlrev_b32 {v(PP + 2)}, 4, {v(T + 1)}")
        e(f"v_lshl_add_u32 {v(PP + 2)}, {v(T)}, 10, {v(PP + 2)}")
        e(f"v_add_u32 {v(PP + 2)}, {s(S_T2)}, {v(PP + 2)}")
        e(f"v_add_u32 {v(PP + 3)}, {8192 - 1024}, {v(PP + 2)}")
        e(f"s_mul_i32 {s(S_PRE)}, {s(S_T0)}, {2 * KS}")
        e(f"s_add_u32 {s(S_PRE)}, {s(S_PRE)}, {s(S_T1)}")
        e(f"s_lshl_b32 {s(S_PRE)}, {s(S_PRE)}, 10")
        e(f"s_add_u32 {s(S_PRE)}, {s(S_PRE)}, {WS_B2}")
        e(f"s_lshl_b32 {s(S_T3)}, {s(S_W)}, 11")
        e(f"s_add_u32 {s(S_T3)}, {s(S_T3)}, {L_PRE}")
    else:
        e(f"s_lshr_b32 {s(S_T0)}, {s(S_PRE)}, 6")
        e(f"s_and_b32 {s(S_T1)}, {s(S_PRE)}, 63")
        e(f"s_lshl_b32 {s(S_T2)}, {s(S_T0)}, 15")
        e(f"s_lshl_b32 {s(S_T3)}, {s(S_T1)}, 4")
        e(f"s_add_u32 {s(S_T2)}, {s(S_T2)}, {s(S_T3)}")
        e(f"v_lshlrev_b32 {v(PP)}, 10, {v(T + 4)}")
        e(f"v_add_u32 {v(PP)}, {s(S_T2)}, {v(PP)}")
        e(f"v_lshlrev_b32 {v(G + 8)}, 1, {v(T + 1)}")
        e(f"v_add_u32 {v(G + 8)}, {s(S_T3)}, {v(G + 8)}")
        e(f"s_mul_i32 {s(S_PRE)}, {s(S_T0)}, {KS}")
        e(f"s_add_u32 {s(S_PRE)}, {s(S_PRE)}, {s(S_T1)}")
        e(f"s_lshl_b32 {s(S_PRE)}, {s(S_PRE)}, 10")
        e(f"s_add_u32 {s(S_PRE)}, {s(S_PRE)}, {WS_B2 + 112 * 1024}")

    def small_gen():
        e.vm(f"global_load_ushort {v(G + 9)}, {v(G + 8)}, {s(P_LRE, 2)}")
        e.vm(f"global_load_ushort {v(G + 10)}, {v(G + 8)}, {s(P_LIM, 2)}")
        tok['par'] = e.vm(f"global_load_ushort {v(G + 11)}, {v(G + 8)}, {s(P_LDT, 2)}"); yield
        if half == 0:
            e(f"s_lshl_b32 {s(S_K1)}, {s(S_W)}, 11")
            e(f"s_add_u32 m0, {s(S_K1)}, {L_PRE}")
            e("s_nop 0")
            e.vm(f"buffer_load_dwordx4 {v(PP + 2)}, {s(SRD_WD, 4)}, 0 offen{NTIN} lds"); yield
            tok['pre'] = e.vm(f"buffer_load_dwordx4 {v(PP + 3)}, {s(SRD_WD, 4)}, 0 offen offset:1024{NTIN} lds"); yield
        else:
            e.vm(f"global_load_dwordx4 {v(PP + 4, 4)}, {v(PP)}, {s(P_CRE, 2)}{NTIN}"); yield
            tok['pre'] = e.vm(f"global_load_dwordx4 {v(PP + 8, 4)}, {v(PP)}, {s(P_CIM, 2)}{NTIN}"); yield
        e.vm(f"buffer_load_dwordx4 {v(G, 4)}, {v(GX)}, {s(SRD_X, 4)}, 0 offen"); yield
        tok['gw'] = e.vm(f"global_load_dwordx4 {v(G + 4, 4)}, {v(V_ST)}, {s(P_GW, 2)}"); yield
    if half == 1:
        e(f"v_bfe_u32 {v(T + 14)}, v0, 3, 2")
        e(f"v_lshl_add_u32 {v(T + 14)}, {v(T + 3)}, 4, {v(T + 14)}")
        e(f"v_xor_b32 {v(T + 15)}, {v(T + 1)}, {v(T + 2)}")
        e(f"v_lshlrev_b32 {v(T + 15)}, 4, {v(T + 15)}")
        e(f"v_lshl_add_u32 {v(T + 14)}, {v(T + 14)}, 10, {v(T + 15)}")
        e(f"s_lshl_b32 {s(S_T0)}, {s(S_I)}, 17")
        e(f"s_lshl_b32 {s(S_T1)}, {s(S_W)}, 15")
        e(f"s_add_u32 {s(S_T0)}, {s(S_T0)}, {s(S_T1)}")
        e(f"v_add_u32 {v(V_DA)}, {s(S_T0)}, {v(T + 14)}")
        e(f"v_xor_b32 {v(T + 14)}, 64, {v(V_DA)}")
        e(f"v_add_u32 {v(V_DA + 1)}, {4096 - 1024}, {v(T + 14)}")
        e(f"v_add_u32 {v(V_DA + 2)}, {2 * (4096 - 1024)}, {v(V_DA)}")
        e(f"v_add_u32 {v(V_DA + 3)}, {3 * (4096 - 1024)}, {v(T + 14)}")
        e(f"s_lshl_b32 {s(S_LB0)}, {s(S_W)}, 14")
        e("s_waitcnt lgkmcnt(0)")
        srd(e, SRD_X, P_X, 2048 * 1024)
    else:
        e(f"s_lshr_b32 {s(S_T0)}, {s(S_W)}, 1")
        e(f"s_lshl_b32 {s(S_T0)}, {s(S_T0)}, 2")
        e(f"v_xor_b32 {v(T + 14)}, {v(T + 1)}, {v(T + 2)}")
        e(f"v_xor_b32 {v(T + 14)}, {s(S_T0)}, {v(T + 14)}")
        e(f"v_lshlrev_b32 {v(T + 14)}, 4, {v(T + 14)}")
        e(f"v_lshl_add_u32 {v(T + 14)}, {v(T)}, 10, {v(T + 14)}")
        e(f"s_lshl_b32 {s(S_T0)}, {s(S_ST0)}, 14")
        e(f"s_and_b32 {s(S_T1)}, {s(S_W)}, 1")
        e(f"s_lshl_b32 {s(S_T1)}, {s(S_T1)}, 13")
        e(f"s_add_u32 {s(S_T0)}, {s(S_T0)}, {s(S_T1)}")
        e(f"v_add_u32 {v(V_DA)}, {s(S_T0)}, {v(T + 14)}")
        e(f"s_lshl_b32 {s(S_LB0)}, {s(S_W)}, 10")
        if typ == 'X':
            e(f"s_mul_i32 {s(S_T0)}, {s(S_W)}, {16 * 3584}")
            e(f"s_lshl_b32 {s(S_T1)}, {s(S_UA)}, 7")
            e(f"s_add_u32 {s(S_T0)}, {s(S_T0)}, {s(S_T1)}")
            e(f"v_add_u32 {v(V_DA + 1)}, {s(S_T0)}, {v(T + 5)}")
            e(f"v_add_u32 {v(V_DA + 2)}, {8 * 3584 - 1024}, {v(V_DA + 1)}")
            e(f"v_xor_b32 {v(V_DA + 3)}, 64, {v(V_DA + 1)}")
            e(f"v_xor_b32 {v(V_DA + 4)}, 64, {v(V_DA + 2)}")
            e(f"s_lshr_b32 {s(S_LB1)}, {s(S_W)}, 1")
            e(f"s_lshl_b32 {s(S_LB1)}, {s(S_LB1)}, 14")
            e(f"s_and_b32 {s(S_T0)}, {s(S_W)}, 1")
            e(f"s_lshl_b32 {s(S_T0)}, {s(S_T0)}, 11")
            e(f"s_add_u32 {s(S_LB1)}, {s(S_LB1)}, {s(S_T0)}")
        e("s_waitcnt lgkmcnt(0)")
        e(f"s_cmp_lt_u32 {s(S_W)}, 2")
        e(f"s_cselect_b32 {s(SRD_S)}, {s(P_BRE)}, {s(P_BIM)}")
        e(f"s_cselect_b32 {s(SRD_S + 1)}, {s(P_BRE + 1)}, {s(P_BIM + 1)}")
        e(f"s_and_b32 {s(SRD_S + 1)}, {s(SRD_S + 1)}, 0xffff")
        e(f"s_mov_b32 {s(SRD_S + 2)}, {512 * 1024}")
        e(f"s_mov_b32 {s(SRD_S + 3)}, 0x00020000")
        if typ == 'X':
            srd(e, SRD_G, P_WG, 512 * 3584)
            srd(e, SRD_U, P_WU, 512 * 3584)
    if STAMPS:
        e(f"v_writelane_b32 {v(SV)}, s98, 0")
        e(f"v_writelane_b32 {v(SV)}, s100, 60")
    stamp(e, SV, 1)
    utok = {}
    TCH = 250
    e(f"s_lshl_b32 {s(S_ROT)}, {s(S_JJ)}, 1")
    e(f"s_add_u32 {s(S_ROT)}, {s(S_ROT)}, {s(S_I)}")
    e(f"s_and_b32 {s(S_ROT)}, {s(S_ROT)}, {ROTMASK}")
    if half == 0:
        srd(e, SRD_X, P_X, 2048 * 1024)
        srd(e, SRD_WD, P_WD, 1792 * 1024)
        lab = e.newlabel("ep_skip")
        e(f"s_lshl_b32 {s(S_T0)}, {s(S_W)}, 3")
        e(f"s_or_b32 {s(S_T0)}, {s(S_T0)}, s2")
        e(f"s_cmp_ge_u32 {s(S_T0)}, 8")
        e(f"s_cbranch_scc1 {lab}")
        e(f"s_memrealtime {s(S_K0, 2)}")
        e("s_waitcnt lgkmcnt(0)")
        e(f"s_or_b32 {s(S_T0)}, {s(S_K0)}, 1")
        e(f"v_mov_b32 {v(TCH)}, {s(S_T0)}")
        e(f"v_mov_b32 {v(TCH + 1)}, 0")
        e("s_mov_b64 exec, 1")
        e(f"global_atomic_cmpswap {v(TCH + 1)}, {v(TCH, 2)}, {s(P_DBG, 2)} sc1")
        e("s_mov_b64 exec, -1")
        e.label(lab)
    if half == 1:
        e(f"s_mov_b64 {s(S_TP, 2)}, {s(P_X, 2)}")
    elif typ == 'Y':
        e(f"s_cmp_lt_u32 {s(S_W)}, 2")
        e(f"s_cselect_b64 {s(S_TP, 2)}, {s(P_BRE, 2)}, {s(P_BIM, 2)}")
    else:
        e(f"s_mov_b64 {s(S_TP, 2)}, {s(P_WG, 2)}")
        for w_, p_ in ((1, P_WU), (2, P_BRE), (3, P_BIM)):
            e(f"s_cmp_eq_u32 {s(S_W)}, {w_}")
            e(f"s_cselect_b64 {s(S_TP, 2)}, {s(p_, 2)}, {s(S_TP, 2)}")
    for _ in range(NT0):
        touch()
    run(unit_gen(e, typ, half, 0, utok))
    stamp(e, SV, 51)
    if half == 0:
        pass
    if not (half == 0 and typ == 'X'):
        srd(e, SRD_G, P_WG, 512 * 3584)
        srd(e, SRD_U, P_WU, 512 * 3584)
    srd(e, SRD_WS, P_WS, WS_END)
    e(f"s_mov_b32 {s(S_NL2E)}, {NLOG2E:#x}")
    e("s_barrier")
    if half == 1:
        run(unit_gen(e, typ, half, 1, utok))
    stamp(e, SV, 52)
    e(f"s_mul_i32 {s(S_T0)}, {s(S_W)}, {16 * 3584}")
    e(f"s_lshl_b32 {s(S_T1)}, {s(S_UB)}, 7")
    e(f"s_add_u32 {s(S_T0)}, {s(S_T0)}, {s(S_T1)}")
    e(f"v_add_u32 {v(V_DB)}, {s(S_T0)}, {v(T + 5)}")
    e(f"v_add_u32 {v(V_DB + 1)}, {8 * 3584 - 1024}, {v(V_DB)}")
    e(f"v_xor_b32 {v(V_DB + 2)}, 64, {v(V_DB)}")
    e(f"v_xor_b32 {v(V_DB + 3)}, 64, {v(V_DB + 1)}")
    e(f"v_bfe_u32 {v(T + 6)}, v0, 1, 3")
    e(f"v_xor_b32 {v(T + 6)}, {v(T + 6)}, {v(T + 3)}")
    e(f"v_lshlrev_b32 {v(T + 6)}, 4, {v(T + 6)}")
    e(f"v_lshl_add_u32 {v(T + 6)}, {v(T + 4)}, 7, {v(T + 6)}")
    e(f"s_lshl_b32 {s(S_T0)}, {s(S_W)}, 14")
    e(f"v_add_u32 {v(V_XA)}, {s(S_T0)}, {v(T + 6)}")
    for u in range(1, 4):
        e(f"v_xor_b32 {v(V_XA + u)}, {32 * u}, {v(V_XA)}")
    e(f"v_bfe_u32 {v(T + 7)}, v0, 2, 2")
    e(f"v_lshl_add_u32 {v(T + 8)}, {v(T + 3)}, 3, {v(T + 7)}")
    e(f"v_lshlrev_b32 {v(T + 8)}, 7, {v(T + 8)}")
    e(f"v_and_b32 {v(T + 11)}, 3, v0")
    e(f"v_lshl_add_u32 {v(T + 8)}, {v(T + 11)}, 3, {v(T + 8)}")
    e(f"v_and_b32 {v(T + 9)}, 1, {v(T + 2)}")
    e(f"v_lshrrev_b32 {v(T + 10)}, 1, {v(T + 7)}")
    e(f"v_lshl_add_u32 {v(T + 10)}, {v(T + 9)}, 1, {v(T + 10)}")
    e(f"v_lshl_add_u32 {v(T + 8)}, {v(T + 10)}, 5, {v(T + 8)}")
    e(f"v_lshl_add_u32 {v(T + 10)}, {v(T + 9)}, 16, {v(T + 8)}")
    e(f"v_xor_b32 {v(V_TB)}, {64 * half}, {v(T + 10)}")
    e(f"v_xor_b32 {v(V_TB + 1)}, 32, {v(V_TB)}")
    if typ == 'X':
        tilesA = [('S', 0), ('F', 0)] if half == 0 else [('F', 1), ('F', 2), ('F', 3)]
    else:
        tilesA = [('S', 0), ('S', 1)] if half == 0 else [('S', 2), ('S', 3), ('S', 4)]
    stiles = [m for k, m in tilesA if k == 'S']
    ft = [m for k, m in tilesA if k == 'F']
    if ft:
        e(f"v_lshl_add_u32 {v(T + 10)}, {v(T + 9)}, 15, {v(T + 8)}")
        e(f"v_add_u32 {v(T + 10)}, {4 * REG}, {v(T + 10)}")
        for idx, t in enumerate(ft):
            e(f"v_xor_b32 {v(V_TA + idx)}, {32 * t}, {v(T + 10)}")
    if stiles:
        e(f"v_and_b32 {v(T + 12)}, 1, v0")
        e(f"v_lshrrev_b32 {v(T + 13)}, 1, {v(T + 4)}")
        e(f"v_lshl_add_u32 {v(T + 13)}, {v(T + 12)}, 4, {v(T + 13)}")
        e(f"v_bfe_u32 {v(T + 14)}, {v(T + 13)}, 1, 2")
        e(f"v_lshl_add_u32 {v(T + 14)}, {v(T + 12)}, 2, {v(T + 14)}")
        e(f"v_xor_b32 {v(T + 14)}, {v(T + 14)}, {v(T + 3)}")
        e(f"v_lshlrev_b32 {v(T + 14)}, 4, {v(T + 14)}")
        e(f"v_lshl_add_u32 {v(T + 14)}, {v(T + 13)}, 7, {v(T + 14)}")
        base = (8 * REG) if typ == 'X' else (4 + stiles[0]) * REG
        e(f"v_add_u32 {v(V_SA)}, {base}, {v(T + 14)}")
        for u in range(1, 4):
            e(f"v_xor_b32 {v(V_SA + u)}, {32 * u}, {v(V_SA)}")
    if half == 0:
        e(f"v_lshl_add_u32 {v(PP + 12)}, {v(T + 3)}, 2, {v(T + 7)}")
        e(f"v_lshlrev_b32 {v(PP + 12)}, 7, {v(PP + 12)}")
        e(f"v_lshl_add_u32 {v(PP + 12)}, {v(T + 9)}, 5, {v(PP + 12)}")
        e(f"v_lshl_add_u32 {v(PP + 12)}, {v(T + 11)}, 3, {v(PP + 12)}")
        e(f"v_add_u32 {v(PP + 12)}, {s(S_T3)}, {v(PP + 12)}")
    e(f"s_lshr_b32 {s(S_LB2)}, {s(S_WV)}, 1")
    e(f"s_lshl_b32 {s(S_LB2)}, {s(S_LB2)}, 14")
    e(f"s_and_b32 {s(S_T0)}, {s(S_WV)}, 1")
    e(f"s_lshl_b32 {s(S_T0)}, {s(S_T0)}, 11")
    e(f"s_add_u32 {s(S_LB2)}, {s(S_LB2)}, {s(S_T0)}")
    e(f"s_lshl_b32 {s(S_T0)}, {s(S_I)}, 2")
    e(f"s_add_u32 {s(S_T0)}, {s(S_T0)}, {s(S_W)}")
    e(f"s_mul_i32 {s(S_T0)}, {s(S_T0)}, {KS * 1024}")
    e(f"s_lshl_b32 {s(S_T1)}, {s(S_UA)}, 12")
    e(f"s_add_u32 {s(S_A2A)}, {s(S_T0)}, {s(S_T1)}")
    e(f"s_lshl_b32 {s(S_T1)}, {s(S_UB)}, 12")
    e(f"s_add_u32 {s(S_A2B)}, {s(S_T0)}, {s(S_T1)}")
    e(f"s_lshl_b32 {s(S_T1)}, {s(S_ST0)}, 11")
    e(f"s_add_u32 {s(S_A2S)}, {s(S_T0)}, {s(S_T1)}")
    e(f"s_add_u32 {s(S_A2S)}, {s(S_A2S)}, {112 * 1024}")
    r4 = ROLES[4 * half:4 * half + 4]
    e(f"s_mov_b32 {s(S_T0)}, {r4[0][0]}")
    for w in range(1, 4):
        e(f"s_cmp_eq_u32 {s(S_W)}, {w}")
        e(f"s_cselect_b32 {s(S_T0)}, {r4[w][0]}, {s(S_T0)}")
    e(f"s_mul_i32 {s(S_T1)}, {s(S_NT)}, {2 * KS}")
    e(f"s_add_u32 {s(S_T1)}, {s(S_T1)}, {s(S_T0)}")
    e(f"s_lshl_b32 {s(S_T1)}, {s(S_T1)}, 10")
    e(f"s_add_u32 {s(S_B0)}, {s(S_T1)}, {WS_B2}")
    e(f"s_add_u32 {s(S_B1)}, {s(S_B0)}, {KS * 1024}")
    e(f"s_mul_i32 {s(S_T1)}, {s(S_MT)}, {2 * KS}")
    e(f"s_add_u32 {s(S_T1)}, {s(S_T1)}, {s(S_T0)}")
    e(f"s_lshl_b32 {s(S_A0)}, {s(S_T1)}, 10")
    stamp(e, SV, 2)
    def job_gate():
        TT = 96
        e.wait(vm=tok['gw'])
        for j in range(4):
            e(f"v_lshlrev_b32 {v(TT + 2 * j)}, 16, {v(G + j)}"); yield
            e(f"v_and_b32 {v(TT + 2 * j + 1)}, 0xffff0000, {v(G + j)}"); yield
            e(f"v_lshlrev_b32 {v(TT + 8 + 2 * j)}, 16, {v(G + 4 + j)}"); yield
            e(f"v_and_b32 {v(TT + 8 + 2 * j + 1)}, 0xffff0000, {v(G + 4 + j)}"); yield
        tok['xfree'] = True
        for j in range(8):
            e(f"v_mul_f32 {v(TT + j)}, {v(TT + j)}, {v(TT + 8 + j)}"); yield
        for j in range(4):
            e(f"v_cvt_pk_bf16_f32 {v(TT + 8 + j)}, {v(TT + 2 * j)}, {v(TT + 2 * j + 1)}"); yield
        for j in range(4):
            e(f"v_lshlrev_b32 {v(TT + 2 * j)}, 16, {v(TT + 8 + j)}"); yield
            e(f"v_and_b32 {v(TT + 2 * j + 1)}, 0xffff0000, {v(TT + 8 + j)}"); yield
        for j in range(4):
            e(f"v_add_f32 {v(TT + j)}, {v(TT + j)}, {v(TT + 4 + j)}"); yield
        e(f"v_add_f32 {v(TT)}, {v(TT)}, {v(TT + 2)}"); yield
        e(f"v_add_f32 {v(TT + 1)}, {v(TT + 1)}, {v(TT + 3)}"); yield
        e(f"v_add_f32 {v(TT)}, {v(TT)}, {v(TT + 1)}"); yield
        a, b = TT, TT + 1
        for d in (DPP_X1, DPP_X2, "row_half_mirror row_mask:0xf bank_mask:0xf", "row_mirror row_mask:0xf bank_mask:0xf"):
            e.nop(2)
            e(f"v_add_f32_dpp {v(b)}, {v(a)}, {v(a)} {d}"); yield
            a, b = b, a
        e.nop(1)
        e(f"v_readlane_b32 {s(S_T0)}, {v(a)}, 16")
        e(f"v_readlane_b32 {s(S_T1)}, {v(a)}, 32")
        e(f"v_readlane_b32 {s(S_T2)}, {v(a)}, 48")
        e.nop(2)
        e(f"v_add_f32 {v(a)}, {s(S_T0)}, {v(a)}")
        e(f"v_mov_b32 {v(b)}, {s(S_T1)}")
        e(f"v_add_f32 {v(b)}, {s(S_T2)}, {v(b)}"); yield
        e(f"v_add_f32 {v(a)}, {v(a)}, {v(b)}"); yield
        e(f"v_cvt_pk_bf16_f32 {v(a)}, {v(a)}, {v(a)}"); yield
        e(f"v_lshlrev_b32 {v(a)}, 16, {v(a)}"); yield
        e(f"v_mul_f32 {v(a)}, {s(S_NL2E)}, {v(a)}"); yield
        e(f"v_exp_f32 {v(a)}, {v(a)}"); yield
        e(f"s_lshl_b32 {s(S_T0)}, {s(S_WV)}, 2")
        e(f"s_add_u32 {s(S_T0)}, {s(S_T0)}, {L_MISC + 64}")
        e(f"v_mov_b32 {v(b)}, {s(S_T0)}"); yield
        e(f"v_add_f32 {v(a)}, 1.0, {v(a)}"); yield
        e(f"v_rcp_f32 {v(a)}, {v(a)}"); yield
        e.nop(1)
        e(f"v_cvt_pk_bf16_f32 {v(a)}, {v(a)}, {v(a)}"); yield
        e(f"v_lshlrev_b32 {v(a)}, 16, {v(a)}"); yield
        e("s_mov_b64 exec, 1")
        e.lds(f"ds_write_b32 {v(b)}, {v(a)}")
        e("s_mov_b64 exec, -1"); yield

    def job_params():
        TT = 112
        P = 120
        e.wait(vm=tok['par'])
        yield from lam_params(e, G + 9, G + 10, G + 11, TT)
        e(f"v_and_b32 {v(TT + 6)}, 1, v0"); yield
        e(f"v_lshlrev_b32 {v(TT + 6)}, 31, {v(TT + 6)}"); yield
        e(f"v_xor_b32 {v(TT + 6)}, 0x80000000, {v(TT + 6)}"); yield
        e(f"v_mov_b32 {v(P)}, {v(TT + 2)}"); yield
        e(f"v_xor_b32 {v(P + 1)}, {v(TT + 6)}, {v(TT + 3)}"); yield

        def square():
            e(f"v_mul_f32 {v(TT + 4)}, {v(TT + 3)}, {v(TT + 3)}"); yield
            e(f"v_mul_f32 {v(TT + 5)}, {v(TT + 2)}, {v(TT + 3)}"); yield
            e(f"v_fma_f32 {v(TT + 2)}, {v(TT + 2)}, {v(TT + 2)}, -{v(TT + 4)}"); yield
            e(f"v_add_f32 {v(TT + 3)}, {v(TT + 5)}, {v(TT + 5)}"); yield
        for _ in range(4):
            yield from square()
        e(f"v_mov_b32 {v(P + 2)}, {v(TT + 2)}"); yield
        e(f"v_xor_b32 {v(P + 3)}, {v(TT + 6)}, {v(TT + 3)}"); yield
        for _ in range(3):
            yield from square()
        e(f"v_mov_b32 {v(P + 4)}, {v(TT + 2)}"); yield
        e(f"v_xor_b32 {v(P + 5)}, {v(TT + 6)}, {v(TT + 3)}"); yield
        yield from square()
        e(f"v_mov_b32 {v(P + 6)}, {v(TT + 2)}"); yield
        e(f"v_xor_b32 {v(P + 7)}, {v(TT + 6)}, {v(TT + 3)}"); yield
        e(f"s_cmp_eq_u32 {s(S_W)}, 0")
        e(f"s_cselect_b32 {s(S_T1)}, 4096, 0")
        e(f"v_lshrrev_b32 {v(TT)}, 5, v0")
        e(f"v_mul_u32_u24 {v(TT)}, {s(S_T1)}, {v(TT)}"); yield
        e(f"v_and_b32 {v(TT + 1)}, 31, v0"); yield
        e(f"v_lshl_add_u32 {v(TT)}, {v(TT + 1)}, 5, {v(TT)}"); yield
        e(f"s_lshl_b32 {s(S_T0)}, {s(S_W)}, 10")
        e(f"s_add_u32 {s(S_T0)}, {s(S_T0)}, {L_PAR}")
        e(f"v_add_u32 {v(TT)}, {s(S_T0)}, {v(TT)}"); yield
        e.lds(f"ds_write_b128 {v(TT)}, {v(P, 4)}"); yield
        e.lds(f"ds_write_b128 {v(TT)}, {v(P + 4, 4)} offset:16"); yield

    def job_pre0():
        e.wait(vm=tok['pre'])
        for h2 in range(2):
            for rd in range(2):
                lt = e.lds(f"ds_read_b64_tr_b16 {v(PP + 4 + 4 * h2 + 2 * rd, 2)}, {v(PP + 12)} offset:{rd * 1024 + h2 * 64}"); yield
        yield
        yield
        e.wait(lg=lt)
        e("s_cmp_ge_u32 s2, 224")
        e(f"s_cselect_b32 {s(S_PRE)}, {WS_END}, {s(S_PRE)}")
        e.vm(f"buffer_store_dwordx4 {v(PP + 4, 4)}, {v(V_ST)}, {s(SRD_WS, 4)}, {s(S_PRE)} offen sc1"); yield
        e(f"s_add_u32 {s(S_PRE)}, {s(S_PRE)}, {KS * 1024}")
        tok['prest'] = e.vm(f"buffer_store_dwordx4 {v(PP + 8, 4)}, {v(V_ST)}, {s(SRD_WS, 4)}, {s(S_PRE)} offen sc1"); yield

    def job_pre1():
        TT = 112
        e.wait(vm=tok['par'])
        yield from lam_params(e, G + 9, G + 10, G + 11, TT)
        e(f"v_cmp_gt_u32 vcc, 32, v0")
        e(f"v_xor_b32 {v(TT + 7)}, 0x80000000, {v(TT + 7)}")
        e(f"v_xor_b32 {v(TT + 5)}, 0x80000000, {v(TT + 6)}")
        e(f"v_cndmask_b32 {v(TT)}, {v(TT + 7)}, {v(TT + 6)}, vcc")
        e(f"v_cndmask_b32 {v(TT + 1)}, {v(TT + 5)}, {v(TT + 7)}, vcc"); yield
        e.wait(vm=tok['pre'])
        U = 96
        for j in range(4):
            e(f"v_lshlrev_b32 {v(U + 2 * j)}, 16, {v(PP + 4 + j)}"); yield
            e(f"v_and_b32 {v(U + 2 * j + 1)}, 0xffff0000, {v(PP + 4 + j)}"); yield
            e(f"v_lshlrev_b32 {v(U + 8 + 2 * j)}, 16, {v(PP + 8 + j)}"); yield
            e(f"v_and_b32 {v(U + 8 + 2 * j + 1)}, 0xffff0000, {v(PP + 8 + j)}"); yield
        toks = []
        for j in range(8):
            pat = (0 << 10) | (j << 5) | 0x18
            e.lds(f"ds_swizzle_b32 {v(PP + 4 + j)}, {v(TT)} offset:{pat}"); yield
            toks.append(e.lds(f"ds_swizzle_b32 {v(PP + 12 + j)}, {v(TT + 1)} offset:{pat}")); yield
        for j in range(8):
            e.wait(lg=toks[j])
            e(f"v_mul_f32 {v(U + j)}, {v(U + j)}, {v(PP + 4 + j)}"); yield
            e(f"v_fmac_f32 {v(U + j)}, {v(U + 8 + j)}, {v(PP + 12 + j)}"); yield
        for p in range(4):
            e(f"v_cvt_pk_bf16_f32 {v(U + 8 + p)}, {v(U + 2 * p)}, {v(U + 2 * p + 1)}"); yield
        tok['prest'] = e.vm(f"buffer_store_dwordx4 {v(U + 8, 4)}, {v(V_ST)}, {s(SRD_WS, 4)}, {s(S_PRE)} offen sc1"); yield

    side = Sched()
    dq = Sched()
    dtags = []
    ucomplete = {0, 1, 2} if half == 1 else {0, 1}

    def dadd(gen, tag):
        dq.add(gen)
        dtags.append(tag)

    def dpump():
        while dq.q:
            try:
                next(dq.q[0])
                return
            except StopIteration:
                dq.q.pop(0)
                ucomplete.add(dtags.pop(0))

    def need_unit(u):
        while u not in ucomplete:
            for _ in dq.q[0]:
                pass
            dq.q.pop(0)
            ucomplete.add(dtags.pop(0))

    if half == 0:
        run(unit_gen(e, typ, half, 1, utok))
        dadd(unit_gen(e, typ, half, 2, utok), 2)
    else:
        run(unit_gen(e, typ, half, 2, utok))
    dadd(small_gen(), 'small')
    dadd(unit_gen(e, typ, half, 3, utok), 3)
    stamp(e, SV, 53)
    e.wait(vm=utok[0])
    stamp(e, SV, 3)
    e("s_barrier")
    stamp(e, SV, 4)

    ftok = {}

    def readA(S, idx):
        st, u = S // 4, S % 4
        slot = st % 4
        buf = V_FR + 12 * (S % 2)
        if idx == 0:
            e.lds(f"ds_read_b128 {v(V_X + 4 * S, 4)}, {v(V_XA + u)} offset:{slot * 4096}")
        k, m = tilesA[idx]
        d = buf + 4 * idx
        if k == 'S':
            rel = 0 if typ == 'X' else (m - stiles[0]) * REG
            lt = e.lds(f"ds_read_b128 {v(d, 4)}, {v(V_SA + u)} offset:{rel + slot * 4096}")
        else:
            fi = ft.index(m)
            for rd in range(2):
                off = (u >> 1) * REG + slot * 4096 + (16 * (u & 1) + 4 * rd) * 128
                lt = e.lds(f"ds_read_b64_tr_b16 {v(d + 2 * rd, 2)}, {v(V_TA + fi)} offset:{off}")
        ftok[('A', S, idx)] = lt

    def readB(S, idx):
        c, u = S // 8, S % 8
        buf = V_FR + 8 * (S % 2)
        for rd in range(2):
            off = (u >> 1) * REG + c * 4096 + (16 * (u & 1) + 4 * rd) * 128
            lt = e.lds(f"ds_read_b64_tr_b16 {v(buf + 4 * idx + 2 * rd, 2)}, {v(V_TB + idx)} offset:{off}")
        ftok[('B', S, idx)] = lt

    nA = len(tilesA)
    for idx in range(nA):
        readA(0, idx)
    FL = 222
    FL = ACC[4] + 15
    FLAG_ST = 5
    S_JOBS = 8
    for S in range(32):
        st, u = S // 4, S % 4
        if S == S_JOBS:
            need_unit('small')
            if half == 0:
                side.add(job_pre0())
                side.add(job_params())
                side.add(job_gate())
            else:
                side.add(job_pre1())
                side.add(job_gate())
        if u == 3:
            need_unit(st + 1)
            if st == FLAG_ST:
                while 'prest' not in tok:
                    side.pump(1)
            if st == 5:
                while 'xfree' not in tok:
                    side.pump(1)
            if st == 7:
                side.drain()
            e.wait(vm=utok[st + 1] if st != FLAG_ST else max(utok[st + 1], tok['prest']), lg=e.lg_seq - 1)
            if not FINE:
                stamp(e, SV, 6 + 2 * st)
            e("s_barrier")
            if not FINE or st == 7:
                stamp(e, SV, 7 + 2 * st if not FINE else 5)
            dadd(unit_gen(e, typ, half, st + 4, utok), st + 4)
        buf = V_FR + 12 * (S % 2)
        for idx, (k, m) in enumerate(tilesA):
            e.wait(lg=ftok[('A', S, idx)])
            if k == 'S':
                mfma(e, ACC[idx], V_X + 4 * S, buf + 4 * idx, S == 0)
            else:
                mfma(e, ACC[idx], buf + 4 * idx, V_X + 4 * S, S == 0)
            if S < 31:
                readA(S + 1, idx)
            elif idx < 2:
                readB(0, idx)
            if idx == 0 or len(dq.q) > 1 or (half == 0 and u == 3):
                dpump()
            if half == 0 and len(dq.q) > 1:
                dpump()
            side.pump(JR0 if half == 0 else JR1)
        if NT0 > 0 and S in TSCHED:
            r_ = NT0 + TSCHED.index(S)
            if r_ < 4:
                touch()
            elif half == 0 and r_ < 6:
                touch_b(r_ - 4)
        if S == 1 and half == 0:
            lab = e.newlabel("epl_skip")
            e(f"s_cmp_lg_u32 {s(S_W)}, 0")
            e(f"s_cbranch_scc1 {lab}")
            e(f"global_load_dword {v(PP + 1)}, {v(PP)}, {s(P_DBG, 2)} sc1")
            e.label(lab)
            tok['ep_seq'] = e.vm_seq
        if S == 6 and half == 0:
            lab = e.newlabel("ep_skip")
            lp = e.newlabel("ep_poll")
            lo = e.newlabel("ep_ok")
            e(f"s_cmp_lg_u32 {s(S_W)}, 0")
            e(f"s_cbranch_scc1 {lab}")
            e(f"s_mov_b32 {s(S_SPIN)}, 0")
            e(f"s_waitcnt vmcnt({min(63, e.vm_seq - tok['ep_seq'])})")
            e.label(lp)
            e(f"v_cmp_ne_u32 vcc, 0, {v(PP + 1)}")
            e(f"s_cbranch_vccnz {lo}")
            e("s_sleep 2")
            e(f"global_load_dword {v(PP + 1)}, {v(PP)}, {s(P_DBG, 2)} sc1")
            e("s_waitcnt vmcnt(0)")
            e(f"s_add_u32 {s(S_SPIN)}, {s(S_SPIN)}, 1")
            e(f"s_cmp_lt_u32 {s(S_SPIN)}, 0x4000")
            e(f"s_cbranch_scc1 {lp}")
            e.label(lo)
            e(f"v_mov_b32 {v(PP)}, {L_MISC}")
            e(f"ds_write_b32 {v(PP)}, {v(PP + 1)}")
            e("s_waitcnt lgkmcnt(0)")
            e.label(lab)
        if S == 8:
            er = ACC[2] + 2 if half == 0 else V_X + 4 * 23
            e(f"v_mov_b32 {v(er)}, {L_MISC}")
            tok['epl'] = e.lds(f"ds_read_b32 {v(er)}, {v(er)}")
        if S == 9:
            er = ACC[2] + 2 if half == 0 else V_X + 4 * 23
            e.wait(lg=tok['epl'])
            e(f"v_readfirstlane_b32 {s(S_EPOCH)}, {v(er)}")
            r4 = ROLES[4 * half:4 * half + 4]
            e(f"s_mov_b32 {s(S_NS)}, {r4[0][1]}")
            for w in range(1, 4):
                e(f"s_cmp_eq_u32 {s(S_W)}, {w}")
                e(f"s_cselect_b32 {s(S_NS)}, {r4[w][1]}, {s(S_NS)}")
            e(f"s_and_b32 {s(S_ROT2)}, {s(S_NT)}, {ROT2MASK}")
        if S == 4 * FLAG_ST + 3 and half == 0:
            lab = e.newlabel("flag_skip")
            e(f"s_cmp_lg_u32 {s(S_W)}, 0")
            e(f"s_cbranch_scc1 {lab}")
            e(f"s_lshl_b32 {s(S_T0)}, s2, 5")
            e(f"s_add_u32 {s(S_T0)}, {s(S_T0)}, {WS_EF}")
            e(f"v_mov_b32 {v(ACC[2] + 3)}, 0")
            e(f"v_mov_b32 {v(ACC[2] + 4)}, {s(S_EPOCH)}")
            e("s_mov_b64 exec, 1")
            e(f"buffer_store_dword {v(ACC[2] + 4)}, {v(ACC[2] + 3)}, {s(SRD_WS, 4)}, {s(S_T0)} offen sc1")
            e("s_mov_b64 exec, -1")
            e.label(lab)

    TMP = 40
    TS = 1
    SC = 10
    pa = 20
    ns = len(stiles)
    GR = 160
    CAR = 14
    PRE_P = 17

    def job_pass1():
        e(f"v_and_b32 {v(pa)}, 31, v0"); yield
        e(f"v_lshlrev_b32 {v(pa)}, 5, {v(pa)}"); yield
        e(f"v_add_u32 {v(pa)}, {L_PAR}, {v(pa)}"); yield
        for j, m in enumerate(stiles):
            lt = e.lds(f"ds_read_b64 {v(TMP + 2 * j, 2)}, {v(pa)} offset:{m * 1024}"); yield
        e(f"v_lshlrev_b32 {v(TS)}, 2, v0"); yield
        e(f"s_lshl_b32 {s(S_T0)}, {s(S_W)}, 8")
        e(f"s_add_u32 {s(S_T0)}, {s(S_T0)}, {L_SEX}")
        e(f"v_add_u32 {v(TS)}, {s(S_T0)}, {v(TS)}"); yield
        e(f"v_mov_b32 {v(TS + 1)}, 0"); yield
        for j, m in enumerate(stiles):
            e.lds(f"ds_write_b32 {v(TS)}, {v(TS + 1)} offset:{m * 2048}"); yield
        e.nop(4)
        e.wait(lg=lt)
        for u in range(1, 16):
            dst = u % 2
            for j in range(ns):
                src_ = ACC[j] if u == 1 else SC + 2 * j + (u + 1) % 2
                e(f"v_fma_f32 {v(SC + 2 * j + dst)}, {v(TMP + 2 * j)}, {v(src_)}, {v(ACC[j] + u)}"); yield
            if ns == 1:
                e.nop(1)
            for j in range(ns):
                src_ = ACC[j] if u == 1 else SC + 2 * j + (u + 1) % 2
                e(f"v_fmac_f32_dpp {v(SC + 2 * j + dst)}, {v(src_)}, {v(TMP + 2 * j + 1)} {DPP_X1}"); yield
        for j, m in enumerate(stiles):
            e.lds(f"ds_write_b32 {v(TS)}, {v(SC + 2 * j + 1)} offset:{m * 2048 + 1024}"); yield
        e(f"s_add_u32 {s(S_T0)}, {s(S_W)}, {stiles[0]}")
        e(f"s_lshl_b32 {s(S_T1)}, {s(S_T0)}, 10")
        e(f"v_add_u32 {v(TS + 2)}, {s(S_T1)}, {v(pa)}")
        e(f"s_lshl_b32 {s(S_T1)}, {s(S_T0)}, 11")
        e(f"s_add_u32 {s(S_T1)}, {s(S_T1)}, {L_SEX}")
        e(f"v_and_b32 {v(TS + 1)}, 31, v0")
        e(f"v_lshlrev_b32 {v(TS + 3)}, 3, {v(TS + 1)}")
        e(f"v_lshl_add_u32 {v(TS + 1)}, {v(TS + 1)}, 2, {s(S_T1)}"); yield

    def blk_publish():
        lab = e.newlabel("pub_skip")
        e(f"s_cmp_ge_u32 {s(S_W)}, {ns}")
        e(f"s_cbranch_scc1 {lab}")
        e(f"ds_read_b64 {v(SC, 2)}, {v(TS + 2)} offset:8")
        for q in range(8):
            e(f"ds_read_b32 {v(SC + 2 + q)}, {v(TS + 1)} offset:{1024 + q * 128}")
        e(f"s_add_u32 {s(S_T0)}, {s(S_PUB)}, 4096")
        e("s_waitcnt lgkmcnt(0)")
        for q in range(1, 8):
            e(f"v_fmac_f32 {v(SC + 2 + q)}, {v(SC)}, {v(SC + 1 + q)}")
            e.nop(1)
            e(f"v_fmac_f32_dpp {v(SC + 2 + q)}, {v(SC + 1 + q)}, {v(SC + 1)} {DPP_X1}")
        e(f"v_mov_b32 {v(SC + 1)}, {s(S_EPOCH)}")
        e(f"v_mov_b32 {v(SC)}, {v(SC + 9)}")
        e("s_mov_b32 exec_hi, 0")
        e(f"buffer_store_dwordx2 {v(SC, 2)}, {v(TS + 3)}, {s(SRD_WS, 4)}, {s(S_T0)} offen sc1")
        e("s_mov_b64 exec, -1")
        e.label(lab)
        e(f"v_lshrrev_b32 {v(SC + 2)}, 5, v0")
        e(f"v_sub_u32 {v(SC + 2)}, 1, {v(SC + 2)}")
        e(f"v_lshl_add_u32 {v(TS + 3)}, {v(SC + 2)}, 8, {v(TS + 3)}")

    bdone = set()

    def bload(j, which):
        rot_off(e, S_T3, j, S_B0 if which == 0 else S_B1)
        e.vm(f"buffer_load_dwordx4 {v(V_X + 8 * j + 4 * which, 4)}, {v(V_ST)}, {s(SRD_WS, 4)}, {s(S_T3)} offen{LDP}")
        bdone.add((j, which))

    def gr_issue(lend):
        for t in range(8):
            e(f"buffer_load_dwordx2 {v(GR + 2 * t, 2)}, {v(TS + 3)}, {s(SRD_WS, 4)}, {s(S_PUB)} offen offset:{3584 - 512 * t} sc1")
            if t < 7:
                e(f"s_cmp_eq_u32 {s(S_T1)}, {t + 1}")
                e(f"s_cbranch_scc1 {lend}")

    def blk_grload():
        lab = e.newlabel("grl_skip")
        e(f"s_cmp_ge_u32 {s(S_W)}, {ns}")
        e(f"s_cbranch_scc1 {lab}")
        e(f"s_cmp_eq_u32 {s(S_I)}, 0")
        e(f"s_cbranch_scc1 {lab}")
        e(f"s_add_u32 {s(S_T1)}, {s(S_I)}, 1")
        e(f"s_lshr_b32 {s(S_T1)}, {s(S_T1)}, 1")
        gr_issue(lab)
        e.label(lab)
        tok['gr_seq'] = e.vm_seq

    def blk_carry():
        lab = e.newlabel("car_skip")
        e(f"s_cmp_ge_u32 {s(S_W)}, {ns}")
        e(f"s_cbranch_scc1 {lab}")
        e(f"s_cmp_eq_u32 {s(S_I)}, 0")
        e(f"s_cbranch_scc1 {lab}")
        e(f"ds_read_b128 {v(GR + 16, 4)}, {v(TS + 2)} offset:16")
        e(f"s_add_u32 {s(S_T1)}, {s(S_I)}, 1")
        e(f"s_lshr_b32 {s(S_T1)}, {s(S_T1)}, 1")
        e(f"s_bitcmp1_b32 {s(S_I)}, 0")
        e(f"s_cselect_b32 {s(S_M0 + 1)}, 0, -1")
        e(f"s_mov_b32 {s(S_M0)}, -1")
        e(f"s_mov_b32 {s(S_SPIN)}, 0")
        e(f"s_waitcnt vmcnt({min(63, e.vm_seq - tok['gr_seq'])})")
        lp = e.newlabel("car_poll")
        lchk = e.newlabel("car_chk")
        lok = e.newlabel("car_ok")
        lre = e.newlabel("car_re")
        e.label(lp)
        e(f"s_mov_b64 {s(S_M1, 2)}, 0")
        for t in range(8):
            e(f"v_cmp_ne_u32 vcc, {s(S_EPOCH)}, {v(GR + 2 * t + 1)}")
            if t < 7:
                e(f"s_cmp_eq_u32 {s(S_T1)}, {t + 1}")
                e(f"s_cbranch_scc1 {lchk}")
                e(f"s_or_b64 {s(S_M1, 2)}, {s(S_M1, 2)}, vcc")
        e.label(lchk)
        e(f"s_and_b64 vcc, vcc, {s(S_M0, 2)}")
        e(f"s_or_b64 {s(S_M1, 2)}, {s(S_M1, 2)}, vcc")
        e(f"s_cbranch_scc0 {lok}")
        e(f"s_add_u32 {s(S_SPIN)}, {s(S_SPIN)}, 1")
        e(f"s_cmp_ge_u32 {s(S_SPIN)}, 0x4000")
        e(f"s_cbranch_scc1 {lok}")
        e("s_sleep 1")
        gr_issue(lre)
        e.label(lre)
        e("s_waitcnt vmcnt(0)")
        e(f"s_branch {lp}")
        e.label(lok)
        e("s_waitcnt lgkmcnt(0)")
        ACCU = GR + 20
        e(f"v_mov_b32 {v(ACCU)}, 0")
        for t in range(7, -1, -1):
            ls = e.newlabel("hs")
            e(f"s_cmp_le_u32 {s(S_T1)}, {t}")
            e(f"s_cbranch_scc1 {ls}")
            e(f"s_cmp_eq_u32 {s(S_T1)}, {t + 1}")
            e(f"s_cselect_b64 vcc, {s(S_M0, 2)}, -1")
            e(f"v_cndmask_b32 {v(GR + 2 * t)}, 0, {v(GR + 2 * t)}, vcc")
            e(f"v_fmac_f32 {v(GR + 2 * t)}, {v(GR + 18)}, {v(ACCU)}")
            e(f"v_fmac_f32_dpp {v(GR + 2 * t)}, {v(ACCU)}, {v(GR + 19)} {DPP_X1}")
            e(f"v_mov_b32 {v(ACCU)}, {v(GR + 2 * t)}")
            e.label(ls)
        e.nop(1)
        e(f"v_mul_f32 {v(ACCU + 1)}, {v(GR + 16)}, {v(ACCU)}")
        e(f"v_fmac_f32_dpp {v(ACCU + 1)}, {v(ACCU)}, {v(GR + 17)} {DPP_X1}")
        e(f"v_mov_b32 {v(ACCU + 2)}, 0")
        e.nop(1)
        e(f"v_permlane32_swap_b32 {v(ACCU + 1)}, {v(ACCU + 2)}")
        e.nop(1)
        e(f"v_add_f32 {v(ACCU)}, {v(ACCU)}, {v(ACCU + 2)}")
        e("s_mov_b32 exec_hi, 0")
        e(f"ds_write_b32 {v(TS + 1)}, {v(ACCU)} offset:{7 * 128}")
        e("s_mov_b64 exec, -1")
        e("s_waitcnt lgkmcnt(0)")
        e.label(lab)

    def job_final():
        PR = GR
        EV = GR + 12
        for j, m in enumerate(stiles):
            e.lds(f"ds_read_b128 {v(PR + 4 * j, 4)}, {v(pa)} offset:{m * 1024}"); yield
            for q in range(4):
                lt = e.lds(f"ds_read2_b32 {v(EV + 8 * j + 2 * q, 2)}, {v(TS)} offset0:{(q * 256) // 4} offset1:{(q * 256 + 128) // 4}"
                           if m == 0 else f"ds_read_b32 {v(EV + 8 * j + 2 * q)}, {v(TS)} offset:{m * 2048 + q * 256}")
                if m != 0:
                    lt = e.lds(f"ds_read_b32 {v(EV + 8 * j + 2 * q + 1)}, {v(TS)} offset:{m * 2048 + q * 256 + 128}")
                yield
        e(f"v_and_b32 {v(SC)}, 31, v0"); yield
        e(f"v_mul_u32_u24 {v(SC)}, 80, {v(SC)}"); yield
        e(f"v_lshrrev_b32 {v(SC + 1)}, 5, v0"); yield
        e(f"v_lshl_add_u32 {v(SC)}, {v(SC + 1)}, 5, {v(SC)}"); yield
        e(f"s_lshl_b32 {s(S_T0)}, {s(S_WV)}, 14")
        e(f"v_add_u32 {v(SC)}, {s(S_T0)}, {v(SC)}")
        e(f"v_bfe_u32 {v(SC + 2)}, v0, 2, 2"); yield
        e(f"v_lshl_add_u32 {v(SC + 1)}, {v(SC + 2)}, 1, {v(SC + 1)}"); yield
        e(f"v_mul_u32_u24 {v(SC + 1)}, 80, {v(SC + 1)}"); yield
        e(f"v_and_b32 {v(SC + 2)}, 1, v0"); yield
        e(f"v_lshl_add_u32 {v(SC + 1)}, {v(SC + 2)}, 5, {v(SC + 1)}"); yield
        e(f"v_bfe_u32 {v(SC + 2)}, v0, 4, 1"); yield
        e(f"v_lshl_add_u32 {v(SC + 1)}, {v(SC + 2)}, 4, {v(SC + 1)}"); yield
        e(f"v_bfe_u32 {v(SC + 2)}, v0, 1, 1"); yield
        e(f"v_lshl_add_u32 {v(SC + 1)}, {v(SC + 2)}, 3, {v(SC + 1)}"); yield
        e(f"s_lshl_b32 {s(S_T0)}, {s(S_WV)}, 14")
        e(f"v_add_u32 {v(SC + 1)}, {s(S_T0)}, {v(SC + 1)}"); yield
        e.wait(lg=lt)
        for q in range(1, 8):
            for j in range(ns):
                e(f"v_fmac_f32 {v(EV + 8 * j + q)}, {v(PR + 4 * j + 2)}, {v(EV + 8 * j + q - 1)}"); yield
            if ns == 1:
                e.nop(1)
            for j in range(ns):
                e(f"v_fmac_f32_dpp {v(EV + 8 * j + q)}, {v(EV + 8 * j + q - 1)}, {v(PR + 4 * j + 3)} {DPP_X1}"); yield
        O = EV
        for u in range(16):
            for j in range(ns):
                prev = EV + 8 * j + 7 if u == 0 else ACC[j] + u - 1
                e(f"v_fmac_f32 {v(ACC[j] + u)}, {v(PR + 4 * j)}, {v(prev)}"); yield
            if ns == 1:
                if u >= 3 and u % 2 == 1:
                    e(f"v_cvt_pk_bf16_f32 {v(O + (u - 3) // 2)}, {v(ACC[0] + u - 3)}, {v(ACC[0] + u - 2)}")
                else:
                    e.nop(1)
            for j in range(ns):
                prev = EV + 8 * j + 7 if u == 0 else ACC[j] + u - 1
                e(f"v_fmac_f32_dpp {v(ACC[j] + u)}, {v(prev)}, {v(PR + 4 * j + 1)} {DPP_X1}"); yield
        for j, m in enumerate(stiles):
            for p in range(8):
                if ns == 1 and p < 7:
                    continue
                e(f"v_cvt_pk_bf16_f32 {v(O + 8 * j + p)}, {v(ACC[j] + 2 * p)}, {v(ACC[j] + 2 * p + 1)}"); yield
            tro = 4096 * (j % 2)
            e.lds(f"ds_write_b128 {v(SC)}, {v(O + 8 * j, 4)} offset:{tro}"); yield
            lt = e.lds(f"ds_write_b128 {v(SC)}, {v(O + 8 * j + 4, 4)} offset:{tro + 16}"); yield
            e.wait(lg=lt)
            R = ACC[j]
            for kap in range(2):
                for rd in range(2):
                    lt = e.lds(f"ds_read_b64_tr_b16 {v(R + 4 * kap + 2 * rd, 2)}, {v(SC + 1)} offset:{tro + (16 * kap + 8 * rd) * 80}"); yield
            tok[('tr', j)] = lt
            if j > 0:
                yield from tr_store(j - 1)
        yield from tr_store(ns - 1)

    def tr_store(j):
        m = stiles[j]
        R = ACC[j]
        e.wait(lg=tok[('tr', j)])
        e(f"s_add_u32 {s(S_T0)}, {s(S_A2S)}, {m * 2048}")
        e.vm(f"buffer_store_dwordx4 {v(R, 4)}, {v(V_ST)}, {s(SRD_WS, 4)}, {s(S_T0)} offen{STP}")
        e.last_store = e.vm(f"buffer_store_dwordx4 {v(R + 4, 4)}, {v(V_ST)}, {s(SRD_WS, 4)}, {s(S_T0)} offen offset:1024{STP}"); yield

    fidx = [(idx, m) for idx, (k, m) in enumerate(tilesA) if k == 'F']
    reserved = set(range(4, 10)) if stiles else set()
    if half == 1 and typ == 'X':
        e("s_setprio 0")
    if half == 0 and typ == 'X':
        e("s_setprio 1")
    EF = ACC[2] + 4
    S_GR, S_CARRY = int(os.environ.get("S_GR", "19")), 23
    EF_C = int(os.environ.get("EF_C", "3"))
    EF_LOAD = 8 * EF_C + 3

    def ef_check():
        lab = e.newlabel("efc_skip")
        lp = e.newlabel("efc_poll")
        e(f"s_cmp_lg_u32 {s(S_W)}, 0")
        e(f"s_cbranch_scc1 {lab}")
        e(f"s_mov_b32 {s(S_SPIN)}, 0")
        e(f"s_waitcnt vmcnt({min(63, e.vm_seq - tok['ef_seq'])})")
        e.label(lp)
        e(f"v_cmp_ne_u32 {s(S_M0, 2)}, {s(S_EPOCH)}, {v(EF)}")
        for q in range(1, 4):
            e(f"v_cmp_ne_u32 vcc, {s(S_EPOCH)}, {v(EF + q)}")
            e(f"s_or_b64 {s(S_M0, 2)}, {s(S_M0, 2)}, vcc")
        e(f"s_cmp_eq_u64 {s(S_M0, 2)}, 0")
        e(f"s_cbranch_scc1 {lab}")
        e("s_sleep 2")
        e(f"s_mov_b32 {s(S_T0)}, {WS_EF}")
        for q in range(2):
            e(f"buffer_load_dword {v(EF + q)}, {v(EF + 4)}, {s(SRD_WS, 4)}, {s(S_T0)} offen offset:{q * 2048} sc1")
        e(f"s_mov_b32 {s(S_T0)}, {WS_EF + 4096}")
        for q in range(2, 4):
            e(f"buffer_load_dword {v(EF + q)}, {v(EF + 4)}, {s(SRD_WS, 4)}, {s(S_T0)} offen offset:{(q - 2) * 2048} sc1")
        e("s_waitcnt vmcnt(0)")
        e(f"s_add_u32 {s(S_SPIN)}, {s(S_SPIN)}, 1")
        e(f"s_cmp_lt_u32 {s(S_SPIN)}, 0x4000")
        e(f"s_cbranch_scc1 {lp}")
        e.label(lab)

    for S in range(32):
        c, u = S // 8, S % 8
        if S == 1 and stiles:
            side.add(job_pass1())
        if S == 2 and not stiles:
            for idx, m in fidx:
                side.add(ffn_epilogue(e, ACC[idx], TMP, S_A2A, m))
        if S == EF_LOAD and half == 0:
            lab = e.newlabel("efl_skip")
            e(f"v_lshlrev_b32 {v(EF + 4)}, 5, v0")
            e(f"s_cmp_lg_u32 {s(S_W)}, 0")
            e(f"s_cbranch_scc1 {lab}")
            e(f"s_mov_b32 {s(S_T0)}, {WS_EF}")
            for q in range(4):
                e(f"buffer_load_dword {v(EF + q)}, {v(EF + 4)}, {s(SRD_WS, 4)}, {s(S_T0)} offen offset:{q * 2048 if q < 2 else 0} sc1") if q < 2 else None
            e(f"s_mov_b32 {s(S_T0)}, {WS_EF + 4096}")
            for q in range(2, 4):
                e(f"buffer_load_dword {v(EF + q)}, {v(EF + 4)}, {s(SRD_WS, 4)}, {s(S_T0)} offen offset:{(q - 2) * 2048} sc1")
            e.label(lab)
            tok['ef_seq'] = e.vm_seq
        if S == 5:
            if stiles:
                side.drain()
            e.wait(lg=e.lg_seq - 1)
            e("s_barrier")
            if stiles:
                blk_publish()
                for idx, m in fidx:
                    side.add(ffn_epilogue(e, ACC[idx], TMP, S_A2A, m))
        if u == 7 and c < 3:
            need_unit(11 if c == 0 else 9 + c)
            if c == 2 and stiles:
                stamp(e, SV, 40)
                blk_carry()
                stamp(e, SV, 41)
            if c == EF_C and half == 0:
                ef_check()
            e.wait(vm=utok[9 + c], lg=e.lg_seq - 1)
            stamp(e, SV, 30 + 2 * c)
            e("s_barrier")
            stamp(e, SV, 31 + 2 * c)
        if S == S_CARRY and stiles:
            side.add(job_final())
        buf = V_FR + 8 * (S % 2)
        for idx in range(2):
            e.wait(lg=ftok[('B', S, idx)])
            mfma(e, ACC[3 + idx], buf + 4 * idx, V_X + 4 * S, S == 0)
            if S < 31:
                readB(S + 1, idx)
            if idx == 0:
                dpump()
            side.pump(4 if S < S_CARRY else 6)
        if S == 9 and half == 0:
            lab = e.newlabel("g_skip")
            e(f"s_cmp_lg_u32 {s(S_W)}, 0")
            e(f"s_cbranch_scc1 {lab}")
            e(f"v_lshlrev_b32 {v(ACC[2] + 9)}, 2, v0")
            e("s_mov_b64 exec, 0xff")
            e(f"ds_read_b32 {v(ACC[2] + 10)}, {v(ACC[2] + 9)} offset:{0}") if False else None
            e(f"v_add_u32 {v(ACC[2] + 11)}, {L_MISC + 64}, {v(ACC[2] + 9)}")
            e(f"ds_read_b32 {v(ACC[2] + 10)}, {v(ACC[2] + 11)}")
            e("s_waitcnt lgkmcnt(0)")
            e(f"buffer_store_dword {v(ACC[2] + 10)}, {v(ACC[2] + 9)}, {s(SRD_WS, 4)}, {s(S_GOFF)} offen sc1")
            e("s_mov_b64 exec, -1")
            e.label(lab)
        if S == S_TOUCH:
            e(f"v_lshrrev_b32 v9, 1, v0")
            e(f"s_sub_u32 {s(S_T0)}, {s(S_NS)}, 1")
            e(f"v_min_u32 v9, {s(S_T0)}, v9")
            e(f"v_lshlrev_b32 v9, 10, v9")
            e(f"v_and_b32 v8, 1, v0")
            e(f"v_mul_u32_u24 v8, {KS * 1024}, v8")
            e(f"v_add_u32 v9, v9, v8")
            e(f"s_and_b32 {s(S_T0)}, {s(S_MT)}, 7")
            e(f"s_lshl_b32 {s(S_T0)}, {s(S_T0)}, 7")
            e(f"s_add_u32 {s(S_T0)}, {s(S_T0)}, {s(S_B0)}")
            e.vm(f"buffer_load_dword v8, v9, {s(SRD_WS, 4)}, {s(S_T0)} offen sc1")
        if S >= S_BSTART:
            n = 0
            for j in range(NBPRE):
                for which in range(2):
                    if n < BRATE and (j, which) not in bdone and j not in reserved and 2 * j + which <= S:
                        bload(j, which)
                        n += 1
        if S == S_GR and stiles:
            blk_grload()
        if FINE and S % 2 == 1:
            stamp(e, SV, 6 + S // 2)

    stamp(e, SV, 36)
    e.nop(8)
    ep = Sched()
    ep.add(ffn_epilogue(e, ACC[3], TMP, S_A2B, 2 * half))
    ep.add(ffn_epilogue(e, ACC[4], TMP, S_A2B, 2 * half + 1))
    side.pump(4)
    e.nop(4)
    cnt = 0
    while not (side.empty() and ep.empty()):
        side.pump(1)
        ep.pump(1)
        cnt += 1
        if cnt % TAILB == 0:
            pend = [(j, w_) for j in range(NBPRE) for w_ in range(2)
                    if (j, w_) not in bdone and (j not in reserved or side.empty())]
            if pend and not ep.empty():
                bload(*pend[0])
    stamp(e, SV, 42)
    e.wait(vm=e.last_store if e.last_store == e.vm_seq - 1 else e.vm_seq - 1)
    stamp(e, SV, 43)
    if EF_C == 3 and half == 0:
        ef_check()
    e("s_setprio 0")
    e("s_barrier")
    if half == 0:
        lab = e.newlabel("done_skip")
        e(f"s_cmp_lg_u32 {s(S_W)}, 0")
        e(f"s_cbranch_scc1 {lab}")
        e(f"s_lshl_b32 {s(S_T0)}, {s(S_I)}, 11")
        e(f"s_lshl_b32 {s(S_T1)}, {s(S_COL)}, 7")
        e(f"s_add_u32 {s(S_T0)}, {s(S_T0)}, {s(S_T1)}")
        e(f"s_add_u32 {s(S_T0)}, {s(S_T0)}, {WS_DONE}")
        e(f"v_mov_b32 v1, {s(S_EPOCH)}")
        e("v_mov_b32 v2, 0")
        e("s_mov_b64 exec, 1")
        e(f"buffer_store_dword v1, v2, {s(SRD_WS, 4)}, {s(S_T0)} offen sc1")
        e("s_mov_b64 exec, -1")
        e.label(lab)
    else:
        e.nop(16)
    for j in range(NBPRE):
        for which in range(2):
            if (j, which) not in bdone:
                bload(j, which)
    if STAMPS and SV != 15:
        e(f"v_mov_b32 v15, {v(SV)}")
    e("s_branch L_phase2")


def phase2(e):
    SV = 15
    e.label("L_phase2")
    SO = SRD_WD
    lab = e.newlabel("nopoll")
    e(f"s_cmp_lg_u32 {s(S_WV)}, 0")
    e(f"s_cbranch_scc1 {lab}")
    e("s_mov_b64 exec, 0xffff")
    e(f"s_lshr_b32 {s(S_T0)}, {s(S_MT)}, 1")
    e(f"s_lshl_b32 {s(S_T0)}, {s(S_T0)}, 11")
    e(f"s_add_u32 {s(S_T0)}, {s(S_T0)}, {WS_DONE}")
    e("v_lshlrev_b32 v2, 7, v0")
    e(f"s_mov_b32 {s(S_SPIN)}, 0")
    lp = e.newlabel("pd")
    lo = e.newlabel("pd_ok")
    e.label(lp)
    e(f"buffer_load_dword v1, v2, {s(SRD_WS, 4)}, {s(S_T0)} offen sc1")
    e("s_waitcnt vmcnt(0)")
    e(f"v_cmp_ne_u32 vcc, {s(S_EPOCH)}, v1")
    e(f"s_cbranch_vccz {lo}")
    e("s_sleep 1")
    e(f"s_add_u32 {s(S_SPIN)}, {s(S_SPIN)}, 1")
    e(f"s_cmp_lt_u32 {s(S_SPIN)}, 0x4000")
    e(f"s_cbranch_scc1 {lp}")
    e.label(lo)
    e("s_mov_b64 exec, -1")
    e.label(lab)
    A1 = S_T3
    srd(e, SO, P_OUT, 2048 * 2048)
    SRD2 = SRD_G
    e(f"s_add_u32 {s(SRD2)}, {s(P_WS)}, {KS * 1024}")
    e(f"s_addc_u32 {s(SRD2 + 1)}, {s(P_WS + 1)}, 0")
    e(f"s_and_b32 {s(SRD2 + 1)}, {s(SRD2 + 1)}, 0xffff")
    e(f"s_mov_b32 {s(SRD2 + 2)}, {WS_END - KS * 1024}")
    e(f"s_mov_b32 {s(SRD2 + 3)}, 0x00020000")
    e("v_and_b32 v1, 3, v0")
    e("v_bfe_u32 v2, v0, 3, 2")
    e("v_lshl_add_u32 v1, v2, 2, v1")
    e("v_bfe_u32 v2, v0, 2, 1")
    e("v_lshl_add_u32 v1, v2, 4, v1")
    e("v_lshlrev_b32 v1, 2, v1")
    e(f"s_lshl_b32 {s(S_T0)}, {s(S_W)}, 2")
    e(f"s_lshl_b32 {s(S_T1)}, {s(S_HALF)}, 5")
    e(f"s_add_u32 {s(S_T0)}, {s(S_T0)}, {s(S_T1)}")
    e("v_lshrrev_b32 v2, 4, v0")
    e(f"v_add_u32 v2, {s(S_T0)}, v2")
    e("v_and_b32 v3, 15, v0")
    e(f"s_lshl_b32 {s(S_T1)}, {s(S_NT)}, 6")
    e(f"v_lshl_add_u32 v3, v3, 2, {s(S_T1)}")
    e("v_lshlrev_b32 v3, 1, v3")
    e(f"s_lshl_b32 {s(S_T1)}, {s(S_MT)}, 6")
    e(f"v_add_u32 v4, {s(S_T1)}, v2")
    e("v_lshl_add_u32 v4, v4, 10, v3")
    e("v_lshlrev_b32 v5, 1, v4")
    e("v_lshlrev_b32 v2, 2, v2")
    e(f"s_lshl_b32 {s(S_GOFF)}, {s(S_MT)}, 8")
    e(f"s_add_u32 {s(S_GOFF)}, {s(S_GOFF)}, {WS_G}")
    e.vm_done = e.vm_seq = 0
    e(f"global_load_dwordx2 v[6:7], v3, {s(P_DSK, 2)}")
    e(f"buffer_load_dwordx2 v[8:9], v4, {s(SRD_X, 4)}, 0 offen")
    e(f"s_mov_b32 {s(S_T0)}, {16 * 1024}")
    e(f"buffer_load_dwordx2 v[10:11], v4, {s(SRD_X, 4)}, {s(S_T0)} offen")
    stamp(e, SV, 44)
    e("s_barrier")
    stamp(e, SV, 45)
    AC = 64
    free = [16 + 8 * k for k in range(6)]
    VL = 12
    e(f"v_mov_b32 {v(VL)}, {v(V_ST)}")
    aslot, bslot, atok, btok = {}, {}, {}, {}
    for j in range(NBPRE):
        bslot[j] = V_X + 8 * j

    def ld2(dst, base, j):
        rot_off(e, S_T0, j, base)
        e.vm(f"buffer_load_dwordx4 {v(dst, 4)}, {v(VL)}, {s(SRD_WS, 4)}, {s(S_T0)} offen{LDP}")
        return e.vm(f"buffer_load_dwordx4 {v(dst + 4, 4)}, {v(VL + 0)}, {s(SRD2, 4)}, {s(S_T0)} offen{LDP}")

    pending = []
    for j in range(NSMAX):
        if j >= NBPRE:
            pending.append(('B', j))
        pending.append(('A', j))
    def issue_next():
        while pending and free:
            k, j = pending.pop(0)
            r = free.pop(0)
            if k == 'A':
                aslot[j] = r
                atok[j] = ld2(r, S_A0, j)
            else:
                bslot[j] = r
                btok[j] = ld2(r, S_B0, j)
    issue_next()
    gt = e.vm(f"buffer_load_dword v13, v1, {s(SRD_WS, 4)}, {s(S_GOFF)} offen sc1")
    e.vm(f"buffer_load_dword v14, v1, {s(SRD_WS, 4)}, {s(S_GOFF)} offen offset:128 sc1")
    e.vm(f"buffer_load_dword v3, v2, {s(SRD_WS, 4)}, {s(S_GOFF)} offen sc1")
    e.vm(f"buffer_load_dword v4, v2, {s(SRD_WS, 4)}, {s(S_GOFF)} offen offset:64 sc1")
    for j in range(NSMAX):
        if j == 20:
            e(f"s_cmp_le_u32 {s(S_NS)}, 20")
            e("s_cbranch_scc1 L2_done")
        a, b = aslot[j], bslot[j]
        e.wait(vm=atok[j] - 1)
        mfma(e, AC, b, a, j == 0)
        mfma(e, AC + 16, b + 4, a, j == 0)
        e.wait(vm=atok[j])
        mfma(e, AC + 32, b, a + 4, j == 0)
        mfma(e, AC + 48, b + 4, a + 4, j == 0)
        free.append(a)
        free.append(b)
        issue_next()
    e.label("L2_done")
    stamp(e, SV, 46)
    for k in range(2):
        e(f"v_sub_f32 {v(1 + k)}, 1.0, {v(13 + k)}")
        e(f"v_cvt_pk_bf16_f32 {v(1 + k)}, {v(1 + k)}, {v(1 + k)}")
        e(f"v_lshlrev_b32 {v(1 + k)}, 16, {v(1 + k)}")
    e(f"s_cmp_lt_u32 {s(S_WV)}, 3")
    e("s_cselect_b64 vcc, -1, 0")
    e.nop(2)
    for k in range(2):
        e(f"v_cndmask_b32 {v(13 + k)}, {v(1 + k)}, {v(13 + k)}, vcc")
    e("v_and_b32 v1, 31, v0")
    e(f"v_mul_u32_u24 v1, {PITCH2}, v1")
    e("v_lshrrev_b32 v2, 5, v0")
    e("v_lshl_add_u32 v1, v2, 4, v1")
    e(f"s_mul_i32 {s(S_T0)}, {s(S_WV)}, {64 * PITCH2}")
    e(f"v_add_u32 v1, {s(S_T0)}, v1")
    e.nop(6)
    for mi in range(2):
        for ni in range(2):
            A = AC + 32 * mi + 16 * ni
            for a in range(4):
                for k in range(4):
                    e(f"v_mul_f32 {v(A + 4 * a + k)}, {v(13 + mi)}, {v(A + 4 * a + k)}")
                e.lds(f"ds_write_b128 v1, {v(A + 4 * a, 4)} offset:{mi * 32 * PITCH2 + ni * 128 + a * 32}")
    e("v_lshrrev_b32 v1, 4, v0")
    e(f"v_mul_u32_u24 v1, {PITCH2}, v1")
    e("v_and_b32 v2, 15, v0")
    e("v_lshl_add_u32 v1, v2, 4, v1")
    e(f"s_mul_i32 {s(S_T0)}, {s(S_WV)}, {8 * PITCH2}")
    e(f"v_add_u32 v1, {s(S_T0)}, v1")
    e(f"v_add_u32 v2, {4 * 64 * PITCH2}, v1")
    e("s_waitcnt vmcnt(0)")
    SK, DS = 16, 24
    for k in range(2):
        e(f"v_lshlrev_b32 {v(DS + 2 * k)}, 16, {v(6 + k)}")
        e(f"v_and_b32 {v(DS + 2 * k + 1)}, 0xffff0000, {v(6 + k)}")
    for p in range(2):
        for k in range(2):
            e(f"v_lshlrev_b32 {v(SK + 4 * p + 2 * k)}, 16, {v(8 + 2 * p + k)}")
            e(f"v_and_b32 {v(SK + 4 * p + 2 * k + 1)}, 0xffff0000, {v(8 + 2 * p + k)}")
        for k in range(4):
            e(f"v_mul_f32 {v(SK + 4 * p + k)}, {v(SK + 4 * p + k)}, {v(DS + k)}")
        for k in range(2):
            e(f"v_cvt_pk_bf16_f32 v28, {v(SK + 4 * p + 2 * k)}, {v(SK + 4 * p + 2 * k + 1)}")
            e(f"v_lshlrev_b32 {v(SK + 4 * p + 2 * k)}, 16, v28")
            e(f"v_and_b32 {v(SK + 4 * p + 2 * k + 1)}, 0xffff0000, v28")
        for k in range(4):
            e(f"v_mul_f32 {v(SK + 4 * p + k)}, {v(SK + 4 * p + k)}, {v(3 + p)}")
    e.wait_all_lg()
    stamp(e, SV, 47)
    e("s_barrier")
    stamp(e, SV, 48)
    toks = []
    for q in range(8):
        for p in range(2):
            ar = 1 if q < 4 else 2
            toks.append(e.lds(f"ds_read_b128 {v(AC + 8 * q + 4 * p, 4)}, {v(ar)} offset:{(q % 4) * 64 * PITCH2 + p * 4 * PITCH2}"))
    for q in range(8):
        e.wait(lg=toks[2 * q + 1])
        for k in range(8):
            e(f"v_add_f32 {v(SK + k)}, {v(SK + k)}, {v(AC + 8 * q + k)}")
    e.vm(f"buffer_store_dwordx4 {v(SK, 4)}, v5, {s(SO, 4)}, 0 offen")
    e(f"s_mov_b32 {s(S_T0)}, {16 * 2048}")
    e.vm(f"buffer_store_dwordx4 {v(SK + 4, 4)}, v5, {s(SO, 4)}, {s(S_T0)} offen")
    if STAMPS:
        stamp(e, SV, 49)
        e("s_waitcnt vmcnt(0)")
        stamp(e, SV, 50)
        stamp(e, SV, 61, True)
        e("s_lshl_b32 s96, s2, 3")
        e(f"s_add_u32 s96, s96, {s(S_WV)}")
        e("s_lshl_b32 s96, s96, 8")
        e(f"s_add_u32 s96, s96, {WS_STAMP}")
        e("v_lshl_add_u32 v1, v0, 2, s96")
        e(f"global_store_dword v1, {v(SV)}, {s(P_WS, 2)}")
    e.label("L_exit")
    e("s_endpgm")


def gen():
    e = Path()
    prologue_common(e)
    e(f"s_cmp_eq_u32 {s(S_JJ)}, 3")
    e("s_cbranch_scc1 L_Y")
    e(f"s_cmp_eq_u32 {s(S_HALF)}, 1")
    e("s_cbranch_scc1 L_X1")
    out = [e]
    for typ, half, lab in (('X', 0, None), ('X', 1, 'L_X1'), ('Y', 0, 'L_Y'), ('Y', 1, 'L_Y1')):
        p = e.fork()
        if lab:
            p.label(lab)
        if lab == 'L_Y':
            p(f"s_cmp_eq_u32 {s(S_HALF)}, 1")
            p("s_cbranch_scc1 L_Y1")
        path(p, typ, half)
        out.append(p)
    z = Path()
    phase2(z)
    out.append(z)
    return "".join(x.text() for x in out)


HERE = os.path.dirname(os.path.abspath(__file__))
HEADER = open(os.path.join(HERE, "..", "cdna_kernels", NAME + ".s.ref")).read()


def main():
    hdr = []
    for line in HEADER.splitlines():
        if line.startswith(";") and "@launch" not in line:
            hdr.append(line)
        elif not line.startswith(";"):
            break
    out = "\n".join(hdr) + "\n"
    out += f"; @launch grid=(256,1,1) block=(512,1,1) lds={LDS_BYTES}\n"
    out += '.amdgcn_target "amdgcn-amd-amdhsa--gfx950"\n.text\n'
    name = NAME + "_kernel"
    out += f".globl {name}\n.p2align 8\n.type {name},@function\n{name}:\n" + gen()
    out += '.section .rodata,"a"\n'
    out += f""".p2align 6
.amdhsa_kernel {name}
  .amdhsa_next_free_vgpr 256
  .amdhsa_next_free_sgpr 102
  .amdhsa_accum_offset 256
  .amdhsa_group_segment_fixed_size 0
  .amdhsa_kernarg_size 136
  .amdhsa_user_sgpr_count 2
  .amdhsa_user_sgpr_kernarg_segment_ptr 1
  .amdhsa_system_sgpr_workgroup_id_x 1
  .amdhsa_float_denorm_mode_32 3
  .amdhsa_float_denorm_mode_16_64 3
.end_amdhsa_kernel
"""
    dst = sys.argv[1] if len(sys.argv) > 1 else os.path.join(HERE, "..", "cdna_kernels", NAME + ".s")
    open(dst, "w").write(out)
    print("wrote", dst, len(out), "bytes")


if __name__ == "__main__":
    main()
```

```python
import sys, os
sys.path.insert(0, os.path.dirname(os.path.abspath(__file__)))
from asmlib import Emit, v, s

NAME = "gated_mix__ssm_conv_s5__swiglu_ffn__prompt"


def env(name, default):
    return int(os.environ.get(name, str(default)))


STAMPS = env("STAMPS", 0)
FINE = env("FINE", 0)
ROTMASK = env("ROTMASK", 7)
CODEPF = env("CODEPF", 1)
JR0, JR1 = env("JR0", 3), env("JR1", 2)
S_JOBS = env("S_JOBS", 10)
S_GR = env("S_GR", 19)
EARLYB = env("EARLYB", 1)
S_QUIET = env("S_QUIET", 18)
S_BTA = env("S_BTA", -1)
S_BT = env("S_BT", 6)
S_BS = env("S_BS", 18)
BLAT = env("BLAT", 6)
TAILCP = env("TAILCP", 10)

KS = 176
WS_A2 = 0
A2_BYTES = 64 * KS * 1024
WS_G = A2_BYTES + 16 * KS * 1024
WS_AGG = WS_G + 8192
AGG_BYTES = 32 * 8192
WS_DONE = WS_AGG + AGG_BYTES
WS_END = WS_DONE + 32768
WS_STAMP = 24 << 20

REG = 16384
L_SEX = 131072
L_PAR = 147456
PARS = 1536
L_MISC = 161792
L_TOP = 131072
LDS_BYTES = 163840

LOG2E = 0x3FB8AA3B
NLOG2E = 0xBFB8AA3B
INV2PI = 0x3E22F983

S_ROT = 1
S_WV, S_W, S_HALF, S_I, S_CQ, S_JJ, S_UA, S_UB, S_ST0 = 3, 4, 5, 6, 7, 8, 9, 10, 11
S_T0, S_T1, S_T2, S_T3 = 12, 13, 14, 15
P_X, P_LRE, P_LIM, P_BRE, P_BIM, P_CRE, P_CIM, P_LDT = 16, 18, 20, 22, 24, 26, 28, 30
P_DSK, P_BX, P_WG, P_WU, P_WD, P_GW, P_OUT, P_DBG = 32, 34, 36, 38, 40, 42, 44, 46
P_WS = 48
S_MT, S_NT = 50, 51
SRD_X, SRD_S, SRD_G, SRD_U, SRD_WS, SRD_B = 52, 56, 60, 64, 68, 72
S_K0, S_K1 = 76, 77
S_LB0, S_LB1, S_LB2 = 78, 79, 80
S_NL2E = 81
S_A2A, S_A2B, S_A2S = 82, 83, 84
S_COL = 85
S_SPIN = 86
S_GOFF = 87
S_M0, S_M1 = 88, 90
S_PUB = 93
S_LBS = 94
S_B0 = 95
S_A0 = 35
S_EPOCH = 34

V_DA = 1
V_DB = 6
V_XA = 10
V_SA = 14
V_TA = 18
V_TB = 21
V_ST = 23
V_FR = 24
ACC = [48, 64, 80, 96, 112]
V_X = 128

DPP_X1 = "quad_perm:[1,0,3,2] row_mask:0xf bank_mask:0xf"
DPP_X2 = "quad_perm:[2,3,0,1] row_mask:0xf bank_mask:0xf"


class Path(Emit):
    cnt = 0

    def newlabel(self, base):
        Path.cnt += 1
        return f"L_{base}_{Path.cnt}"

    def fork(self):
        e = Path()
        e.vm_seq, e.vm_done, e.lg_seq, e.lg_done = self.vm_seq, self.vm_done, self.lg_seq, self.lg_done
        return e


class Sched:
    def __init__(self):
        self.q = []

    def add(self, gen):
        self.q.append(gen)

    def pump(self, n):
        while n > 0 and self.q:
            try:
                next(self.q[0])
                n -= 1
            except StopIteration:
                self.q.pop(0)

    def drain(self):
        self.pump(1 << 30)

    def empty(self):
        return not self.q


def run(gen):
    for _ in gen:
        pass


def srd(e, d, ptr, nbytes):
    e(f"s_mov_b32 {s(d)}, {s(ptr)}")
    e(f"s_and_b32 {s(d + 1)}, {s(ptr + 1)}, 0xffff")
    e(f"s_mov_b32 {s(d + 2)}, {nbytes}")
    e(f"s_mov_b32 {s(d + 3)}, 0x00020000")


def stamp(e, vr, idx, real=False):
    if not STAMPS:
        return
    e(f"{'s_memrealtime' if real else 's_memtime'} s[96:97]")
    e("s_waitcnt lgkmcnt(0)")
    e(f"v_writelane_b32 {v(vr)}, s96, {idx}")


def mfma(e, d, a, b, first):
    c = "0" if first else v(d, 16)
    e(f"v_mfma_f32_32x32x16_bf16 {v(d, 16)}, {v(a, 4)}, {v(b, 4)}, {c}")


def dma(e, voff, srd_, soff, off=0):
    o = f" offset:{off}" if off else ""
    return e.vm(f"buffer_load_dwordx4 {v(voff)}, {s(srd_, 4)}, {s(soff)} offen{o} lds")


def spin_tail(e, lp, sleep=1):
    e(f"s_add_u32 {s(S_SPIN)}, {s(S_SPIN)}, 1")
    e(f"s_cmp_lt_u32 {s(S_SPIN)}, 0x4000")
    e(f"s_cbranch_scc1 {lp}")


def prologue_common(e):
    e("s_cmp_ge_u32 s2, 256")
    e("s_cbranch_scc1 L_exit")
    if STAMPS:
        e("s_memtime s[98:99]")
        e("s_memrealtime s[100:101]")
    e(f"s_load_dwordx16 {s(16, 16)}, s[0:1], 0")
    e(f"s_load_dwordx16 {s(32, 16)}, s[0:1], 64")
    e(f"s_load_dwordx2 {s(48, 2)}, s[0:1], 128")
    if CODEPF:
        e("s_getpc_b64 s[4:5]")
        e.label("L_pc")
        e("s_lshr_b32 s6, s2, 3")
        e("s_lshl_b32 s6, s6, 4")
        e("v_and_b32 v2, 15, v0")
        e("v_add_u32 v2, s6, v2")
        e("v_lshlrev_b32 v2, 7, v2")
        e("v_min_u32 v2, L_code_end-L_pc-4, v2")
        e("v_cmp_gt_u32 vcc, 16, v0")
        e("s_and_saveexec_b64 s[8:9], vcc")
        e("s_cbranch_execz L_nopf")
        e("global_load_dword v223, v2, s[4:5]")
        e.label("L_nopf")
        e("s_mov_b64 exec, s[8:9]")
    e("v_lshrrev_b32 v1, 6, v0")
    e("v_and_b32 v0, 63, v0")
    e(f"v_readfirstlane_b32 {s(S_WV)}, v1")
    e(f"s_and_b32 {s(S_T0)}, s2, 7")
    e(f"s_lshr_b32 {s(S_T1)}, s2, 3")
    e(f"s_lshr_b32 {s(S_CQ)}, {s(S_T0)}, 1")
    e(f"s_and_b32 {s(S_T2)}, {s(S_T0)}, 1")
    e(f"s_lshl_b32 {s(S_T3)}, {s(S_T2)}, 3")
    e(f"s_and_b32 {s(S_I)}, {s(S_T1)}, 7")
    e(f"s_add_u32 {s(S_I)}, {s(S_I)}, {s(S_T3)}")
    e(f"s_lshr_b32 {s(S_JJ)}, {s(S_T1)}, 3")
    e(f"s_and_b32 {s(S_W)}, {s(S_WV)}, 3")
    e(f"s_lshr_b32 {s(S_HALF)}, {s(S_WV)}, 2")
    e(f"s_lshl_b32 {s(S_MT)}, {s(S_CQ)}, 3")
    e(f"s_and_b32 {s(S_T3)}, {s(S_T1)}, 7")
    e(f"s_add_u32 {s(S_MT)}, {s(S_MT)}, {s(S_T3)}")
    e(f"s_lshl_b32 {s(S_NT)}, {s(S_T2)}, 2")
    e(f"s_add_u32 {s(S_NT)}, {s(S_NT)}, {s(S_JJ)}")
    e(f"s_mul_i32 {s(S_UA)}, {s(S_CQ)}, 7")
    e(f"s_lshl_b32 {s(S_T2)}, {s(S_JJ)}, 1")
    e(f"s_add_u32 {s(S_UA)}, {s(S_UA)}, {s(S_T2)}")
    e(f"s_add_u32 {s(S_UB)}, {s(S_UA)}, 1")
    e(f"s_cmp_eq_u32 {s(S_JJ)}, 3")
    e(f"s_cselect_b32 {s(S_UB)}, {s(S_UA)}, {s(S_UB)}")
    e(f"s_lshl_b32 {s(S_ST0)}, {s(S_CQ)}, 3")
    e(f"s_add_u32 {s(S_ST0)}, {s(S_ST0)}, {s(S_JJ)}")
    e(f"s_lshl_b32 {s(S_COL)}, {s(S_CQ)}, 2")
    e(f"s_add_u32 {s(S_COL)}, {s(S_COL)}, {s(S_JJ)}")
    e(f"s_cmp_eq_u32 {s(S_JJ)}, 3")
    e(f"s_cselect_b32 {s(S_T0)}, 2, 0")
    e(f"s_add_u32 {s(S_T0)}, {s(S_T0)}, {s(S_HALF)}")
    e(f"s_cmp_eq_u32 {s(S_T0)}, 1")
    e("s_cbranch_scc1 L_X1")
    e(f"s_cmp_eq_u32 {s(S_T0)}, 2")
    e("s_cbranch_scc1 L_Y0")
    e(f"s_cmp_eq_u32 {s(S_T0)}, 3")
    e("s_cbranch_scc1 L_Y1")


def krot(e, dst, add, mul):
    e(f"s_add_u32 {s(dst)}, {s(S_ROT)}, {add}")
    e(f"s_and_b32 {s(dst)}, {s(dst)}, 7")
    e(f"s_mul_i32 {s(dst)}, {s(dst)}, {mul}")


def unit_gen(e, typ, half, unit, utok):
    slot = unit % 4
    if unit >= 8:
        c = unit - 8
        e(f"s_add_u32 m0, {s(S_LB2)}, {slot * 4096}")
        krot(e, S_K1, 2 * c + half, 64 * 3584)
        dma(e, V_DB, SRD_G, S_K1); yield
        dma(e, V_DB + 1, SRD_G, S_K1, 1024); yield
        e(f"s_add_u32 m0, {s(S_LB2)}, {4 * REG + slot * 4096}")
        e("s_nop 0")
        dma(e, V_DB + 2, SRD_U, S_K1); yield
        utok[unit] = dma(e, V_DB + 3, SRD_U, S_K1, 1024); yield
        return
    if half == 1:
        e(f"s_add_u32 m0, {s(S_LB0)}, {slot * 4096}")
        krot(e, S_K0, unit, 128)
        for q in range(4):
            utok[unit] = dma(e, V_DA + q, SRD_X, S_K0, 1024 * q); yield
        return
    if typ == 'X':
        e(f"s_add_u32 m0, {s(S_LB0)}, {8 * REG + slot * 4096}")
        krot(e, S_K0, unit, 128)
        dma(e, V_DA, SRD_S, S_K0); yield
        e(f"s_add_u32 m0, {s(S_LB1)}, {4 * REG + slot * 4096}")
        e(f"s_mul_i32 {s(S_K1)}, {s(S_K0)}, {64 * 3584 // 128}")
        dma(e, V_DA + 1, SRD_G, S_K1); yield
        dma(e, V_DA + 2, SRD_G, S_K1, 1024); yield
        e(f"s_add_u32 m0, {s(S_LB1)}, {6 * REG + slot * 4096}")
        e("s_nop 0")
        dma(e, V_DA + 3, SRD_U, S_K1); yield
        utok[unit] = dma(e, V_DA + 4, SRD_U, S_K1, 1024); yield
        return
    for m in range(5):
        e(f"s_add_u32 m0, {s(S_LB0)}, {(4 + m) * REG + slot * 4096}")
        if m == 0:
            krot(e, S_K0, unit, 128)
        else:
            e(f"s_add_u32 {s(S_K0)}, {s(S_K0)}, 16384")
        utok[unit] = dma(e, V_DA, SRD_S, S_K0); yield


def ffn_epilogue(e, A, T, sbase, t, defer=None):
    G, U = A, A + 8
    for k in range(8):
        e(f"v_mul_f32 {v(T + k)}, {s(S_NL2E)}, {v(G + k)}"); yield
    for k in range(8):
        e(f"v_exp_f32 {v(T + k)}, {v(T + k)}"); yield
        e(f"v_mul_f32 {v(U + k)}, {v(G + k)}, {v(U + k)}"); yield
    for k in range(8):
        e(f"v_add_f32 {v(T + k)}, 1.0, {v(T + k)}"); yield
    for k in range(8):
        e(f"v_rcp_f32 {v(T + k)}, {v(T + k)}"); yield
        if k >= 2:
            e(f"v_mul_f32 {v(U + k - 2)}, {v(U + k - 2)}, {v(T + k - 2)}"); yield
    e(f"v_mul_f32 {v(U + 6)}, {v(U + 6)}, {v(T + 6)}"); yield
    e(f"v_mul_f32 {v(U + 7)}, {v(U + 7)}, {v(T + 7)}"); yield
    for p in range(4):
        e(f"v_cvt_pk_bf16_f32 {v(G + p)}, {v(U + 2 * p)}, {v(U + 2 * p + 1)}"); yield
    o = f" offset:{1024 * t}" if t else ""
    txt = f"buffer_store_dwordx4 {v(G, 4)}, {v(V_ST)}, {s(SRD_WS, 4)}, {s(sbase)} offen{o} sc1"
    if defer is not None:
        defer.append(txt)
    else:
        e.last_store = e.vm(txt); yield


def path(e, typ, half):
    T = 96
    SV = 95 if half == 0 else 5
    tok = {}
    utok = {}
    if STAMPS:
        e(f"v_mov_b32 {v(SV)}, 0")
    if half == 1:
        e("s_setprio 1")
    e(f"v_lshrrev_b32 {v(T)}, 3, v0")
    e(f"v_and_b32 {v(T + 1)}, 7, v0")
    e(f"v_lshrrev_b32 {v(T + 2)}, 4, v0")
    e(f"v_lshrrev_b32 {v(T + 3)}, 5, v0")
    e(f"v_and_b32 {v(T + 4)}, 31, v0")
    e(f"v_and_b32 {v(T + 5)}, 1, {v(T + 2)}")
    e(f"v_lshlrev_b32 {v(T + 5)}, 1, {v(T + 5)}")
    e(f"v_xor_b32 {v(T + 5)}, {v(T + 5)}, {v(T + 1)}")
    e(f"v_lshlrev_b32 {v(T + 5)}, 4, {v(T + 5)}")
    e(f"v_mul_u32_u24 {v(T + 6)}, 3584, {v(T)}")
    e(f"v_add_u32 {v(T + 5)}, {v(T + 5)}, {v(T + 6)}")
    e(f"v_lshlrev_b32 {v(V_ST)}, 4, v0")
    if half == 1:
        e(f"v_bfe_u32 {v(T + 14)}, v0, 3, 2")
        e(f"v_lshl_add_u32 {v(T + 14)}, {v(T + 3)}, 4, {v(T + 14)}")
        e(f"v_xor_b32 {v(T + 15)}, {v(T + 1)}, {v(T + 2)}")
        e(f"v_lshlrev_b32 {v(T + 15)}, 4, {v(T + 15)}")
        e(f"v_lshl_add_u32 {v(T + 14)}, {v(T + 14)}, 10, {v(T + 15)}")
        e(f"s_lshl_b32 {s(S_T0)}, {s(S_I)}, 17")
        e(f"s_lshl_b32 {s(S_T1)}, {s(S_W)}, 15")
        e(f"s_add_u32 {s(S_T0)}, {s(S_T0)}, {s(S_T1)}")
        e(f"v_add_u32 {v(V_DA)}, {s(S_T0)}, {v(T + 14)}")
        e(f"v_xor_b32 {v(T + 14)}, 64, {v(V_DA)}")
        e(f"v_add_u32 {v(V_DA + 1)}, {4096 - 1024}, {v(T + 14)}")
        e(f"v_add_u32 {v(V_DA + 2)}, {2 * (4096 - 1024)}, {v(V_DA)}")
        e(f"v_add_u32 {v(V_DA + 3)}, {3 * (4096 - 1024)}, {v(T + 14)}")
        e(f"s_lshl_b32 {s(S_LB0)}, {s(S_W)}, 14")
        e("s_waitcnt lgkmcnt(0)")
        srd(e, SRD_X, P_X, 2048 * 1024)
    else:
        e(f"s_lshr_b32 {s(S_T0)}, {s(S_W)}, 1")
        e(f"s_lshl_b32 {s(S_T0)}, {s(S_T0)}, 2")
        e(f"v_xor_b32 {v(T + 14)}, {v(T + 1)}, {v(T + 2)}")
        e(f"v_xor_b32 {v(T + 14)}, {s(S_T0)}, {v(T + 14)}")
        e(f"v_lshlrev_b32 {v(T + 14)}, 4, {v(T + 14)}")
        e(f"v_lshl_add_u32 {v(T + 14)}, {v(T)}, 10, {v(T + 14)}")
        e(f"s_lshl_b32 {s(S_T0)}, {s(S_ST0)}, 14")
        e(f"s_and_b32 {s(S_T1)}, {s(S_W)}, 1")
        e(f"s_lshl_b32 {s(S_T1)}, {s(S_T1)}, 13")
        e(f"s_add_u32 {s(S_T0)}, {s(S_T0)}, {s(S_T1)}")
        e(f"v_add_u32 {v(V_DA)}, {s(S_T0)}, {v(T + 14)}")
        e(f"s_lshl_b32 {s(S_LB0)}, {s(S_W)}, 10")
        if typ == 'X':
            e(f"s_mul_i32 {s(S_T0)}, {s(S_W)}, {16 * 3584}")
            e(f"s_lshl_b32 {s(S_T1)}, {s(S_UA)}, 7")
            e(f"s_add_u32 {s(S_T0)}, {s(S_T0)}, {s(S_T1)}")
            e(f"v_add_u32 {v(V_DA + 1)}, {s(S_T0)}, {v(T + 5)}")
            e(f"v_add_u32 {v(V_DA + 2)}, {8 * 3584 - 1024}, {v(V_DA + 1)}")
            e(f"v_xor_b32 {v(V_DA + 3)}, 64, {v(V_DA + 1)}")
            e(f"v_xor_b32 {v(V_DA + 4)}, 64, {v(V_DA + 2)}")
            e(f"s_lshr_b32 {s(S_LB1)}, {s(S_W)}, 1")
            e(f"s_lshl_b32 {s(S_LB1)}, {s(S_LB1)}, 14")
            e(f"s_and_b32 {s(S_T0)}, {s(S_W)}, 1")
            e(f"s_lshl_b32 {s(S_T0)}, {s(S_T0)}, 11")
            e(f"s_add_u32 {s(S_LB1)}, {s(S_LB1)}, {s(S_T0)}")
        e("s_waitcnt lgkmcnt(0)")
        e(f"s_cmp_lt_u32 {s(S_W)}, 2")
        e(f"s_cselect_b32 {s(SRD_S)}, {s(P_BRE)}, {s(P_BIM)}")
        e(f"s_cselect_b32 {s(SRD_S + 1)}, {s(P_BRE + 1)}, {s(P_BIM + 1)}")
        e(f"s_and_b32 {s(SRD_S + 1)}, {s(SRD_S + 1)}, 0xffff")
        e(f"s_mov_b32 {s(SRD_S + 2)}, {512 * 1024}")
        e(f"s_mov_b32 {s(SRD_S + 3)}, 0x00020000")
        if typ == 'X':
            srd(e, SRD_G, P_WG, 512 * 3584)
            srd(e, SRD_U, P_WU, 512 * 3584)
    if STAMPS:
        e(f"v_writelane_b32 {v(SV)}, s98, 0")
        e(f"v_writelane_b32 {v(SV)}, s100, 60")
    stamp(e, SV, 1)
    e(f"s_lshl_b32 {s(S_ROT)}, {s(S_JJ)}, 1")
    e(f"s_add_u32 {s(S_ROT)}, {s(S_ROT)}, {s(S_I)}")
    e(f"s_and_b32 {s(S_ROT)}, {s(S_ROT)}, {ROTMASK}")
    run(unit_gen(e, typ, half, 0, utok))
    stamp(e, SV, 51)
    G = 224
    PP = 236
    if half == 0:
        lab = e.newlabel("ep_skip")
        e(f"v_mov_b32 {v(PP + 1)}, 0")
        e(f"s_lshl_b32 {s(S_T0)}, {s(S_W)}, 3")
        e(f"s_or_b32 {s(S_T0)}, {s(S_T0)}, s2")
        e(f"s_cmp_ge_u32 {s(S_T0)}, 8")
        e(f"s_cbranch_scc1 {lab}")
        e(f"s_memrealtime {s(S_M0, 2)}")
        e("s_waitcnt lgkmcnt(0)")
        e(f"s_or_b32 {s(S_T0)}, {s(S_M0)}, 1")
        e(f"v_mov_b32 {v(PP)}, {s(S_T0)}")
        e("s_mov_b64 exec, 1")
        e(f"global_atomic_cmpswap {v(PP + 1)}, {v(PP, 2)}, {s(P_DBG, 2)} sc1")
        e("s_mov_b64 exec, -1")
        e.label(lab)
        srd(e, SRD_X, P_X, 2048 * 1024)
    if not (half == 0 and typ == 'X'):
        srd(e, SRD_G, P_WG, 512 * 3584)
        srd(e, SRD_U, P_WU, 512 * 3584)
    srd(e, SRD_WS, P_WS, WS_END)
    e(f"s_mov_b32 {s(S_NL2E)}, {NLOG2E:#x}")
    e("s_barrier")
    if half == 1:
        run(unit_gen(e, typ, half, 1, utok))
    stamp(e, SV, 52)
    e(f"s_lshl_b32 {s(S_T0)}, {s(S_I)}, 7")
    e(f"s_lshl_b32 {s(S_T1)}, {s(S_COL)}, 3")
    e(f"s_add_u32 {s(S_T0)}, {s(S_T0)}, {s(S_T1)}")
    e(f"s_add_u32 {s(S_T0)}, {s(S_T0)}, {s(S_WV)}")
    e(f"s_lshl_b32 {s(S_T1)}, {s(S_T0)}, 10")
    e(f"s_lshl_b32 {s(S_GOFF)}, {s(S_T0)}, 2")
    e(f"s_add_u32 {s(S_GOFF)}, {s(S_GOFF)}, {WS_G}")
    e(f"v_add_u32 {v(PP + 3)}, {s(S_T1)}, {v(V_ST)}")
    own0 = 0 if half == 0 else 2
    e(f"s_add_u32 {s(S_PUB)}, {s(S_ST0)}, {s(S_W)}")
    e(f"s_lshl_b32 {s(S_PUB)}, {s(S_PUB)}, 13")
    e(f"s_add_u32 {s(S_PUB)}, {s(S_PUB)}, {WS_AGG + own0 * 8192}")
    e(f"s_lshl_b32 {s(S_T0)}, {s(S_I)}, 8")
    e(f"s_add_u32 {s(S_PUB)}, {s(S_PUB)}, {s(S_T0)}")
    if half == 0:
        e(f"s_cmp_eq_u32 {s(S_W)}, 0")
        e(f"s_cselect_b32 {s(S_T1)}, 4, 0")
        e(f"v_mul_u32_u24 {v(G + 8)}, {s(S_T1)}, {v(T + 3)}")
        e(f"s_add_u32 {s(S_T0)}, {s(S_ST0)}, {s(S_W)}")
        e(f"v_add_u32 {v(G + 8)}, {s(S_T0)}, {v(G + 8)}")
        e(f"v_min_u32 {v(G + 8)}, 31, {v(G + 8)}")
        e(f"v_and_b32 {v(G + 9)}, 30, v0")
        e(f"v_lshl_add_u32 {v(G + 8)}, {v(G + 8)}, 5, {v(G + 9)}")
    e(f"s_mul_i32 {s(S_T0)}, {s(S_W)}, {16 * 3584}")
    e(f"s_lshl_b32 {s(S_T1)}, {s(S_UB)}, 7")
    e(f"s_add_u32 {s(S_T0)}, {s(S_T0)}, {s(S_T1)}")
    e(f"v_add_u32 {v(V_DB)}, {s(S_T0)}, {v(T + 5)}")
    e(f"v_add_u32 {v(V_DB + 1)}, {8 * 3584 - 1024}, {v(V_DB)}")
    e(f"v_xor_b32 {v(V_DB + 2)}, 64, {v(V_DB)}")
    e(f"v_xor_b32 {v(V_DB + 3)}, 64, {v(V_DB + 1)}")
    e(f"v_bfe_u32 {v(T + 6)}, v0, 1, 3")
    e(f"v_xor_b32 {v(T + 6)}, {v(T + 6)}, {v(T + 3)}")
    e(f"v_lshlrev_b32 {v(T + 6)}, 4, {v(T + 6)}")
    e(f"v_lshl_add_u32 {v(T + 6)}, {v(T + 4)}, 7, {v(T + 6)}")
    e(f"s_lshl_b32 {s(S_T0)}, {s(S_W)}, 14")
    e(f"v_add_u32 {v(V_XA)}, {s(S_T0)}, {v(T + 6)}")
    for u in range(1, 4):
        e(f"v_xor_b32 {v(V_XA + u)}, {32 * u}, {v(V_XA)}")
    e(f"v_bfe_u32 {v(T + 7)}, v0, 2, 2")
    e(f"v_lshl_add_u32 {v(T + 8)}, {v(T + 3)}, 3, {v(T + 7)}")
    e(f"v_lshlrev_b32 {v(T + 8)}, 7, {v(T + 8)}")
    e(f"v_and_b32 {v(T + 11)}, 3, v0")
    e(f"v_lshl_add_u32 {v(T + 8)}, {v(T + 11)}, 3, {v(T + 8)}")
    e(f"v_and_b32 {v(T + 9)}, 1, {v(T + 2)}")
    e(f"v_lshrrev_b32 {v(T + 10)}, 1, {v(T + 7)}")
    e(f"v_lshl_add_u32 {v(T + 10)}, {v(T + 9)}, 1, {v(T + 10)}")
    e(f"v_lshl_add_u32 {v(T + 8)}, {v(T + 10)}, 5, {v(T + 8)}")
    e(f"v_lshl_add_u32 {v(T + 10)}, {v(T + 9)}, 16, {v(T + 8)}")
    e(f"v_xor_b32 {v(V_TB)}, {64 * half}, {v(T + 10)}")
    e(f"v_xor_b32 {v(V_TB + 1)}, 32, {v(V_TB)}")
    if typ == 'X':
        tilesA = [('S', 0), ('F', 0)] if half == 0 else [('F', 1), ('F', 2), ('F', 3)]
    else:
        tilesA = [('S', 0), ('S', 1)] if half == 0 else [('S', 2), ('S', 3), ('S', 4)]
    stiles = [m for k, m in tilesA if k == 'S']
    ft = [m for k, m in tilesA if k == 'F']
    if ft:
        e(f"v_lshl_add_u32 {v(T + 10)}, {v(T + 9)}, 15, {v(T + 8)}")
        e(f"v_add_u32 {v(T + 10)}, {4 * REG}, {v(T + 10)}")
        for idx, t in enumerate(ft):
            e(f"v_xor_b32 {v(V_TA + idx)}, {32 * t}, {v(T + 10)}")
    if stiles:
        e(f"v_and_b32 {v(T + 12)}, 1, v0")
        e(f"v_lshrrev_b32 {v(T + 13)}, 1, {v(T + 4)}")
        e(f"v_lshl_add_u32 {v(T + 13)}, {v(T + 12)}, 4, {v(T + 13)}")
        e(f"v_bfe_u32 {v(T + 14)}, {v(T + 13)}, 1, 2")
        e(f"v_lshl_add_u32 {v(T + 14)}, {v(T + 12)}, 2, {v(T + 14)}")
        e(f"v_xor_b32 {v(T + 14)}, {v(T + 14)}, {v(T + 3)}")
        e(f"v_lshlrev_b32 {v(T + 14)}, 4, {v(T + 14)}")
        e(f"v_lshl_add_u32 {v(T + 14)}, {v(T + 13)}, 7, {v(T + 14)}")
        base = (8 * REG) if typ == 'X' else (4 + stiles[0]) * REG
        e(f"v_add_u32 {v(V_SA)}, {base}, {v(T + 14)}")
        for u in range(1, 4):
            e(f"v_xor_b32 {v(V_SA + u)}, {32 * u}, {v(V_SA)}")
    e(f"s_lshr_b32 {s(S_LB2)}, {s(S_WV)}, 1")
    e(f"s_lshl_b32 {s(S_LB2)}, {s(S_LB2)}, 14")
    e(f"s_and_b32 {s(S_T0)}, {s(S_WV)}, 1")
    e(f"s_lshl_b32 {s(S_T0)}, {s(S_T0)}, 11")
    e(f"s_add_u32 {s(S_LB2)}, {s(S_LB2)}, {s(S_T0)}")
    e(f"s_lshl_b32 {s(S_LBS)}, {s(S_WV)}, 14")
    e(f"s_lshl_b32 {s(S_T0)}, {s(S_I)}, 2")
    e(f"s_add_u32 {s(S_T0)}, {s(S_T0)}, {s(S_W)}")
    e(f"s_mul_i32 {s(S_T0)}, {s(S_T0)}, {KS * 1024}")
    e(f"s_lshl_b32 {s(S_T1)}, {s(S_UA)}, 12")
    e(f"s_add_u32 {s(S_A2A)}, {s(S_T0)}, {s(S_T1)}")
    e(f"s_lshl_b32 {s(S_T1)}, {s(S_UB)}, 12")
    e(f"s_add_u32 {s(S_A2B)}, {s(S_T0)}, {s(S_T1)}")
    e(f"s_lshl_b32 {s(S_T1)}, {s(S_ST0)}, 11")
    e(f"s_add_u32 {s(S_A2S)}, {s(S_T0)}, {s(S_T1)}")
    e(f"s_add_u32 {s(S_A2S)}, {s(S_A2S)}, {112 * 1024}")
    e(f"s_mul_i32 {s(S_A0)}, {s(S_MT)}, {2 * KS * 1024}")
    if half == 0:
        e(f"s_lshl_b32 {s(S_T0)}, {s(S_W)}, 14")
        e(f"s_add_u32 {s(S_A0)}, {s(S_A0)}, {s(S_T0)}")
        e(f"s_add_u32 {s(S_A0)}, {s(S_A0)}, {112 * 1024}")
        e(f"s_lshl_b32 {s(S_B0)}, {s(S_NT)}, 16")
        e(f"s_lshl_b32 {s(S_T0)}, {s(S_W)}, 8")
        e(f"s_add_u32 {s(S_B0)}, {s(S_B0)}, {s(S_T0)}")
    else:
        e(f"s_mul_i32 {s(S_T0)}, {s(S_W)}, {28 * 1024}")
        e(f"s_add_u32 {s(S_A0)}, {s(S_A0)}, {s(S_T0)}")
        e(f"s_mul_i32 {s(S_B0)}, {s(S_W)}, {448 * 1024}")
        e(f"s_lshl_b32 {s(S_T0)}, {s(S_NT)}, 7")
        e(f"s_add_u32 {s(S_B0)}, {s(S_B0)}, {s(S_T0)}")
        srd(e, SRD_B, P_WD, 1792 * 1024)
    stamp(e, SV, 2)

    def small_gen():
        if half == 0:
            e.vm(f"global_load_ushort {v(G + 9)}, {v(G + 8)}, {s(P_LRE, 2)}")
            e.vm(f"global_load_ushort {v(G + 10)}, {v(G + 8)}, {s(P_LIM, 2)}")
            tok['par'] = e.vm(f"global_load_ushort {v(G + 11)}, {v(G + 8)}, {s(P_LDT, 2)}"); yield
        e.vm(f"buffer_load_dwordx4 {v(G, 4)}, {v(PP + 3)}, {s(SRD_X, 4)}, 0 offen"); yield
        tok['gw'] = e.vm(f"global_load_dwordx4 {v(G + 4, 4)}, {v(V_ST)}, {s(P_GW, 2)}"); yield

    def job_gate():
        TT = 96
        e.wait(vm=tok['gw'])
        for j in range(4):
            e(f"v_lshlrev_b32 {v(TT + 2 * j)}, 16, {v(G + j)}"); yield
            e(f"v_and_b32 {v(TT + 2 * j + 1)}, 0xffff0000, {v(G + j)}"); yield
            e(f"v_lshlrev_b32 {v(TT + 8 + 2 * j)}, 16, {v(G + 4 + j)}"); yield
            e(f"v_and_b32 {v(TT + 8 + 2 * j + 1)}, 0xffff0000, {v(G + 4 + j)}"); yield
        tok['xfree1'] = True
        for j in range(8):
            e(f"v_mul_f32 {v(TT + j)}, {v(TT + j)}, {v(TT + 8 + j)}"); yield
        for j in range(4):
            e(f"v_cvt_pk_bf16_f32 {v(TT + 8 + j)}, {v(TT + 2 * j)}, {v(TT + 2 * j + 1)}"); yield
        for j in range(4):
            e(f"v_lshlrev_b32 {v(TT + 2 * j)}, 16, {v(TT + 8 + j)}"); yield
            e(f"v_and_b32 {v(TT + 2 * j + 1)}, 0xffff0000, {v(TT + 8 + j)}"); yield
        for j in range(4):
            e(f"v_add_f32 {v(TT + j)}, {v(TT + j)}, {v(TT + 4 + j)}"); yield
        e(f"v_add_f32 {v(TT)}, {v(TT)}, {v(TT + 2)}"); yield
        e(f"v_add_f32 {v(TT + 1)}, {v(TT + 1)}, {v(TT + 3)}"); yield
        e(f"v_add_f32 {v(TT)}, {v(TT)}, {v(TT + 1)}"); yield
        a, b = TT, TT + 1
        for d in (DPP_X1, DPP_X2, "row_half_mirror row_mask:0xf bank_mask:0xf", "row_mirror row_mask:0xf bank_mask:0xf"):
            e.nop(2)
            e(f"v_add_f32_dpp {v(b)}, {v(a)}, {v(a)} {d}"); yield
            a, b = b, a
        e.nop(1)
        e(f"v_readlane_b32 {s(S_T0)}, {v(a)}, 16")
        e(f"v_readlane_b32 {s(S_T1)}, {v(a)}, 32")
        e(f"v_readlane_b32 {s(S_T2)}, {v(a)}, 48")
        e.nop(2)
        e(f"v_add_f32 {v(a)}, {s(S_T0)}, {v(a)}")
        e(f"v_mov_b32 {v(b)}, {s(S_T1)}")
        e(f"v_add_f32 {v(b)}, {s(S_T2)}, {v(b)}"); yield
        e(f"v_add_f32 {v(a)}, {v(a)}, {v(b)}"); yield
        e(f"v_cvt_pk_bf16_f32 {v(a)}, {v(a)}, {v(a)}"); yield
        e(f"v_lshlrev_b32 {v(a)}, 16, {v(a)}"); yield
        e(f"v_mul_f32 {v(a)}, {s(S_NL2E)}, {v(a)}"); yield
        e(f"v_exp_f32 {v(a)}, {v(a)}"); yield
        e(f"s_lshl_b32 {s(S_T0)}, {s(S_WV)}, 2")
        e(f"s_add_u32 {s(S_T0)}, {s(S_T0)}, {L_MISC + 64}")
        e(f"v_mov_b32 {v(b)}, {s(S_T0)}"); yield
        e(f"v_add_f32 {v(a)}, 1.0, {v(a)}"); yield
        e(f"v_rcp_f32 {v(a)}, {v(a)}"); yield
        e.nop(1)
        e(f"v_cvt_pk_bf16_f32 {v(a)}, {v(a)}, {v(a)}"); yield
        e(f"v_lshlrev_b32 {v(a)}, 16, {v(a)}"); yield
        e("s_mov_b64 exec, 1")
        e.lds(f"ds_write_b32 {v(b)}, {v(a)}")
        e("s_mov_b64 exec, -1"); yield

    def job_params():
        TT = 80
        P = 112
        LRE, LIM, LD = TT + 10, TT + 11, TT + 12
        e.wait(vm=tok['par'])
        e(f"v_lshlrev_b32 {v(LRE)}, 16, {v(G + 9)}"); yield
        e(f"v_lshlrev_b32 {v(LIM)}, 16, {v(G + 10)}"); yield
        e(f"v_lshlrev_b32 {v(LD)}, 16, {v(G + 11)}"); yield
        e(f"v_mul_f32 {v(LD)}, {LOG2E:#x}, {v(LD)}"); yield
        e(f"v_exp_f32 {v(LD)}, {v(LD)}"); yield
        e(f"v_mul_f32 {v(TT + 5)}, {v(LRE)}, {v(LRE)}"); yield
        e(f"v_cvt_pk_bf16_f32 {v(LD)}, {v(LD)}, {v(LD)}"); yield
        e(f"v_lshlrev_b32 {v(LD)}, 16, {v(LD)}"); yield
        e(f"v_mul_f32 {v(TT)}, {v(LD)}, {v(LRE)}"); yield
        e(f"v_mul_f32 {v(TT + 1)}, {v(LD)}, {v(LIM)}"); yield
        e(f"v_mul_f32 {v(TT)}, {LOG2E:#x}, {v(TT)}"); yield
        e(f"v_exp_f32 {v(TT)}, {v(TT)}"); yield
        e(f"v_mul_f32 {v(TT + 1)}, {INV2PI:#x}, {v(TT + 1)}"); yield
        e(f"v_rndne_f32 {v(TT + 2)}, {v(TT + 1)}"); yield
        e(f"v_sub_f32 {v(TT + 1)}, {v(TT + 1)}, {v(TT + 2)}"); yield
        e(f"v_cos_f32 {v(TT + 2)}, {v(TT + 1)}"); yield
        e(f"v_sin_f32 {v(TT + 3)}, {v(TT + 1)}"); yield
        e(f"v_fmac_f32 {v(TT + 5)}, {v(LIM)}, {v(LIM)}"); yield
        e(f"v_mul_f32 {v(TT + 2)}, {v(TT)}, {v(TT + 2)}"); yield
        e(f"v_mul_f32 {v(TT + 3)}, {v(TT)}, {v(TT + 3)}"); yield
        e(f"v_rcp_f32 {v(TT + 5)}, {v(TT + 5)}"); yield
        e(f"v_add_f32 {v(TT + 4)}, -1.0, {v(TT + 2)}"); yield
        e(f"v_mul_f32 {v(TT + 6)}, {v(TT + 4)}, {v(LRE)}"); yield
        e(f"v_fmac_f32 {v(TT + 6)}, {v(TT + 3)}, {v(LIM)}"); yield
        e(f"v_mul_f32 {v(TT + 7)}, {v(TT + 3)}, {v(LRE)}"); yield
        e(f"v_fma_f32 {v(TT + 7)}, -{v(TT + 4)}, {v(LIM)}, {v(TT + 7)}"); yield
        e(f"v_add_f32 {v(TT + 5)}, {v(TT + 5)}, {v(TT + 5)}"); yield
        e(f"v_mul_f32 {v(TT + 6)}, {v(TT + 6)}, {v(TT + 5)}"); yield
        e(f"v_mul_f32 {v(TT + 7)}, {v(TT + 7)}, {v(TT + 5)}"); yield
        e(f"v_and_b32 {v(TT + 8)}, 1, v0"); yield
        e(f"v_lshlrev_b32 {v(TT + 8)}, 31, {v(TT + 8)}"); yield
        e(f"v_xor_b32 {v(TT + 9)}, 0x80000000, {v(TT + 8)}"); yield
        e(f"v_xor_b32 {v(P + 8)}, {v(TT + 8)}, {v(TT + 6)}"); yield
        e(f"v_xor_b32 {v(P + 9)}, 0x80000000, {v(TT + 7)}"); yield
        e(f"v_mov_b32 {v(P)}, {v(TT + 2)}"); yield
        e(f"v_xor_b32 {v(P + 1)}, {v(TT + 9)}, {v(TT + 3)}"); yield

        def square():
            e(f"v_mul_f32 {v(TT + 4)}, {v(TT + 3)}, {v(TT + 3)}"); yield
            e(f"v_mul_f32 {v(TT + 5)}, {v(TT + 2)}, {v(TT + 3)}"); yield
            e(f"v_fma_f32 {v(TT + 2)}, {v(TT + 2)}, {v(TT + 2)}, -{v(TT + 4)}"); yield
            e(f"v_add_f32 {v(TT + 3)}, {v(TT + 5)}, {v(TT + 5)}"); yield
        for k_, nsq in ((2, 4), (4, 3), (6, 1)):
            for _ in range(nsq):
                yield from square()
            e(f"v_mov_b32 {v(P + k_)}, {v(TT + 2)}"); yield
            e(f"v_xor_b32 {v(P + k_ + 1)}, {v(TT + 9)}, {v(TT + 3)}"); yield
        e(f"s_cmp_eq_u32 {s(S_W)}, 0")
        e(f"s_cselect_b32 {s(S_T1)}, {4 * PARS}, 0")
        e(f"v_lshrrev_b32 {v(TT)}, 5, v0")
        e(f"v_mul_u32_u24 {v(TT)}, {s(S_T1)}, {v(TT)}"); yield
        e(f"v_and_b32 {v(TT + 1)}, 31, v0"); yield
        e(f"v_mul_u32_u24 {v(TT + 1)}, 48, {v(TT + 1)}"); yield
        e(f"s_mul_i32 {s(S_T0)}, {s(S_W)}, {PARS}")
        e(f"s_add_u32 {s(S_T0)}, {s(S_T0)}, {L_PAR}")
        e(f"v_add3_u32 {v(TT)}, {v(TT)}, {v(TT + 1)}, {s(S_T0)}"); yield
        e.lds(f"ds_write_b128 {v(TT)}, {v(P, 4)}"); yield
        e.lds(f"ds_write_b128 {v(TT)}, {v(P + 4, 4)} offset:16"); yield
        e.lds(f"ds_write_b64 {v(TT)}, {v(P + 8, 2)} offset:32"); yield

    side = Sched()
    dq = Sched()
    dtags = []
    ucomplete = {0, 1, 2} if half == 1 else {0, 1}

    def dadd(gen, tag):
        dq.add(gen)
        dtags.append(tag)

    def dpump():
        while dq.q:
            try:
                next(dq.q[0])
                return
            except StopIteration:
                dq.q.pop(0)
                ucomplete.add(dtags.pop(0))

    def need_unit(u):
        while u not in ucomplete:
            for _ in dq.q[0]:
                pass
            dq.q.pop(0)
            ucomplete.add(dtags.pop(0))

    if half == 0:
        run(unit_gen(e, typ, half, 1, utok))
        dadd(unit_gen(e, typ, half, 2, utok), 2)
    else:
        run(unit_gen(e, typ, half, 2, utok))
    dadd(unit_gen(e, typ, half, 3, utok), 3)
    e.wait(vm=utok[0])
    stamp(e, SV, 3)
    e("s_barrier")
    stamp(e, SV, 4)

    ftok = {}

    def readA(S, idx):
        st, u = S // 4, S % 4
        slot = st % 4
        buf = V_FR + 12 * (S % 2)
        if idx == 0:
            e.lds(f"ds_read_b128 {v(V_X + 4 * S, 4)}, {v(V_XA + u)} offset:{slot * 4096}")
        k, m = tilesA[idx]
        d = buf + 4 * idx
        if k == 'S':
            rel = 0 if typ == 'X' else (m - stiles[0]) * REG
            lt = e.lds(f"ds_read_b128 {v(d, 4)}, {v(V_SA + u)} offset:{rel + slot * 4096}")
        else:
            fi = ft.index(m)
            for rd in range(2):
                off = (u >> 1) * REG + slot * 4096 + (16 * (u & 1) + 4 * rd) * 128
                lt = e.lds(f"ds_read_b64_tr_b16 {v(d + 2 * rd, 2)}, {v(V_TA + fi)} offset:{off}")
        ftok[('A', S, idx)] = lt

    def readB(S, idx):
        c, u = S // 8, S % 8
        buf = V_FR + 8 * (S % 2)
        for rd in range(2):
            off = (u >> 1) * REG + c * 4096 + (16 * (u & 1) + 4 * rd) * 128
            lt = e.lds(f"ds_read_b64_tr_b16 {v(buf + 4 * idx + 2 * rd, 2)}, {v(V_TB + idx)} offset:{off}")
        ftok[('B', S, idx)] = lt

    def btouch(TB_):
        if half == 0:
            srd(e, SRD_B, P_CRE, 512 * 1024)
            srd(e, SRD_S, P_CIM, 512 * 1024)
        e(f"s_and_b32 {s(S_T3)}, {s(S_MT)}, 7")
        e(f"s_lshl_b32 {s(S_T3)}, {s(S_T3)}, 10")
        e(f"s_add_u32 {s(S_T3)}, {s(S_T3)}, {s(S_B0)}")
        if half == 1:
            e(f"v_min_u32 {v(TB_)}, 55, v0")
            e(f"v_lshlrev_b32 {v(TB_)}, 13, {v(TB_)}")
            tok['bt'] = e.vm(f"buffer_load_dword {v(TB_ + 1)}, {v(TB_)}, {s(SRD_B, 4)}, {s(S_T3)} offen")
        else:
            e(f"v_and_b32 {v(TB_)}, 7, v0")
            e(f"v_lshlrev_b32 {v(TB_)}, 13, {v(TB_)}")
            e(f"v_bfe_u32 {v(TB_ + 1)}, v0, 3, 1")
            e(f"v_lshl_add_u32 {v(TB_)}, {v(TB_ + 1)}, 7, {v(TB_)}")
            e.vm(f"buffer_load_dword {v(TB_ + 1)}, {v(TB_)}, {s(SRD_B, 4)}, {s(S_T3)} offen")
            tok['bt'] = e.vm(f"buffer_load_dword {v(TB_ + 2)}, {v(TB_)}, {s(SRD_S, 4)}, {s(S_T3)} offen")

    for idx in range(len(tilesA)):
        readA(0, idx)
    for S in range(32):
        st, u = S // 4, S % 4
        if S == S_JOBS:
            need_unit('small')
            if half == 0:
                side.add(job_params())
            side.add(job_gate())
        if u == 3:
            need_unit(st + 1)
            if st == 5:
                while 'xfree1' not in tok:
                    side.pump(1)
            if st == 7:
                side.drain()
            e.wait(vm=utok[st + 1], lg=e.lg_seq - 1)
            if not FINE:
                stamp(e, SV, 6 + 2 * st)
            e("s_barrier")
            if not FINE or st == 7:
                stamp(e, SV, 7 + 2 * st if not FINE else 5)
            dadd(unit_gen(e, typ, half, st + 4, utok), st + 4)
            if st == 0:
                dadd(small_gen(), 'small')
        buf = V_FR + 12 * (S % 2)
        for idx, (k, m) in enumerate(tilesA):
            e.wait(lg=ftok[('A', S, idx)])
            if k == 'S':
                mfma(e, ACC[idx], V_X + 4 * S, buf + 4 * idx, S == 0)
            else:
                mfma(e, ACC[idx], buf + 4 * idx, V_X + 4 * S, S == 0)
            if S < 31:
                readA(S + 1, idx)
            elif idx < 2:
                readB(0, idx)
            if idx == 0 or len(dq.q) > 1 or (half == 0 and u == 3):
                dpump()
            if half == 0 and len(dq.q) > 1:
                dpump()
            side.pump(JR0 if half == 0 else JR1)
        if S == S_BTA:
            need_unit(7)
            btouch(1)
        if S == 8 and half == 0:
            lab = e.newlabel("epl_skip")
            e(f"s_cmp_lg_u32 {s(S_W)}, 0")
            e(f"s_cbranch_scc1 {lab}")
            e(f"global_load_dword {v(PP + 2)}, {v(PP + 1)}, {s(P_DBG, 2)} sc1")
            e.label(lab)
            tok['ep_seq'] = e.vm_seq
        if S == 18 and half == 0:
            lab = e.newlabel("ep_skip")
            lp = e.newlabel("ep_poll")
            lo = e.newlabel("ep_ok")
            e(f"s_cmp_lg_u32 {s(S_W)}, 0")
            e(f"s_cbranch_scc1 {lab}")
            e(f"s_mov_b32 {s(S_SPIN)}, 0")
            e(f"s_waitcnt vmcnt({min(63, e.vm_seq - tok['ep_seq'])})")
            e.label(lp)
            e(f"v_cmp_ne_u32 vcc, 0, {v(PP + 2)}")
            e(f"s_cbranch_vccnz {lo}")
            e("s_sleep 2")
            e(f"global_load_dword {v(PP + 2)}, {v(PP + 1)}, {s(P_DBG, 2)} sc1")
            e("s_waitcnt vmcnt(0)")
            spin_tail(e, lp)
            e.label(lo)
            e(f"v_mov_b32 {v(PP)}, {L_MISC}")
            e(f"ds_write_b32 {v(PP)}, {v(PP + 2)}")
            e("s_waitcnt lgkmcnt(0)")
            e.label(lab)
        if S == 20:
            e(f"v_mov_b32 {v(PP + 4)}, {L_MISC}")
            tok['epl'] = e.lds(f"ds_read_b32 {v(PP + 4)}, {v(PP + 4)}")
        if S == 21:
            e.wait(lg=tok['epl'])
            e(f"v_readfirstlane_b32 {s(S_EPOCH)}, {v(PP + 4)}")

    TMP = 40
    TS = 1
    SC = 10
    pa = 20
    ns = len(stiles)
    if half == 0:
        GR = ACC[2] if not STAMPS else V_X + 64
        GC = TMP
        FT = V_X + 64
        resv = set(range(16, 24))
    else:
        GR = V_X + 48
        GC = V_X + 64
        FT = V_X + 48
        resv = set(range(12, 24))
    if not stiles:
        resv = set()

    def job_pass1():
        e(f"v_and_b32 {v(pa)}, 31, v0"); yield
        e(f"v_mul_u32_u24 {v(pa)}, 48, {v(pa)}"); yield
        e(f"v_add_u32 {v(pa)}, {L_PAR}, {v(pa)}"); yield
        for j, m in enumerate(stiles):
            lt = e.lds(f"ds_read_b64 {v(TMP + 2 * j, 2)}, {v(pa)} offset:{m * PARS}"); yield
        e(f"v_lshlrev_b32 {v(TS)}, 2, v0"); yield
        e(f"s_lshl_b32 {s(S_T0)}, {s(S_W)}, 8")
        e(f"s_add_u32 {s(S_T0)}, {s(S_T0)}, {L_SEX}")
        e(f"v_add_u32 {v(TS)}, {s(S_T0)}, {v(TS)}"); yield
        e(f"v_mov_b32 {v(TS + 1)}, 0"); yield
        for j, m in enumerate(stiles):
            e.lds(f"ds_write_b32 {v(TS)}, {v(TS + 1)} offset:{m * 2048}"); yield
        e.nop(4)
        e.wait(lg=lt)
        for u in range(1, 16):
            dst = u % 2
            for j in range(ns):
                src_ = ACC[j] if u == 1 else SC + 2 * j + (u + 1) % 2
                e(f"v_fma_f32 {v(SC + 2 * j + dst)}, {v(TMP + 2 * j)}, {v(src_)}, {v(ACC[j] + u)}"); yield
            if ns == 1:
                e.nop(1)
            for j in range(ns):
                src_ = ACC[j] if u == 1 else SC + 2 * j + (u + 1) % 2
                e(f"v_fmac_f32_dpp {v(SC + 2 * j + dst)}, {v(src_)}, {v(TMP + 2 * j + 1)} {DPP_X1}"); yield
        for j, m in enumerate(stiles):
            e.lds(f"ds_write_b32 {v(TS)}, {v(SC + 2 * j + 1)} offset:{m * 2048 + 1024}"); yield
        e(f"s_add_u32 {s(S_T0)}, {s(S_W)}, {stiles[0]}")
        e(f"s_mul_i32 {s(S_T1)}, {s(S_T0)}, {PARS}")
        e(f"v_add_u32 {v(TS + 2)}, {s(S_T1)}, {v(pa)}")
        e(f"s_lshl_b32 {s(S_T1)}, {s(S_T0)}, 11")
        e(f"s_add_u32 {s(S_T1)}, {s(S_T1)}, {L_SEX}")
        e(f"v_and_b32 {v(TS + 1)}, 31, v0")
        e(f"v_lshlrev_b32 {v(TS + 3)}, 3, {v(TS + 1)}")
        e(f"v_lshl_add_u32 {v(TS + 1)}, {v(TS + 1)}, 2, {s(S_T1)}"); yield

    def blk_publish():
        lab = e.newlabel("pub_skip")
        e(f"s_cmp_ge_u32 {s(S_W)}, {ns}")
        e(f"s_cbranch_scc1 {lab}")
        e(f"ds_read_b64 {v(SC, 2)}, {v(TS + 2)} offset:8")
        for q in range(8):
            e(f"ds_read_b32 {v(SC + 2 + q)}, {v(TS + 1)} offset:{1024 + q * 128}")
        e(f"s_add_u32 {s(S_T0)}, {s(S_PUB)}, 4096")
        e("s_waitcnt lgkmcnt(0)")
        for q in range(1, 8):
            e(f"v_fmac_f32 {v(SC + 2 + q)}, {v(SC)}, {v(SC + 1 + q)}")
            e.nop(1)
            e(f"v_fmac_f32_dpp {v(SC + 2 + q)}, {v(SC + 1 + q)}, {v(SC + 1)} {DPP_X1}")
        e(f"v_mov_b32 {v(SC + 1)}, {s(S_EPOCH)}")
        e(f"v_mov_b32 {v(SC)}, {v(SC + 9)}")
        e("s_mov_b32 exec_hi, 0")
        e(f"buffer_store_dwordx2 {v(SC, 2)}, {v(TS + 3)}, {s(SRD_WS, 4)}, {s(S_T0)} offen sc1")
        e("s_mov_b64 exec, -1")
        e.label(lab)
        e(f"v_lshrrev_b32 {v(SC + 2)}, 5, v0")
        e(f"v_sub_u32 {v(SC + 2)}, 1, {v(SC + 2)}")
        e(f"v_lshl_add_u32 {v(TS + 3)}, {v(SC + 2)}, 8, {v(TS + 3)}")

    def gr_issue(lend):
        for t in range(8):
            e(f"buffer_load_dwordx2 {v(GR + 2 * t, 2)}, {v(TS + 3)}, {s(SRD_WS, 4)}, {s(S_PUB)} offen offset:{3584 - 512 * t} sc1")
            if t < 7:
                e(f"s_cmp_eq_u32 {s(S_T1)}, {t + 1}")
                e(f"s_cbranch_scc1 {lend}")

    def blk_grload():
        lab = e.newlabel("grl_skip")
        e(f"s_cmp_ge_u32 {s(S_W)}, {ns}")
        e(f"s_cbranch_scc1 {lab}")
        e(f"s_cmp_eq_u32 {s(S_I)}, 0")
        e(f"s_cbranch_scc1 {lab}")
        e(f"s_add_u32 {s(S_T1)}, {s(S_I)}, 1")
        e(f"s_lshr_b32 {s(S_T1)}, {s(S_T1)}, 1")
        gr_issue(lab)
        e.label(lab)
        tok['gr_seq'] = e.vm_seq

    def blk_carry():
        lab = e.newlabel("car_skip")
        e(f"s_cmp_ge_u32 {s(S_W)}, {ns}")
        e(f"s_cbranch_scc1 {lab}")
        e(f"s_cmp_eq_u32 {s(S_I)}, 0")
        e(f"s_cbranch_scc1 {lab}")
        e(f"ds_read_b128 {v(GC, 4)}, {v(TS + 2)} offset:16")
        e(f"s_add_u32 {s(S_T1)}, {s(S_I)}, 1")
        e(f"s_lshr_b32 {s(S_T1)}, {s(S_T1)}, 1")
        e(f"s_bitcmp1_b32 {s(S_I)}, 0")
        e(f"s_cselect_b32 {s(S_M0 + 1)}, 0, -1")
        e(f"s_mov_b32 {s(S_M0)}, -1")
        e(f"s_mov_b32 {s(S_SPIN)}, 0")
        e(f"s_waitcnt vmcnt({min(63, e.vm_seq - tok['gr_seq'])})")
        lp, lchk, lok, lre = (e.newlabel(x) for x in ("car_poll", "car_chk", "car_ok", "car_re"))
        e.label(lp)
        e(f"s_mov_b64 {s(S_M1, 2)}, 0")
        for t in range(8):
            e(f"v_cmp_ne_u32 vcc, {s(S_EPOCH)}, {v(GR + 2 * t + 1)}")
            if t < 7:
                e(f"s_cmp_eq_u32 {s(S_T1)}, {t + 1}")
                e(f"s_cbranch_scc1 {lchk}")
                e(f"s_or_b64 {s(S_M1, 2)}, {s(S_M1, 2)}, vcc")
        e.label(lchk)
        e(f"s_and_b64 vcc, vcc, {s(S_M0, 2)}")
        e(f"s_or_b64 {s(S_M1, 2)}, {s(S_M1, 2)}, vcc")
        e(f"s_cbranch_scc0 {lok}")
        e(f"s_add_u32 {s(S_SPIN)}, {s(S_SPIN)}, 1")
        e(f"s_cmp_ge_u32 {s(S_SPIN)}, 0x4000")
        e(f"s_cbranch_scc1 {lok}")
        e("s_sleep 1")
        gr_issue(lre)
        e.label(lre)
        e("s_waitcnt vmcnt(0)")
        e(f"s_branch {lp}")
        e.label(lok)
        e("s_waitcnt lgkmcnt(0)")
        ACCU = GC + 4
        e(f"v_mov_b32 {v(ACCU)}, 0")
        for t in range(7, -1, -1):
            ls = e.newlabel("hs")
            e(f"s_cmp_le_u32 {s(S_T1)}, {t}")
            e(f"s_cbranch_scc1 {ls}")
            e(f"s_cmp_eq_u32 {s(S_T1)}, {t + 1}")
            e(f"s_cselect_b64 vcc, {s(S_M0, 2)}, -1")
            e(f"v_cndmask_b32 {v(GR + 2 * t)}, 0, {v(GR + 2 * t)}, vcc")
            e(f"v_fmac_f32 {v(GR + 2 * t)}, {v(GC + 2)}, {v(ACCU)}")
            e(f"v_fmac_f32_dpp {v(GR + 2 * t)}, {v(ACCU)}, {v(GC + 3)} {DPP_X1}")
            e(f"v_mov_b32 {v(ACCU)}, {v(GR + 2 * t)}")
            e.label(ls)
        e.nop(1)
        e(f"v_mul_f32 {v(ACCU + 1)}, {v(GC)}, {v(ACCU)}")
        e(f"v_fmac_f32_dpp {v(ACCU + 1)}, {v(ACCU)}, {v(GC + 1)} {DPP_X1}")
        e(f"v_mov_b32 {v(ACCU + 2)}, 0")
        e.nop(1)
        e(f"v_permlane32_swap_b32 {v(ACCU + 1)}, {v(ACCU + 2)}")
        e.nop(1)
        e(f"v_add_f32 {v(ACCU)}, {v(ACCU)}, {v(ACCU + 2)}")
        e("s_mov_b32 exec_hi, 0")
        e(f"ds_write_b32 {v(TS + 1)}, {v(ACCU)} offset:{7 * 128}")
        e("s_mov_b64 exec, -1")
        e("s_waitcnt lgkmcnt(0)")
        e.label(lab)

    def job_final():
        PR = FT
        EV = FT + 4 * ns
        CC = SC + 2
        OT = FT + 12 * ns
        for j, m in enumerate(stiles):
            e.lds(f"ds_read_b128 {v(PR + 4 * j, 4)}, {v(pa)} offset:{m * PARS}"); yield
            for q in range(8):
                lt = e.lds(f"ds_read_b32 {v(EV + 8 * j + q)}, {v(TS)} offset:{m * 2048 + q * 128}")
                if q % 2:
                    yield
        e(f"s_mul_i32 {s(S_LB0)}, {s(S_W)}, 1280")
        e(f"s_add_u32 {s(S_LB0)}, {s(S_LB0)}, {141312 if half == 0 else 155136}")
        e(f"v_and_b32 {v(SC)}, 15, v0"); yield
        e(f"v_mul_u32_u24 {v(SC)}, 80, {v(SC)}"); yield
        e(f"v_lshrrev_b32 {v(SC + 1)}, 5, v0"); yield
        e(f"v_lshl_add_u32 {v(SC)}, {v(SC + 1)}, 5, {v(SC)}"); yield
        e(f"v_add_u32 {v(SC)}, {s(S_LB0)}, {v(SC)}"); yield
        e(f"v_bfe_u32 {v(SC + 2)}, v0, 2, 2"); yield
        e(f"v_lshl_add_u32 {v(SC + 1)}, {v(SC + 2)}, 1, {v(SC + 1)}"); yield
        e(f"v_mul_u32_u24 {v(SC + 1)}, 80, {v(SC + 1)}"); yield
        e(f"v_and_b32 {v(SC + 2)}, 1, v0"); yield
        e(f"v_lshl_add_u32 {v(SC + 1)}, {v(SC + 2)}, 5, {v(SC + 1)}"); yield
        e(f"v_bfe_u32 {v(SC + 2)}, v0, 4, 1"); yield
        e(f"v_lshl_add_u32 {v(SC + 1)}, {v(SC + 2)}, 4, {v(SC + 1)}"); yield
        e(f"v_bfe_u32 {v(SC + 2)}, v0, 1, 1"); yield
        e(f"v_lshl_add_u32 {v(SC + 1)}, {v(SC + 2)}, 3, {v(SC + 1)}"); yield
        e(f"v_add_u32 {v(SC + 1)}, {s(S_LB0)}, {v(SC + 1)}"); yield
        for j, m in enumerate(stiles):
            lc = e.lds(f"ds_read_b64 {v(CC + 2 * j, 2)}, {v(pa)} offset:{m * PARS + 32}"); yield
        e.wait(lg=lt)
        for q in range(1, 8):
            for j in range(ns):
                e(f"v_fmac_f32 {v(EV + 8 * j + q)}, {v(PR + 4 * j + 2)}, {v(EV + 8 * j + q - 1)}"); yield
            if ns == 1:
                e.nop(1)
            for j in range(ns):
                e(f"v_fmac_f32_dpp {v(EV + 8 * j + q)}, {v(EV + 8 * j + q - 1)}, {v(PR + 4 * j + 3)} {DPP_X1}"); yield
        e.wait(lg=lc)
        O = EV

        def post(j, u):
            t_ = OT + 2 * j + (u & 1)
            e(f"v_mul_f32 {v(t_)}, {v(CC + 2 * j)}, {v(ACC[j] + u)}")
            e(f"v_fmac_f32_dpp {v(t_)}, {v(ACC[j] + u)}, {v(CC + 2 * j + 1)} {DPP_X1}")
            if u & 1:
                e(f"v_cvt_pk_bf16_f32 {v(O + 8 * j + u // 2)}, {v(OT + 2 * j)}, {v(OT + 2 * j + 1)}")
        for u in range(16):
            for j in range(ns):
                prev = EV + 8 * j + 7 if u == 0 else ACC[j] + u - 1
                e(f"v_fmac_f32 {v(ACC[j] + u)}, {v(PR + 4 * j)}, {v(prev)}"); yield
            if u >= 2:
                for j in range(ns):
                    post(j, u - 2); yield
            elif ns == 1:
                e.nop(1)
            for j in range(ns):
                prev = EV + 8 * j + 7 if u == 0 else ACC[j] + u - 1
                e(f"v_fmac_f32_dpp {v(ACC[j] + u)}, {v(prev)}, {v(PR + 4 * j + 1)} {DPP_X1}"); yield
        for u in (14, 15):
            for j in range(ns):
                post(j, u); yield
        for j, m in enumerate(stiles):
            R = ACC[j]
            for kap in range(2):
                msk = "0x0000ffff" if kap == 0 else "0xffff0000"
                e(f"s_mov_b32 exec_lo, {msk}")
                e(f"s_mov_b32 exec_hi, {msk}")
                e.lds(f"ds_write_b128 {v(SC)}, {v(O + 8 * j, 4)}")
                e.lds(f"ds_write_b128 {v(SC)}, {v(O + 8 * j + 4, 4)} offset:16")
                e("s_mov_b64 exec, -1"); yield
                for rd in range(2):
                    lt = e.lds(f"ds_read_b64_tr_b16 {v(R + 4 * kap + 2 * rd, 2)}, {v(SC + 1)} offset:{8 * rd * 80}"); yield
            tok[('tr', j)] = lt
            if j > 0:
                yield from tr_store(j - 1)
        yield from tr_store(ns - 1)
        tok['final_done'] = True

    def tr_store(j):
        m = stiles[j]
        R = ACC[j]
        e.wait(lg=tok[('tr', j)])
        e(f"s_add_u32 {s(S_T0)}, {s(S_A2S)}, {m * 2048}")
        e.vm(f"buffer_store_dwordx4 {v(R, 4)}, {v(V_ST)}, {s(SRD_WS, 4)}, {s(S_T0)} offen sc1")
        e.last_store = e.vm(f"buffer_store_dwordx4 {v(R + 4, 4)}, {v(V_ST)}, {s(SRD_WS, 4)}, {s(S_T0)} offen offset:1024 sc1"); yield

    VD0, VD1, VR0, VR1 = 6, 7, 8, 9
    st_ = dict(cp=0, S=-1, avail=set(), next=0, inflight=[], freed={}, setup=False, lim=24)
    if half == 1:
        ntask = 28
        slot_tag = {0: 'p0', 1: 'p0', 2: 'p1', 3: 'p1', 4: 'p2', 5: 'p2', 6: 'done', 7: 'done',
                    8: 'done', 9: 'done', 10: 'done', 11: 'done'}
    else:
        ntask = 4
        slot_tag = {1: 'p1', 2: 'done'}
    slot_busy = {}

    def stage_setup():
        st_['setup'] = True
        e(f"v_lshrrev_b32 {v(VD0)}, 3, v0")
        if half == 1:
            e(f"v_bfe_u32 {v(VD1)}, v0, 4, 1")
            e(f"v_lshlrev_b32 {v(VD1)}, 2, {v(VD1)}")
            e(f"v_and_b32 {v(VR0)}, 7, v0")
            e(f"v_xor_b32 {v(VD1)}, {v(VD1)}, {v(VR0)}")
            e(f"v_lshlrev_b32 {v(VD1)}, 4, {v(VD1)}")
            e(f"v_lshl_add_u32 {v(VD0)}, {v(VD0)}, 10, {v(VD1)}")
            e(f"v_add_u32 {v(VD1)}, {8192 - 1024}, {v(VD0)}")
            e(f"v_bfe_u32 {v(VR1)}, v0, 2, 2")
            e(f"v_lshrrev_b32 {v(VR0)}, 5, v0")
            e(f"v_lshl_add_u32 {v(VR0)}, {v(VR0)}, 2, {v(VR1)}")
            e(f"v_lshlrev_b32 {v(VR0)}, 7, {v(VR0)}")
            e(f"v_lshrrev_b32 {v(VR1)}, 1, {v(VR1)}")
            e(f"v_lshl_add_u32 {v(VR0)}, {v(VR1)}, 6, {v(VR0)}")
            e(f"v_bfe_u32 {v(VR1)}, v0, 4, 1")
            e(f"v_lshl_add_u32 {v(VR0)}, {v(VR1)}, 5, {v(VR0)}")
            e(f"v_and_b32 {v(VR1)}, 3, v0")
            e(f"v_lshl_add_u32 {v(VR0)}, {v(VR1)}, 3, {v(VR0)}")
            e(f"v_add_u32 {v(VR0)}, {s(S_LBS)}, {v(VR0)}")
            e(f"v_xor_b32 {v(VR1)}, 64, {v(VR0)}")
        else:
            e(f"v_lshrrev_b32 {v(VD1)}, 4, v0")
            e(f"v_and_b32 {v(VR0)}, 7, v0")
            e(f"v_xor_b32 {v(VD1)}, {v(VD1)}, {v(VR0)}")
            e(f"v_lshlrev_b32 {v(VD1)}, 4, {v(VD1)}")
            e(f"v_lshl_add_u32 {v(VD0)}, {v(VD0)}, 10, {v(VD1)}")
            e(f"v_xor_b32 {v(VD1)}, 64, {v(VD0)}")
            e(f"v_add_u32 {v(VD1)}, {8192 - 1024}, {v(VD1)}")
            e(f"v_and_b32 {v(VR0)}, 31, v0")
            e(f"v_lshlrev_b32 {v(VR0)}, 7, {v(VR0)}")
            e(f"v_bfe_u32 {v(VR1)}, v0, 1, 3")
            e(f"v_lshl_add_u32 {v(VR0)}, {v(VR1)}, 4, {v(VR0)}")
            e(f"v_lshrrev_b32 {v(VR1)}, 5, v0")
            e(f"v_lshl_add_u32 {v(VR0)}, {v(VR1)}, 12, {v(VR0)}")
            e(f"v_add_u32 {v(VR0)}, {s(S_LBS)}, {v(VR0)}")

    def slot_off(sl):
        if half == 1:
            return sl * 2048
        return {0: 4096, 1: 0, 2: 8192}[sl]

    def stage_dma(task, sl):
        if sl in st_['freed']:
            e.wait(lg=st_['freed'].pop(sl))
        if half == 1:
            if sl < 8:
                e(f"s_add_u32 m0, {s(S_LBS)}, {sl * 2048}")
            else:
                e(f"s_lshl_b32 {s(S_T3)}, {s(S_W)}, 13")
                e(f"s_add_u32 m0, {s(S_T3)}, {L_TOP + (sl - 8) * 2048}")
            e(f"s_add_u32 {s(S_T3)}, {s(S_B0)}, {task * 16384}")
            dma(e, VD0, SRD_B, S_T3)
            t = dma(e, VD1, SRD_B, S_T3, 1024)
        else:
            u_, nu = task // 2, task % 2
            for mat, sr in ((0, SRD_B), (1, SRD_S)):
                e(f"s_add_u32 m0, {s(S_LBS)}, {slot_off(sl) + mat * 4096}")
                e(f"s_add_u32 {s(S_T3)}, {s(S_B0)}, {nu * 32768 + u_ * 128}")
                dma(e, VD0, sr, S_T3)
                dma(e, VD1, sr, S_T3, 1024)
                e(f"s_add_u32 {s(S_T3)}, {s(S_T3)}, {16384 - 2048}")
                dma(e, VD0, sr, S_T3, 2048)
                t = dma(e, VD1, sr, S_T3, 3072)
        slot_busy[sl] = task
        st_['inflight'].append((task, sl, t, st_['cp']))

    def task_regs(task):
        if half == 1:
            return [2 * task, 2 * task + 1]
        u_, nu = task // 2, task % 2
        return [2 * (8 * u_ + k) + nu for k in range(8)]

    def regs_free(task):
        for x in task_regs(task):
            if x > st_['S'] or (x in resv and 'final_done' not in tok):
                return False
        return True

    def stage_xfer(task, sl, t):
        e.wait(vm=t)
        if half == 1:
            for h2 in range(2):
                for rd in range(2):
                    lt = e.lds(f"ds_read_b64_tr_b16 {v(V_X + 8 * task + 4 * h2 + 2 * rd, 2)}, {v(VR0 + h2)} offset:{sl * 2048 + rd * 1024}")
        else:
            u_, nu = task // 2, task % 2
            for k in range(8):
                if k:
                    e(f"v_xor_b32 {v(VR1)}, {16 * k}, {v(VR0)}")
                lt = e.lds(f"ds_read_b128 {v(V_X + 8 * (8 * u_ + k) + 4 * nu, 4)}, {v(VR1 if k else VR0)} offset:{slot_off(sl)}")
        st_['freed'][sl] = lt
        del slot_busy[sl]

    def checkpoint(force=False, maxdma=1):
        st_['cp'] += 1
        if not st_['setup']:
            return
        for it in list(st_['inflight']):
            task, sl, t, cp = it
            resident = half == 1 and task >= 16
            if resident:
                st_['inflight'].remove(it)
                continue
            if (force or st_['cp'] - cp >= BLAT) and regs_free(task):
                stage_xfer(task, sl, t)
                st_['inflight'].remove(it)
                if not force:
                    break
        n = 0
        while st_['next'] < min(ntask, st_.get('lim', 99)) and n < maxdma:
            task = st_['next']
            if half == 1 and task >= 16:
                cand = [task - 16]
            elif half == 1:
                cand = list(range(8))
            else:
                cand = list(slot_tag.keys())
            cand = [c_ for c_ in cand if c_ not in slot_busy and slot_tag[c_] in st_['avail']]
            if not cand:
                break
            stage_dma(task, cand[0])
            st_['next'] += 1
            n += 1

    fidx = [(idx, m) for idx, (k, m) in enumerate(tilesA) if k == 'F']
    deferred = []
    if typ == 'X':
        e(f"s_setprio {1 - half}")
    for S in range(32):
        c, u = S // 8, S % 8
        if S == 1 and stiles:
            if S_BTA >= 0:
                e.wait(vm=tok['bt'])
            side.add(job_pass1())
        if S == 2 and not stiles:
            for idx, m in fidx:
                side.add(ffn_epilogue(e, ACC[idx], TMP, S_A2A, m, deferred))
        if S == 5:
            if stiles:
                side.drain()
            e.wait(lg=e.lg_seq - 1)
            e("s_barrier")
            if stiles:
                blk_publish()
                for idx, m in fidx:
                    side.add(ffn_epilogue(e, ACC[idx], TMP, S_A2A, m, deferred))
        if u == 7 and c < 3:
            need_unit(11 if c == 0 else 9 + c)
            if c == 2 and stiles:
                side.drain()
                stamp(e, SV, 40)
                blk_carry()
                stamp(e, SV, 41)
            e.wait(vm=utok[9 + c], lg=e.lg_seq - 1)
            stamp(e, SV, 30 + 2 * c)
            e("s_barrier")
            stamp(e, SV, 31 + 2 * c)
            if EARLYB:
                st_['avail'].add(f"p{c}")
        if S == 24 and stiles:
            side.add(job_final())
        buf = V_FR + 8 * (S % 2)
        for idx in range(2):
            e.wait(lg=ftok[('B', S, idx)])
            mfma(e, ACC[3 + idx], buf + 4 * idx, V_X + 4 * S, S == 0)
            if S < 31:
                readB(S + 1, idx)
            if idx == 0:
                dpump()
            side.pump(4 if S < 24 else 6)
        st_['S'] = S
        if S == S_BT:
            need_unit(11)
            stage_setup()
            if S_BTA < 0:
                btouch(V_X)
        if S >= S_QUIET and deferred:
            e.vm(deferred.pop(0))
        if S >= S_BS:
            checkpoint()
        if S == max(9, S_QUIET) and half == 0:
            lab = e.newlabel("g_skip")
            e(f"v_lshlrev_b32 {v(SC + 6)}, 2, v0")
            e(f"v_add_u32 {v(SC + 7)}, {L_MISC + 64}, {v(SC + 6)}")
            e(f"s_cmp_lg_u32 {s(S_W)}, 0")
            e(f"s_cbranch_scc1 {lab}")
            e("s_mov_b64 exec, 0xff")
            e(f"ds_read_b32 {v(SC + 7)}, {v(SC + 7)}")
            e("s_waitcnt lgkmcnt(0)")
            e(f"buffer_store_dword {v(SC + 7)}, {v(SC + 6)}, {s(SRD_WS, 4)}, {s(S_GOFF)} offen sc1")
            e("s_mov_b64 exec, -1")
            e.label(lab)
        if S == S_GR and stiles:
            blk_grload()
        if FINE and S % 2 == 1:
            stamp(e, SV, 6 + S // 2)

    stamp(e, SV, 36)
    e.nop(8)
    if not stiles:
        side.drain()
    while deferred:
        e.vm(deferred.pop(0))
    ep = Sched()
    ep.add(ffn_epilogue(e, ACC[3], TMP, S_A2B, 2 * half))
    ep.add(ffn_epilogue(e, ACC[4], TMP, S_A2B, 2 * half + 1))
    side.pump(4)
    e.nop(4)
    cnt = 0
    while not (side.empty() and ep.empty()):
        side.pump(1)
        ep.pump(1)
        cnt += 1
        if cnt % TAILCP == 0 and not ep.empty():
            checkpoint()
    stamp(e, SV, 42)
    e.wait(vm=e.vm_seq - 1, lg=e.lg_seq - 1)
    stamp(e, SV, 43)
    e("s_setprio 0")
    e("s_barrier")
    if half == 0:
        lab = e.newlabel("done_skip")
        e(f"v_mov_b32 v1, {s(S_EPOCH)}")
        e("v_mov_b32 v2, 0")
        e(f"s_cmp_lg_u32 {s(S_W)}, 0")
        e(f"s_cbranch_scc1 {lab}")
        e(f"s_lshl_b32 {s(S_T0)}, {s(S_I)}, 11")
        e(f"s_lshl_b32 {s(S_T1)}, {s(S_COL)}, 7")
        e(f"s_add_u32 {s(S_T0)}, {s(S_T0)}, {s(S_T1)}")
        e(f"s_add_u32 {s(S_T0)}, {s(S_T0)}, {WS_DONE}")
        e("s_mov_b64 exec, 1")
        e(f"buffer_store_dword v1, v2, {s(SRD_WS, 4)}, {s(S_T0)} offen sc1")
        e("s_mov_b64 exec, -1")
        e.label(lab)
    else:
        e.nop(12)
    st_['avail'] |= {'p0', 'p1', 'p2', 'done'}
    if half == 1:
        checkpoint(force=False, maxdma=12)
        for task in range(24, 28):
            stage_dma(task, task - 16)
        ntask = 24
        st_['lim'] = 24
    guard = 0
    while st_['next'] < ntask or st_['inflight']:
        checkpoint(force=False, maxdma=12)
        if st_['inflight']:
            task, sl, t, cp = st_['inflight'][0]
            if not (half == 1 and task >= 16):
                stage_xfer(task, sl, t)
            st_['inflight'].pop(0)
        guard += 1
        assert guard < 200
    stamp(e, SV, 44)
    if STAMPS:
        e(f"v_mov_b32 v15, {v(SV)}")
    e(f"s_branch L_P2_{half}")


def phase2(e, half):
    SV = 15
    e.label(f"L_P2_{half}")
    e.vm_done = e.vm_seq = 0
    e.lg_done = e.lg_seq = 0
    NS = 16 if half == 0 else 28
    YSTART = 6 if half == 0 else 24
    SO = SRD_U
    SRD2 = SRD_G
    srd(e, SO, P_OUT, 2048 * 2048)
    e(f"s_add_u32 {s(SRD2)}, {s(P_WS)}, {KS * 1024}")
    e(f"s_addc_u32 {s(SRD2 + 1)}, {s(P_WS + 1)}, 0")
    e(f"s_and_b32 {s(SRD2 + 1)}, {s(SRD2 + 1)}, 0xffff")
    e(f"s_mov_b32 {s(SRD2 + 2)}, {WS_END - KS * 1024}")
    e(f"s_mov_b32 {s(SRD2 + 3)}, 0x00020000")
    VL = 12
    e(f"v_mov_b32 {v(VL)}, {v(V_ST)}")
    e(f"s_lshr_b32 {s(S_K0)}, {s(S_MT)}, 1")
    e(f"s_lshl_b32 {s(S_K0)}, {s(S_K0)}, 11")
    e(f"s_add_u32 {s(S_K0)}, {s(S_K0)}, {WS_DONE}")
    e("v_and_b32 v1, 15, v0")
    e("v_lshlrev_b32 v1, 7, v1")
    if half == 1:
        e(f"s_lshl_b32 {s(S_T0)}, {s(S_W)}, 13")
        e(f"s_add_u32 {s(S_T0)}, {s(S_T0)}, {L_TOP}")
        e(f"s_sub_u32 {s(S_T0)}, {s(S_T0)}, {s(S_LBS)}")
        e(f"v_add_u32 v10, {s(S_T0)}, v8")
        e(f"v_add_u32 v11, {s(S_T0)}, v9")

    def poll(mask_expr_lo):
        lp, lo = e.newlabel("pd"), e.newlabel("pd_ok")
        e(f"s_mov_b32 {s(S_SPIN)}, 0")
        e.label(lp)
        e(f"buffer_load_dword v2, v1, {s(SRD_WS, 4)}, {s(S_K0)} offen sc1")
        e("s_waitcnt vmcnt(0)")
        e(f"v_cmp_ne_u32 vcc, {s(S_EPOCH)}, v2")
        e(f"s_and_b32 {s(S_T0)}, vcc_lo, {s(S_M0)}")
        e(f"s_cbranch_scc0 {lo}")
        e("s_sleep 1")
        spin_tail(e, lp)
        e.label(lo)
        e.vm_done = e.vm_seq
    e(f"s_lshl_b32 {s(S_T1)}, {s(S_W)}, 2")
    e(f"s_lshl_b32 {s(S_M0)}, 7, {s(S_T1)}")
    e("s_mov_b64 exec, 0xffff")
    poll(None)
    e("s_mov_b64 exec, -1")
    e("s_waitcnt lgkmcnt(0)")
    stamp(e, SV, 45)
    AC = 64
    free = [24 + 8 * k for k in range(5)]
    aslot, atok = {}, {}
    pending = list(range(NS))
    state = dict(y=False)

    def ld2(dst, j):
        hi, lo_ = (j // 4) * 4096, (j % 4) * 1024
        b = S_A0
        if hi:
            e(f"s_add_u32 {s(S_T0)}, {s(S_A0)}, {hi}")
            b = S_T0
        o = f" offset:{lo_}" if lo_ else ""
        e.vm(f"buffer_load_dwordx4 {v(dst, 4)}, {v(VL)}, {s(SRD_WS, 4)}, {s(b)} offen{o} sc1")
        return e.vm(f"buffer_load_dwordx4 {v(dst + 4, 4)}, {v(VL)}, {s(SRD2, 4)}, {s(b)} offen{o} sc1")

    def issue_next():
        while pending and free:
            j = pending[0]
            if j >= YSTART and not state['y']:
                return
            pending.pop(0)
            r = free.pop(0)
            aslot[j] = r
            atok[j] = ld2(r, j)

    def ycheck_issue():
        e("s_mov_b64 exec, 0xffff")
        state['ytok'] = e.vm(f"buffer_load_dword v2, v1, {s(SRD_WS, 4)}, {s(S_K0)} offen sc1")
        e("s_mov_b64 exec, -1")

    def ycheck():
        lp, lo = e.newlabel("py"), e.newlabel("py_ok")
        e.wait(vm=state['ytok'])
        e(f"s_mov_b32 {s(S_SPIN)}, 0")
        e("s_mov_b64 exec, 0xffff")
        e.label(lp)
        e(f"v_cmp_ne_u32 vcc, {s(S_EPOCH)}, v2")
        e(f"s_cbranch_vccz {lo}")
        e("s_sleep 1")
        e(f"buffer_load_dword v2, v1, {s(SRD_WS, 4)}, {s(S_K0)} offen sc1")
        e("s_waitcnt vmcnt(0)")
        spin_tail(e, lp)
        e.label(lo)
        e("s_mov_b64 exec, -1")
        state['y'] = True

    issue_next()
    e(f"s_lshl_b32 {s(S_T0)}, {s(S_W)}, 2")
    e(f"s_add_u32 {s(S_T0)}, {s(S_T0)}, {32 * half}")
    e("v_lshrrev_b32 v3, 4, v0")
    e(f"v_add_u32 v3, {s(S_T0)}, v3")
    e("v_and_b32 v4, 15, v0")
    e(f"s_lshl_b32 {s(S_T1)}, {s(S_NT)}, 6")
    e(f"v_lshl_add_u32 v4, v4, 2, {s(S_T1)}")
    e("v_lshlrev_b32 v4, 1, v4")
    e(f"s_lshl_b32 {s(S_T1)}, {s(S_MT)}, 6")
    e(f"v_add_u32 v5, {s(S_T1)}, v3")
    e("v_lshl_add_u32 v5, v5, 10, v4")
    e("v_lshlrev_b32 v3, 2, v3")
    e(f"s_lshl_b32 {s(S_GOFF)}, {s(S_MT)}, 8")
    e(f"s_add_u32 {s(S_GOFF)}, {s(S_GOFF)}, {WS_G}")
    YI = 2 if half == 0 else 12
    YC = 5 if half == 0 else 15
    btok = {}

    def bread(j):
        r = j - 16
        for h2 in range(2):
            for rd in range(2):
                areg = (8 + h2) if r < 8 else (10 + h2)
                off = (r % 8) * 2048 + rd * 1024
                btok[j] = e.lds(f"ds_read_b64_tr_b16 {v(bbuf[j] + 4 * h2 + 2 * rd, 2)}, {v(areg)} offset:{off}")
    bbuf = {}
    for j in range(NS):
        if j == YI:
            ycheck_issue()
        if j == YC:
            ycheck()
            issue_next()
        if j == NS - 4:
            e.vm(f"buffer_load_dword v13, v3, {s(SRD_WS, 4)}, {s(S_GOFF)} offen sc1")
            e.vm(f"buffer_load_dword v14, v3, {s(SRD_WS, 4)}, {s(S_GOFF)} offen offset:64 sc1")
            e.vm(f"global_load_dwordx2 v[6:7], v4, {s(P_DSK, 2)}")
            e.vm(f"buffer_load_dwordx2 v[16:17], v5, {s(SRD_X, 4)}, 0 offen")
            e(f"s_mov_b32 {s(S_T0)}, {16 * 1024}")
            e.vm(f"buffer_load_dwordx2 v[18:19], v5, {s(SRD_X, 4)}, {s(S_T0)} offen")
        if half == 1 and j + 1 >= 16 and j + 1 < NS:
            bbuf[j + 1] = V_X + 8 * ((j + 1) % 2)
            bread(j + 1)
        a = aslot[j]
        b = V_X + 8 * j if j < 16 else bbuf[j]
        e.wait(vm=atok[j] - 1, lg=btok.get(j))
        mfma(e, AC, b, a, j == 0)
        mfma(e, AC + 16, b + 4, a, j == 0)
        e.wait(vm=atok[j])
        mfma(e, AC + 32, b, a + 4, j == 0)
        mfma(e, AC + 48, b + 4, a + 4, j == 0)
        free.append(a)
        if 2 <= j < 16:
            free.append(b)
        issue_next()
    stamp(e, SV, 46)
    e("v_and_b32 v1, 31, v0")
    e("v_lshrrev_b32 v2, 5, v0")
    e("v_and_b32 v8, 7, v0")
    e("v_xor_b32 v2, v2, v8")
    e("v_lshlrev_b32 v2, 4, v2")
    e("v_lshl_add_u32 v1, v1, 8, v2")
    e(f"v_add_u32 v8, {s(S_LBS)}, v1")
    for a in range(1, 4):
        e(f"v_xor_b32 {v(8 + a)}, {32 * a}, v8")
    e.nop(4)
    for mi in range(2):
        for ni in range(2):
            A = AC + 32 * mi + 16 * ni
            for a in range(4):
                e.lds(f"ds_write_b128 {v(8 + a)}, {v(A + 4 * a, 4)} offset:{mi * 8192 + ni * 128}")
    e("v_lshrrev_b32 v1, 4, v0")
    e("v_and_b32 v2, 15, v0")
    e("v_xor_b32 v2, v2, v1")
    e("v_lshlrev_b32 v2, 4, v2")
    e("v_lshl_add_u32 v1, v1, 8, v2")
    e(f"s_lshl_b32 {s(S_T0)}, {s(S_WV)}, 11")
    e(f"v_add_u32 v1, {s(S_T0)}, v1")
    e("v_xor_b32 v2, 64, v1")
    e("v_add_u32 v2, 1024, v2")
    e(f"v_add_u32 v3, {4 * REG}, v1")
    e(f"v_add_u32 v4, {4 * REG}, v2")
    e("v_lshlrev_b32 v5, 1, v5")
    e("s_waitcnt vmcnt(0)")
    SK, DS, FS = 24, 32, 40
    for k in range(2):
        e(f"v_lshlrev_b32 {v(DS + 2 * k)}, 16, {v(6 + k)}")
        e(f"v_and_b32 {v(DS + 2 * k + 1)}, 0xffff0000, {v(6 + k)}")
    for p in range(2):
        for k in range(2):
            e(f"v_lshlrev_b32 {v(SK + 4 * p + 2 * k)}, 16, {v(16 + 2 * p + k)}")
            e(f"v_and_b32 {v(SK + 4 * p + 2 * k + 1)}, 0xffff0000, {v(16 + 2 * p + k)}")
        for k in range(4):
            e(f"v_mul_f32 {v(SK + 4 * p + k)}, {v(SK + 4 * p + k)}, {v(DS + k)}")
        for k in range(2):
            e(f"v_cvt_pk_bf16_f32 v36, {v(SK + 4 * p + 2 * k)}, {v(SK + 4 * p + 2 * k + 1)}")
            e(f"v_lshlrev_b32 {v(SK + 4 * p + 2 * k)}, 16, v36")
            e(f"v_and_b32 {v(SK + 4 * p + 2 * k + 1)}, 0xffff0000, v36")
        e(f"v_sub_f32 {v(20 + p)}, 1.0, {v(13 + p)}")
        e(f"v_cvt_pk_bf16_f32 {v(20 + p)}, {v(20 + p)}, {v(20 + p)}")
        e(f"v_lshlrev_b32 {v(20 + p)}, 16, {v(20 + p)}")
    e.wait_all_lg()
    stamp(e, SV, 47)
    e("s_barrier")
    stamp(e, SV, 48)
    toks = []
    for q in range(8):
        for p in range(2):
            ar = (1 + p) if q < 4 else (3 + p)
            toks.append(e.lds(f"ds_read_b128 {v(AC + 8 * q + 4 * p, 4)}, {v(ar)} offset:{(q % 4) * REG}"))
    for q in range(4):
        e.wait(lg=toks[2 * q + 1])
        for k in range(8):
            e(f"v_add_f32 {v(SK + k)}, {v(SK + k)}, {v(AC + 8 * q + k)}")
    for k in range(8):
        e(f"v_mul_f32 {v(SK + k)}, {v(13 + k // 4)}, {v(SK + k)}")
    e.wait(lg=toks[11])
    for k in range(8):
        e(f"v_add_f32 {v(FS + k)}, {v(AC + 32 + k)}, {v(AC + 40 + k)}")
    e.wait(lg=toks[15])
    for k in range(8):
        e(f"v_add_f32 {v(AC + 48 + k)}, {v(AC + 48 + k)}, {v(AC + 56 + k)}")
    for k in range(8):
        e(f"v_add_f32 {v(FS + k)}, {v(FS + k)}, {v(AC + 48 + k)}")
    for k in range(8):
        e(f"v_fmac_f32 {v(SK + k)}, {v(20 + k // 4)}, {v(FS + k)}")
    e.vm(f"buffer_store_dwordx4 {v(SK, 4)}, v5, {s(SO, 4)}, 0 offen")
    e(f"s_mov_b32 {s(S_T0)}, {16 * 2048}")
    e.vm(f"buffer_store_dwordx4 {v(SK + 4, 4)}, v5, {s(SO, 4)}, {s(S_T0)} offen")
    if STAMPS:
        stamp(e, SV, 49)
        e("s_waitcnt vmcnt(0)")
        stamp(e, SV, 50)
        stamp(e, SV, 61, True)
        e("s_lshl_b32 s96, s2, 3")
        e(f"s_add_u32 s96, s96, {s(S_WV)}")
        e("s_lshl_b32 s96, s96, 8")
        e(f"s_add_u32 s96, s96, {WS_STAMP}")
        e("v_lshl_add_u32 v1, v0, 2, s96")
        e(f"global_store_dword v1, {v(SV)}, {s(P_WS, 2)}")
    e("s_endpgm")


def gen():
    e = Path()
    prologue_common(e)
    out = [e]
    for typ, half, lab in (('X', 0, None), ('X', 1, 'L_X1'), ('Y', 0, 'L_Y0'), ('Y', 1, 'L_Y1')):
        p = e.fork()
        if lab:
            p.label(lab)
        path(p, typ, half)
        out.append(p)
    for half in range(2):
        z = Path()
        phase2(z, half)
        out.append(z)
    z = Path()
    z.label("L_exit")
    z("s_endpgm")
    z.label("L_code_end")
    out.append(z)
    return "".join(x.text() for x in out)


HERE = os.path.dirname(os.path.abspath(__file__))
HEADER = open(os.path.join(HERE, "..", "cdna_kernels", NAME + ".s.ref")).read()


def main():
    hdr = []
    for line in HEADER.splitlines():
        if line.startswith(";") and "@launch" not in line:
            hdr.append(line)
        elif not line.startswith(";"):
            break
    out = "\n".join(hdr) + "\n"
    out += f"; @launch grid=(256,1,1) block=(512,1,1) lds={LDS_BYTES}\n"
    out += '.amdgcn_target "amdgcn-amd-amdhsa--gfx950"\n.text\n'
    name = NAME + "_kernel"
    out += f".globl {name}\n.p2align 8\n.type {name},@function\n{name}:\n" + gen()
    out += '.section .rodata,"a"\n'
    out += f""".p2align 6
.amdhsa_kernel {name}
  .amdhsa_next_free_vgpr 256
  .amdhsa_next_free_sgpr 102
  .amdhsa_accum_offset 256
  .amdhsa_group_segment_fixed_size 0
  .amdhsa_kernarg_size 136
  .amdhsa_user_sgpr_count 2
  .amdhsa_user_sgpr_kernarg_segment_ptr 1
  .amdhsa_system_sgpr_workgroup_id_x 1
  .amdhsa_float_denorm_mode_32 3
  .amdhsa_float_denorm_mode_16_64 3
.end_amdhsa_kernel
"""
    dst = sys.argv[1] if len(sys.argv) > 1 else os.path.join(HERE, "..", "cdna_kernels", NAME + ".s")
    open(dst, "w").write(out)
    print("wrote", dst, len(out), "bytes")


if __name__ == "__main__":
    main()
```

```python
import sys, os
sys.path.insert(0, os.path.dirname(os.path.abspath(__file__)))
from asmlib import Emit, v, s

NAME = "gated_mix__ssm_conv_s5__swiglu_ffn__prompt"


def env(name, default):
    return int(os.environ.get(name, str(default)))


STAMPS = env("STAMPS", 0)
OUTP = os.environ.get("OUTP", " sc1")
FINE = env("FINE", 0)
ROTMASK = env("ROTMASK", 7)
CODEPF = env("CODEPF", 1)
JR0, JR1 = env("JR0", 3), env("JR1", 2)
S_JOBS = env("S_JOBS", 10)
S_GR = env("S_GR", 19)
EARLYB = env("EARLYB", 0)
S_QUIET = env("S_QUIET", 18)
S_BTA = env("S_BTA", -1)
S_BT = env("S_BT", 6)
S_BS = env("S_BS", 18)
BLAT = env("BLAT", 6)
TAILCP = env("TAILCP", 10)

KS = 176
WS_A2 = 0
A2_BYTES = 64 * KS * 1024
WS_G = A2_BYTES + 16 * KS * 1024
WS_AGG = WS_G + 8192
AGG_BYTES = 32 * 8192
WS_DONE = WS_AGG + AGG_BYTES
WS_END = WS_DONE + 32768
WS_STAMP = 24 << 20

REG = 16384
L_SEX = 131072
L_PAR = 147456
PARS = 1536
L_MISC = 161792
L_TOP = 131072
LDS_BYTES = 163840

LOG2E = 0x3FB8AA3B
NLOG2E = 0xBFB8AA3B
INV2PI = 0x3E22F983

S_ROT = 1
S_WV, S_W, S_HALF, S_I, S_CQ, S_JJ, S_UA, S_UB, S_ST0 = 3, 4, 5, 6, 7, 8, 9, 10, 11
S_T0, S_T1, S_T2, S_T3 = 12, 13, 14, 15
P_X, P_LRE, P_LIM, P_BRE, P_BIM, P_CRE, P_CIM, P_LDT = 16, 18, 20, 22, 24, 26, 28, 30
P_DSK, P_BX, P_WG, P_WU, P_WD, P_GW, P_OUT, P_DBG = 32, 34, 36, 38, 40, 42, 44, 46
P_WS = 48
S_MT, S_NT = 50, 51
SRD_X, SRD_S, SRD_G, SRD_U, SRD_WS, SRD_B = 52, 56, 60, 64, 68, 72
S_K0, S_K1 = 76, 77
S_LB0, S_LB1, S_LB2 = 78, 79, 80
S_NL2E = 81
S_A2A, S_A2B, S_A2S = 82, 83, 84
S_COL = 85
S_SPIN = 86
S_GOFF = 87
S_M0, S_M1 = 88, 90
S_PUB = 93
S_LBS = 94
S_B0 = 95
S_A0 = 35
S_EPOCH = 34

V_DA = 1
V_DB = 6
V_XA = 10
V_SA = 14
V_TA = 18
V_TB = 21
V_ST = 23
V_FR = 24
ACC = [48, 64, 80, 96, 112]
V_X = 128

DPP_X1 = "quad_perm:[1,0,3,2] row_mask:0xf bank_mask:0xf"
DPP_X2 = "quad_perm:[2,3,0,1] row_mask:0xf bank_mask:0xf"


class Path(Emit):
    cnt = 0

    def newlabel(self, base):
        Path.cnt += 1
        return f"L_{base}_{Path.cnt}"

    def fork(self):
        e = Path()
        e.vm_seq, e.vm_done, e.lg_seq, e.lg_done = self.vm_seq, self.vm_done, self.lg_seq, self.lg_done
        return e


class Sched:
    def __init__(self):
        self.q = []

    def add(self, gen):
        self.q.append(gen)

    def pump(self, n):
        while n > 0 and self.q:
            try:
                next(self.q[0])
                n -= 1
            except StopIteration:
                self.q.pop(0)

    def drain(self):
        self.pump(1 << 30)

    def empty(self):
        return not self.q


def run(gen):
    for _ in gen:
        pass


def srd(e, d, ptr, nbytes):
    e(f"s_mov_b32 {s(d)}, {s(ptr)}")
    e(f"s_and_b32 {s(d + 1)}, {s(ptr + 1)}, 0xffff")
    e(f"s_mov_b32 {s(d + 2)}, {nbytes}")
    e(f"s_mov_b32 {s(d + 3)}, 0x00020000")


def stamp(e, vr, idx, real=False):
    if not STAMPS:
        return
    e(f"{'s_memrealtime' if real else 's_memtime'} s[96:97]")
    e("s_waitcnt lgkmcnt(0)")
    e(f"v_writelane_b32 {v(vr)}, s96, {idx}")


def mfma(e, d, a, b, first):
    c = "0" if first else v(d, 16)
    e(f"v_mfma_f32_32x32x16_bf16 {v(d, 16)}, {v(a, 4)}, {v(b, 4)}, {c}")


def dma(e, voff, srd_, soff, off=0):
    o = f" offset:{off}" if off else ""
    return e.vm(f"buffer_load_dwordx4 {v(voff)}, {s(srd_, 4)}, {s(soff)} offen{o} lds")


def spin_tail(e, lp, sleep=1):
    e(f"s_add_u32 {s(S_SPIN)}, {s(S_SPIN)}, 1")
    e(f"s_cmp_lt_u32 {s(S_SPIN)}, 0x4000")
    e(f"s_cbranch_scc1 {lp}")


def prologue_common(e):
    e("s_cmp_ge_u32 s2, 256")
    e("s_cbranch_scc1 L_exit")
    if STAMPS:
        e("s_memtime s[98:99]")
        e("s_memrealtime s[100:101]")
    e(f"s_load_dwordx16 {s(16, 16)}, s[0:1], 0")
    e(f"s_load_dwordx16 {s(32, 16)}, s[0:1], 64")
    e(f"s_load_dwordx2 {s(48, 2)}, s[0:1], 128")
    if CODEPF:
        e("s_getpc_b64 s[4:5]")
        e.label("L_pc")
        e("s_lshr_b32 s6, s2, 3")
        e("s_lshl_b32 s6, s6, 4")
        e("v_and_b32 v2, 15, v0")
        e("v_add_u32 v2, s6, v2")
        e("v_lshlrev_b32 v2, 7, v2")
        e("v_min_u32 v2, L_code_end-L_pc-4, v2")
        e("v_cmp_gt_u32 vcc, 16, v0")
        e("s_and_saveexec_b64 s[8:9], vcc")
        e("s_cbranch_execz L_nopf")
        e("global_load_dword v223, v2, s[4:5]")
        e.label("L_nopf")
        e("s_mov_b64 exec, s[8:9]")
    e("v_lshrrev_b32 v1, 6, v0")
    e("v_and_b32 v0, 63, v0")
    e(f"v_readfirstlane_b32 {s(S_WV)}, v1")
    e(f"s_and_b32 {s(S_T0)}, s2, 7")
    e(f"s_lshr_b32 {s(S_T1)}, s2, 3")
    e(f"s_lshr_b32 {s(S_CQ)}, {s(S_T0)}, 1")
    e(f"s_and_b32 {s(S_T2)}, {s(S_T0)}, 1")
    e(f"s_lshl_b32 {s(S_T3)}, {s(S_T2)}, 3")
    e(f"s_and_b32 {s(S_I)}, {s(S_T1)}, 7")
    e(f"s_add_u32 {s(S_I)}, {s(S_I)}, {s(S_T3)}")
    e(f"s_lshr_b32 {s(S_JJ)}, {s(S_T1)}, 3")
    e(f"s_and_b32 {s(S_W)}, {s(S_WV)}, 3")
    e(f"s_lshr_b32 {s(S_HALF)}, {s(S_WV)}, 2")
    e(f"s_lshl_b32 {s(S_MT)}, {s(S_CQ)}, 3")
    e(f"s_and_b32 {s(S_T3)}, {s(S_T1)}, 7")
    e(f"s_add_u32 {s(S_MT)}, {s(S_MT)}, {s(S_T3)}")
    e(f"s_lshl_b32 {s(S_NT)}, {s(S_T2)}, 2")
    e(f"s_add_u32 {s(S_NT)}, {s(S_NT)}, {s(S_JJ)}")
    e(f"s_mul_i32 {s(S_UA)}, {s(S_CQ)}, 7")
    e(f"s_lshl_b32 {s(S_T2)}, {s(S_JJ)}, 1")
    e(f"s_add_u32 {s(S_UA)}, {s(S_UA)}, {s(S_T2)}")
    e(f"s_add_u32 {s(S_UB)}, {s(S_UA)}, 1")
    e(f"s_cmp_eq_u32 {s(S_JJ)}, 3")
    e(f"s_cselect_b32 {s(S_UB)}, {s(S_UA)}, {s(S_UB)}")
    e(f"s_lshl_b32 {s(S_ST0)}, {s(S_CQ)}, 3")
    e(f"s_add_u32 {s(S_ST0)}, {s(S_ST0)}, {s(S_JJ)}")
    e(f"s_lshl_b32 {s(S_COL)}, {s(S_CQ)}, 2")
    e(f"s_add_u32 {s(S_COL)}, {s(S_COL)}, {s(S_JJ)}")
    e(f"s_cmp_eq_u32 {s(S_JJ)}, 3")
    e(f"s_cselect_b32 {s(S_T0)}, 2, 0")
    e(f"s_add_u32 {s(S_T0)}, {s(S_T0)}, {s(S_HALF)}")
    e(f"s_cmp_eq_u32 {s(S_T0)}, 1")
    e("s_cbranch_scc1 L_X1")
    e(f"s_cmp_eq_u32 {s(S_T0)}, 2")
    e("s_cbranch_scc1 L_Y0")
    e(f"s_cmp_eq_u32 {s(S_T0)}, 3")
    e("s_cbranch_scc1 L_Y1")


def krot(e, dst, add, mul):
    e(f"s_add_u32 {s(dst)}, {s(S_ROT)}, {add}")
    e(f"s_and_b32 {s(dst)}, {s(dst)}, 7")
    e(f"s_mul_i32 {s(dst)}, {s(dst)}, {mul}")


def unit_gen(e, typ, half, unit, utok):
    slot = unit % 4
    if unit >= 8:
        c = unit - 8
        e(f"s_add_u32 m0, {s(S_LB2)}, {slot * 4096}")
        krot(e, S_K1, 2 * c + half, 64 * 3584)
        dma(e, V_DB, SRD_G, S_K1); yield
        dma(e, V_DB + 1, SRD_G, S_K1, 1024); yield
        e(f"s_add_u32 m0, {s(S_LB2)}, {4 * REG + slot * 4096}")
        e("s_nop 0")
        dma(e, V_DB + 2, SRD_U, S_K1); yield
        utok[unit] = dma(e, V_DB + 3, SRD_U, S_K1, 1024); yield
        return
    if half == 1:
        e(f"s_add_u32 m0, {s(S_LB0)}, {slot * 4096}")
        krot(e, S_K0, unit, 128)
        for q in range(4):
            utok[unit] = dma(e, V_DA + q, SRD_X, S_K0, 1024 * q); yield
        return
    if typ == 'X':
        e(f"s_add_u32 m0, {s(S_LB0)}, {8 * REG + slot * 4096}")
        krot(e, S_K0, unit, 128)
        dma(e, V_DA, SRD_S, S_K0); yield
        e(f"s_add_u32 m0, {s(S_LB1)}, {4 * REG + slot * 4096}")
        e(f"s_mul_i32 {s(S_K1)}, {s(S_K0)}, {64 * 3584 // 128}")
        dma(e, V_DA + 1, SRD_G, S_K1); yield
        dma(e, V_DA + 2, SRD_G, S_K1, 1024); yield
        e(f"s_add_u32 m0, {s(S_LB1)}, {6 * REG + slot * 4096}")
        e("s_nop 0")
        dma(e, V_DA + 3, SRD_U, S_K1); yield
        utok[unit] = dma(e, V_DA + 4, SRD_U, S_K1, 1024); yield
        return
    for m in range(5):
        e(f"s_add_u32 m0, {s(S_LB0)}, {(4 + m) * REG + slot * 4096}")
        if m == 0:
            krot(e, S_K0, unit, 128)
        else:
            e(f"s_add_u32 {s(S_K0)}, {s(S_K0)}, 16384")
        utok[unit] = dma(e, V_DA, SRD_S, S_K0); yield


def ffn_epilogue(e, A, T, sbase, t, defer=None):
    G, U = A, A + 8
    for k in range(8):
        e(f"v_mul_f32 {v(T + k)}, {s(S_NL2E)}, {v(G + k)}"); yield
    for k in range(8):
        e(f"v_exp_f32 {v(T + k)}, {v(T + k)}"); yield
        e(f"v_mul_f32 {v(U + k)}, {v(G + k)}, {v(U + k)}"); yield
    for k in range(8):
        e(f"v_add_f32 {v(T + k)}, 1.0, {v(T + k)}"); yield
    for k in range(8):
        e(f"v_rcp_f32 {v(T + k)}, {v(T + k)}"); yield
        if k >= 2:
            e(f"v_mul_f32 {v(U + k - 2)}, {v(U + k - 2)}, {v(T + k - 2)}"); yield
    e(f"v_mul_f32 {v(U + 6)}, {v(U + 6)}, {v(T + 6)}"); yield
    e(f"v_mul_f32 {v(U + 7)}, {v(U + 7)}, {v(T + 7)}"); yield
    for p in range(4):
        e(f"v_cvt_pk_bf16_f32 {v(G + p)}, {v(U + 2 * p)}, {v(U + 2 * p + 1)}"); yield
    o = f" offset:{1024 * t}" if t else ""
    txt = f"buffer_store_dwordx4 {v(G, 4)}, {v(V_ST)}, {s(SRD_WS, 4)}, {s(sbase)} offen{o} sc1"
    if defer is not None:
        defer.append(txt)
    else:
        e.last_store = e.vm(txt); yield


def path(e, typ, half):
    T = 96
    SV = 95 if half == 0 else 5
    tok = {}
    utok = {}
    if STAMPS:
        e(f"v_mov_b32 {v(SV)}, 0")
    if half == 1:
        e("s_setprio 1")
    e(f"v_lshrrev_b32 {v(T)}, 3, v0")
    e(f"v_and_b32 {v(T + 1)}, 7, v0")
    e(f"v_lshrrev_b32 {v(T + 2)}, 4, v0")
    e(f"v_lshrrev_b32 {v(T + 3)}, 5, v0")
    e(f"v_and_b32 {v(T + 4)}, 31, v0")
    e(f"v_and_b32 {v(T + 5)}, 1, {v(T + 2)}")
    e(f"v_lshlrev_b32 {v(T + 5)}, 1, {v(T + 5)}")
    e(f"v_xor_b32 {v(T + 5)}, {v(T + 5)}, {v(T + 1)}")
    e(f"v_lshlrev_b32 {v(T + 5)}, 4, {v(T + 5)}")
    e(f"v_mul_u32_u24 {v(T + 6)}, 3584, {v(T)}")
    e(f"v_add_u32 {v(T + 5)}, {v(T + 5)}, {v(T + 6)}")
    e(f"v_lshlrev_b32 {v(V_ST)}, 4, v0")
    if half == 1:
        e(f"v_bfe_u32 {v(T + 14)}, v0, 3, 2")
        e(f"v_lshl_add_u32 {v(T + 14)}, {v(T + 3)}, 4, {v(T + 14)}")
        e(f"v_xor_b32 {v(T + 15)}, {v(T + 1)}, {v(T + 2)}")
        e(f"v_lshlrev_b32 {v(T + 15)}, 4, {v(T + 15)}")
        e(f"v_lshl_add_u32 {v(T + 14)}, {v(T + 14)}, 10, {v(T + 15)}")
        e(f"s_lshl_b32 {s(S_T0)}, {s(S_I)}, 17")
        e(f"s_lshl_b32 {s(S_T1)}, {s(S_W)}, 15")
        e(f"s_add_u32 {s(S_T0)}, {s(S_T0)}, {s(S_T1)}")
        e(f"v_add_u32 {v(V_DA)}, {s(S_T0)}, {v(T + 14)}")
        e(f"v_xor_b32 {v(T + 14)}, 64, {v(V_DA)}")
        e(f"v_add_u32 {v(V_DA + 1)}, {4096 - 1024}, {v(T + 14)}")
        e(f"v_add_u32 {v(V_DA + 2)}, {2 * (4096 - 1024)}, {v(V_DA)}")
        e(f"v_add_u32 {v(V_DA + 3)}, {3 * (4096 - 1024)}, {v(T + 14)}")
        e(f"s_lshl_b32 {s(S_LB0)}, {s(S_W)}, 14")
        e("s_waitcnt lgkmcnt(0)")
        srd(e, SRD_X, P_X, 2048 * 1024)
    else:
        e(f"s_lshr_b32 {s(S_T0)}, {s(S_W)}, 1")
        e(f"s_lshl_b32 {s(S_T0)}, {s(S_T0)}, 2")
        e(f"v_xor_b32 {v(T + 14)}, {v(T + 1)}, {v(T + 2)}")
        e(f"v_xor_b32 {v(T + 14)}, {s(S_T0)}, {v(T + 14)}")
        e(f"v_lshlrev_b32 {v(T + 14)}, 4, {v(T + 14)}")
        e(f"v_lshl_add_u32 {v(T + 14)}, {v(T)}, 10, {v(T + 14)}")
        e(f"s_lshl_b32 {s(S_T0)}, {s(S_ST0)}, 14")
        e(f"s_and_b32 {s(S_T1)}, {s(S_W)}, 1")
        e(f"s_lshl_b32 {s(S_T1)}, {s(S_T1)}, 13")
        e(f"s_add_u32 {s(S_T0)}, {s(S_T0)}, {s(S_T1)}")
        e(f"v_add_u32 {v(V_DA)}, {s(S_T0)}, {v(T + 14)}")
        e(f"s_lshl_b32 {s(S_LB0)}, {s(S_W)}, 10")
        if typ == 'X':
            e(f"s_mul_i32 {s(S_T0)}, {s(S_W)}, {16 * 3584}")
            e(f"s_lshl_b32 {s(S_T1)}, {s(S_UA)}, 7")
            e(f"s_add_u32 {s(S_T0)}, {s(S_T0)}, {s(S_T1)}")
            e(f"v_add_u32 {v(V_DA + 1)}, {s(S_T0)}, {v(T + 5)}")
            e(f"v_add_u32 {v(V_DA + 2)}, {8 * 3584 - 1024}, {v(V_DA + 1)}")
            e(f"v_xor_b32 {v(V_DA + 3)}, 64, {v(V_DA + 1)}")
            e(f"v_xor_b32 {v(V_DA + 4)}, 64, {v(V_DA + 2)}")
            e(f"s_lshr_b32 {s(S_LB1)}, {s(S_W)}, 1")
            e(f"s_lshl_b32 {s(S_LB1)}, {s(S_LB1)}, 14")
            e(f"s_and_b32 {s(S_T0)}, {s(S_W)}, 1")
            e(f"s_lshl_b32 {s(S_T0)}, {s(S_T0)}, 11")
            e(f"s_add_u32 {s(S_LB1)}, {s(S_LB1)}, {s(S_T0)}")
        e("s_waitcnt lgkmcnt(0)")
        e(f"s_cmp_lt_u32 {s(S_W)}, 2")
        e(f"s_cselect_b32 {s(SRD_S)}, {s(P_BRE)}, {s(P_BIM)}")
        e(f"s_cselect_b32 {s(SRD_S + 1)}, {s(P_BRE + 1)}, {s(P_BIM + 1)}")
        e(f"s_and_b32 {s(SRD_S + 1)}, {s(SRD_S + 1)}, 0xffff")
        e(f"s_mov_b32 {s(SRD_S + 2)}, {512 * 1024}")
        e(f"s_mov_b32 {s(SRD_S + 3)}, 0x00020000")
        if typ == 'X':
            srd(e, SRD_G, P_WG, 512 * 3584)
            srd(e, SRD_U, P_WU, 512 * 3584)
    if STAMPS:
        e(f"v_writelane_b32 {v(SV)}, s98, 0")
        e(f"v_writelane_b32 {v(SV)}, s100, 60")
    stamp(e, SV, 1)
    e(f"s_lshl_b32 {s(S_ROT)}, {s(S_JJ)}, 1")
    e(f"s_add_u32 {s(S_ROT)}, {s(S_ROT)}, {s(S_I)}")
    e(f"s_and_b32 {s(S_ROT)}, {s(S_ROT)}, {ROTMASK}")
    run(unit_gen(e, typ, half, 0, utok))
    stamp(e, SV, 51)
    G = 224
    PP = 236
    if half == 0:
        lab = e.newlabel("ep_skip")
        e(f"v_mov_b32 {v(PP + 1)}, 0")
        e(f"s_lshl_b32 {s(S_T0)}, {s(S_W)}, 3")
        e(f"s_or_b32 {s(S_T0)}, {s(S_T0)}, s2")
        e(f"s_cmp_ge_u32 {s(S_T0)}, 8")
        e(f"s_cbranch_scc1 {lab}")
        e(f"s_memrealtime {s(S_M0, 2)}")
        e("s_waitcnt lgkmcnt(0)")
        e(f"s_or_b32 {s(S_T0)}, {s(S_M0)}, 1")
        e(f"v_mov_b32 {v(PP)}, {s(S_T0)}")
        e("s_mov_b64 exec, 1")
        e(f"global_atomic_cmpswap {v(PP + 1)}, {v(PP, 2)}, {s(P_DBG, 2)} sc1")
        e("s_mov_b64 exec, -1")
        e.label(lab)
        srd(e, SRD_X, P_X, 2048 * 1024)
    if not (half == 0 and typ == 'X'):
        srd(e, SRD_G, P_WG, 512 * 3584)
        srd(e, SRD_U, P_WU, 512 * 3584)
    srd(e, SRD_WS, P_WS, WS_END)
    e(f"s_mov_b32 {s(S_NL2E)}, {NLOG2E:#x}")
    e("s_barrier")
    if half == 1:
        run(unit_gen(e, typ, half, 1, utok))
    stamp(e, SV, 52)
    e(f"s_lshl_b32 {s(S_T0)}, {s(S_I)}, 7")
    e(f"s_lshl_b32 {s(S_T1)}, {s(S_COL)}, 3")
    e(f"s_add_u32 {s(S_T0)}, {s(S_T0)}, {s(S_T1)}")
    e(f"s_add_u32 {s(S_T0)}, {s(S_T0)}, {s(S_WV)}")
    e(f"s_lshl_b32 {s(S_T1)}, {s(S_T0)}, 10")
    e(f"s_lshl_b32 {s(S_GOFF)}, {s(S_T0)}, 2")
    e(f"s_add_u32 {s(S_GOFF)}, {s(S_GOFF)}, {WS_G}")
    e(f"v_add_u32 {v(PP + 3)}, {s(S_T1)}, {v(V_ST)}")
    own0 = 0 if half == 0 else 2
    e(f"s_add_u32 {s(S_PUB)}, {s(S_ST0)}, {s(S_W)}")
    e(f"s_lshl_b32 {s(S_PUB)}, {s(S_PUB)}, 13")
    e(f"s_add_u32 {s(S_PUB)}, {s(S_PUB)}, {WS_AGG + own0 * 8192}")
    e(f"s_lshl_b32 {s(S_T0)}, {s(S_I)}, 8")
    e(f"s_add_u32 {s(S_PUB)}, {s(S_PUB)}, {s(S_T0)}")
    if half == 0:
        e(f"s_cmp_eq_u32 {s(S_W)}, 0")
        e(f"s_cselect_b32 {s(S_T1)}, 4, 0")
        e(f"v_mul_u32_u24 {v(G + 8)}, {s(S_T1)}, {v(T + 3)}")
        e(f"s_add_u32 {s(S_T0)}, {s(S_ST0)}, {s(S_W)}")
        e(f"v_add_u32 {v(G + 8)}, {s(S_T0)}, {v(G + 8)}")
        e(f"v_min_u32 {v(G + 8)}, 31, {v(G + 8)}")
        e(f"v_and_b32 {v(G + 9)}, 30, v0")
        e(f"v_lshl_add_u32 {v(G + 8)}, {v(G + 8)}, 5, {v(G + 9)}")
    e(f"s_mul_i32 {s(S_T0)}, {s(S_W)}, {16 * 3584}")
    e(f"s_lshl_b32 {s(S_T1)}, {s(S_UB)}, 7")
    e(f"s_add_u32 {s(S_T0)}, {s(S_T0)}, {s(S_T1)}")
    e(f"v_add_u32 {v(V_DB)}, {s(S_T0)}, {v(T + 5)}")
    e(f"v_add_u32 {v(V_DB + 1)}, {8 * 3584 - 1024}, {v(V_DB)}")
    e(f"v_xor_b32 {v(V_DB + 2)}, 64, {v(V_DB)}")
    e(f"v_xor_b32 {v(V_DB + 3)}, 64, {v(V_DB + 1)}")
    e(f"v_bfe_u32 {v(T + 6)}, v0, 1, 3")
    e(f"v_xor_b32 {v(T + 6)}, {v(T + 6)}, {v(T + 3)}")
    e(f"v_lshlrev_b32 {v(T + 6)}, 4, {v(T + 6)}")
    e(f"v_lshl_add_u32 {v(T + 6)}, {v(T + 4)}, 7, {v(T + 6)}")
    e(f"s_lshl_b32 {s(S_T0)}, {s(S_W)}, 14")
    e(f"v_add_u32 {v(V_XA)}, {s(S_T0)}, {v(T + 6)}")
    for u in range(1, 4):
        e(f"v_xor_b32 {v(V_XA + u)}, {32 * u}, {v(V_XA)}")
    e(f"v_bfe_u32 {v(T + 7)}, v0, 2, 2")
    e(f"v_lshl_add_u32 {v(T + 8)}, {v(T + 3)}, 3, {v(T + 7)}")
    e(f"v_lshlrev_b32 {v(T + 8)}, 7, {v(T + 8)}")
    e(f"v_and_b32 {v(T + 11)}, 3, v0")
    e(f"v_lshl_add_u32 {v(T + 8)}, {v(T + 11)}, 3, {v(T + 8)}")
    e(f"v_and_b32 {v(T + 9)}, 1, {v(T + 2)}")
    e(f"v_lshrrev_b32 {v(T + 10)}, 1, {v(T + 7)}")
    e(f"v_lshl_add_u32 {v(T + 10)}, {v(T + 9)}, 1, {v(T + 10)}")
    e(f"v_lshl_add_u32 {v(T + 8)}, {v(T + 10)}, 5, {v(T + 8)}")
    e(f"v_lshl_add_u32 {v(T + 10)}, {v(T + 9)}, 16, {v(T + 8)}")
    e(f"v_xor_b32 {v(V_TB)}, {64 * half}, {v(T + 10)}")
    e(f"v_xor_b32 {v(V_TB + 1)}, 32, {v(V_TB)}")
    if typ == 'X':
        tilesA = [('S', 0), ('F', 0)] if half == 0 else [('F', 1), ('F', 2), ('F', 3)]
    else:
        tilesA = [('S', 0), ('S', 1)] if half == 0 else [('S', 2), ('S', 3), ('S', 4)]
    stiles = [m for k, m in tilesA if k == 'S']
    ft = [m for k, m in tilesA if k == 'F']
    if ft:
        e(f"v_lshl_add_u32 {v(T + 10)}, {v(T + 9)}, 15, {v(T + 8)}")
        e(f"v_add_u32 {v(T + 10)}, {4 * REG}, {v(T + 10)}")
        for idx, t in enumerate(ft):
            e(f"v_xor_b32 {v(V_TA + idx)}, {32 * t}, {v(T + 10)}")
    if stiles:
        e(f"v_and_b32 {v(T + 12)}, 1, v0")
        e(f"v_lshrrev_b32 {v(T + 13)}, 1, {v(T + 4)}")
        e(f"v_lshl_add_u32 {v(T + 13)}, {v(T + 12)}, 4, {v(T + 13)}")
        e(f"v_bfe_u32 {v(T + 14)}, {v(T + 13)}, 1, 2")
        e(f"v_lshl_add_u32 {v(T + 14)}, {v(T + 12)}, 2, {v(T + 14)}")
        e(f"v_xor_b32 {v(T + 14)}, {v(T + 14)}, {v(T + 3)}")
        e(f"v_lshlrev_b32 {v(T + 14)}, 4, {v(T + 14)}")
        e(f"v_lshl_add_u32 {v(T + 14)}, {v(T + 13)}, 7, {v(T + 14)}")
        base = (8 * REG) if typ == 'X' else (4 + stiles[0]) * REG
        e(f"v_add_u32 {v(V_SA)}, {base}, {v(T + 14)}")
        for u in range(1, 4):
            e(f"v_xor_b32 {v(V_SA + u)}, {32 * u}, {v(V_SA)}")
    e(f"s_lshr_b32 {s(S_LB2)}, {s(S_WV)}, 1")
    e(f"s_lshl_b32 {s(S_LB2)}, {s(S_LB2)}, 14")
    e(f"s_and_b32 {s(S_T0)}, {s(S_WV)}, 1")
    e(f"s_lshl_b32 {s(S_T0)}, {s(S_T0)}, 11")
    e(f"s_add_u32 {s(S_LB2)}, {s(S_LB2)}, {s(S_T0)}")
    e(f"s_lshl_b32 {s(S_LBS)}, {s(S_WV)}, 14")
    e(f"s_lshl_b32 {s(S_T0)}, {s(S_I)}, 2")
    e(f"s_add_u32 {s(S_T0)}, {s(S_T0)}, {s(S_W)}")
    e(f"s_mul_i32 {s(S_T0)}, {s(S_T0)}, {KS * 1024}")
    e(f"s_lshl_b32 {s(S_T1)}, {s(S_UA)}, 12")
    e(f"s_add_u32 {s(S_A2A)}, {s(S_T0)}, {s(S_T1)}")
    e(f"s_lshl_b32 {s(S_T1)}, {s(S_UB)}, 12")
    e(f"s_add_u32 {s(S_A2B)}, {s(S_T0)}, {s(S_T1)}")
    e(f"s_lshl_b32 {s(S_T1)}, {s(S_ST0)}, 11")
    e(f"s_add_u32 {s(S_A2S)}, {s(S_T0)}, {s(S_T1)}")
    e(f"s_add_u32 {s(S_A2S)}, {s(S_A2S)}, {112 * 1024}")
    e(f"s_mul_i32 {s(S_A0)}, {s(S_MT)}, {2 * KS * 1024}")
    if half == 0:
        e(f"s_lshl_b32 {s(S_T0)}, {s(S_W)}, 14")
        e(f"s_add_u32 {s(S_A0)}, {s(S_A0)}, {s(S_T0)}")
        e(f"s_add_u32 {s(S_A0)}, {s(S_A0)}, {112 * 1024}")
        e(f"s_lshl_b32 {s(S_B0)}, {s(S_NT)}, 16")
        e(f"s_lshl_b32 {s(S_T0)}, {s(S_W)}, 8")
        e(f"s_add_u32 {s(S_B0)}, {s(S_B0)}, {s(S_T0)}")
    else:
        e(f"s_mul_i32 {s(S_T0)}, {s(S_W)}, {28 * 1024}")
        e(f"s_add_u32 {s(S_A0)}, {s(S_A0)}, {s(S_T0)}")
        e(f"s_mul_i32 {s(S_B0)}, {s(S_W)}, {448 * 1024}")
        e(f"s_lshl_b32 {s(S_T0)}, {s(S_NT)}, 7")
        e(f"s_add_u32 {s(S_B0)}, {s(S_B0)}, {s(S_T0)}")
        srd(e, SRD_B, P_WD, 1792 * 1024)
    stamp(e, SV, 2)

    def small_gen():
        if half == 0:
            e.vm(f"global_load_ushort {v(G + 9)}, {v(G + 8)}, {s(P_LRE, 2)}")
            e.vm(f"global_load_ushort {v(G + 10)}, {v(G + 8)}, {s(P_LIM, 2)}")
            tok['par'] = e.vm(f"global_load_ushort {v(G + 11)}, {v(G + 8)}, {s(P_LDT, 2)}"); yield
        e.vm(f"buffer_load_dwordx4 {v(G, 4)}, {v(PP + 3)}, {s(SRD_X, 4)}, 0 offen"); yield
        tok['gw'] = e.vm(f"global_load_dwordx4 {v(G + 4, 4)}, {v(V_ST)}, {s(P_GW, 2)}"); yield

    def job_gate():
        TT = 96
        e.wait(vm=tok['gw'])
        for j in range(4):
            e(f"v_lshlrev_b32 {v(TT + 2 * j)}, 16, {v(G + j)}"); yield
            e(f"v_and_b32 {v(TT + 2 * j + 1)}, 0xffff0000, {v(G + j)}"); yield
            e(f"v_lshlrev_b32 {v(TT + 8 + 2 * j)}, 16, {v(G + 4 + j)}"); yield
            e(f"v_and_b32 {v(TT + 8 + 2 * j + 1)}, 0xffff0000, {v(G + 4 + j)}"); yield
        tok['xfree1'] = True
        for j in range(8):
            e(f"v_mul_f32 {v(TT + j)}, {v(TT + j)}, {v(TT + 8 + j)}"); yield
        for j in range(4):
            e(f"v_cvt_pk_bf16_f32 {v(TT + 8 + j)}, {v(TT + 2 * j)}, {v(TT + 2 * j + 1)}"); yield
        for j in range(4):
            e(f"v_lshlrev_b32 {v(TT + 2 * j)}, 16, {v(TT + 8 + j)}"); yield
            e(f"v_and_b32 {v(TT + 2 * j + 1)}, 0xffff0000, {v(TT + 8 + j)}"); yield
        for j in range(4):
            e(f"v_add_f32 {v(TT + j)}, {v(TT + j)}, {v(TT + 4 + j)}"); yield
        e(f"v_add_f32 {v(TT)}, {v(TT)}, {v(TT + 2)}"); yield
        e(f"v_add_f32 {v(TT + 1)}, {v(TT + 1)}, {v(TT + 3)}"); yield
        e(f"v_add_f32 {v(TT)}, {v(TT)}, {v(TT + 1)}"); yield
        a, b = TT, TT + 1
        for d in (DPP_X1, DPP_X2, "row_half_mirror row_mask:0xf bank_mask:0xf", "row_mirror row_mask:0xf bank_mask:0xf"):
            e.nop(2)
            e(f"v_add_f32_dpp {v(b)}, {v(a)}, {v(a)} {d}"); yield
            a, b = b, a
        e.nop(1)
        e(f"v_readlane_b32 {s(S_T0)}, {v(a)}, 16")
        e(f"v_readlane_b32 {s(S_T1)}, {v(a)}, 32")
        e(f"v_readlane_b32 {s(S_T2)}, {v(a)}, 48")
        e.nop(2)
        e(f"v_add_f32 {v(a)}, {s(S_T0)}, {v(a)}")
        e(f"v_mov_b32 {v(b)}, {s(S_T1)}")
        e(f"v_add_f32 {v(b)}, {s(S_T2)}, {v(b)}"); yield
        e(f"v_add_f32 {v(a)}, {v(a)}, {v(b)}"); yield
        e(f"v_cvt_pk_bf16_f32 {v(a)}, {v(a)}, {v(a)}"); yield
        e(f"v_lshlrev_b32 {v(a)}, 16, {v(a)}"); yield
        e(f"v_mul_f32 {v(a)}, {s(S_NL2E)}, {v(a)}"); yield
        e(f"v_exp_f32 {v(a)}, {v(a)}"); yield
        e(f"s_lshl_b32 {s(S_T0)}, {s(S_WV)}, 2")
        e(f"s_add_u32 {s(S_T0)}, {s(S_T0)}, {L_MISC + 64}")
        e(f"v_mov_b32 {v(b)}, {s(S_T0)}"); yield
        e(f"v_add_f32 {v(a)}, 1.0, {v(a)}"); yield
        e(f"v_rcp_f32 {v(a)}, {v(a)}"); yield
        e.nop(1)
        e(f"v_cvt_pk_bf16_f32 {v(a)}, {v(a)}, {v(a)}"); yield
        e(f"v_lshlrev_b32 {v(a)}, 16, {v(a)}"); yield
        e("s_mov_b64 exec, 1")
        e.lds(f"ds_write_b32 {v(b)}, {v(a)}")
        e("s_mov_b64 exec, -1"); yield

    def job_params():
        TT = 80
        P = 112
        LRE, LIM, LD = TT + 10, TT + 11, TT + 12
        e.wait(vm=tok['par'])
        e(f"v_lshlrev_b32 {v(LRE)}, 16, {v(G + 9)}"); yield
        e(f"v_lshlrev_b32 {v(LIM)}, 16, {v(G + 10)}"); yield
        e(f"v_lshlrev_b32 {v(LD)}, 16, {v(G + 11)}"); yield
        e(f"v_mul_f32 {v(LD)}, {LOG2E:#x}, {v(LD)}"); yield
        e(f"v_exp_f32 {v(LD)}, {v(LD)}"); yield
        e(f"v_mul_f32 {v(TT + 5)}, {v(LRE)}, {v(LRE)}"); yield
        e(f"v_cvt_pk_bf16_f32 {v(LD)}, {v(LD)}, {v(LD)}"); yield
        e(f"v_lshlrev_b32 {v(LD)}, 16, {v(LD)}"); yield
        e(f"v_mul_f32 {v(TT)}, {v(LD)}, {v(LRE)}"); yield
        e(f"v_mul_f32 {v(TT + 1)}, {v(LD)}, {v(LIM)}"); yield
        e(f"v_mul_f32 {v(TT)}, {LOG2E:#x}, {v(TT)}"); yield
        e(f"v_exp_f32 {v(TT)}, {v(TT)}"); yield
        e(f"v_mul_f32 {v(TT + 1)}, {INV2PI:#x}, {v(TT + 1)}"); yield
        e(f"v_rndne_f32 {v(TT + 2)}, {v(TT + 1)}"); yield
        e(f"v_sub_f32 {v(TT + 1)}, {v(TT + 1)}, {v(TT + 2)}"); yield
        e(f"v_cos_f32 {v(TT + 2)}, {v(TT + 1)}"); yield
        e(f"v_sin_f32 {v(TT + 3)}, {v(TT + 1)}"); yield
        e(f"v_fmac_f32 {v(TT + 5)}, {v(LIM)}, {v(LIM)}"); yield
        e(f"v_mul_f32 {v(TT + 2)}, {v(TT)}, {v(TT + 2)}"); yield
        e(f"v_mul_f32 {v(TT + 3)}, {v(TT)}, {v(TT + 3)}"); yield
        e(f"v_rcp_f32 {v(TT + 5)}, {v(TT + 5)}"); yield
        e(f"v_add_f32 {v(TT + 4)}, -1.0, {v(TT + 2)}"); yield
        e(f"v_mul_f32 {v(TT + 6)}, {v(TT + 4)}, {v(LRE)}"); yield
        e(f"v_fmac_f32 {v(TT + 6)}, {v(TT + 3)}, {v(LIM)}"); yield
        e(f"v_mul_f32 {v(TT + 7)}, {v(TT + 3)}, {v(LRE)}"); yield
        e(f"v_fma_f32 {v(TT + 7)}, -{v(TT + 4)}, {v(LIM)}, {v(TT + 7)}"); yield
        e(f"v_add_f32 {v(TT + 5)}, {v(TT + 5)}, {v(TT + 5)}"); yield
        e(f"v_mul_f32 {v(TT + 6)}, {v(TT + 6)}, {v(TT + 5)}"); yield
        e(f"v_mul_f32 {v(TT + 7)}, {v(TT + 7)}, {v(TT + 5)}"); yield
        e(f"v_and_b32 {v(TT + 8)}, 1, v0"); yield
        e(f"v_lshlrev_b32 {v(TT + 8)}, 31, {v(TT + 8)}"); yield
        e(f"v_xor_b32 {v(TT + 9)}, 0x80000000, {v(TT + 8)}"); yield
        e(f"v_xor_b32 {v(P + 8)}, {v(TT + 8)}, {v(TT + 6)}"); yield
        e(f"v_xor_b32 {v(P + 9)}, 0x80000000, {v(TT + 7)}"); yield
        e(f"v_mov_b32 {v(P)}, {v(TT + 2)}"); yield
        e(f"v_xor_b32 {v(P + 1)}, {v(TT + 9)}, {v(TT + 3)}"); yield

        def square():
            e(f"v_mul_f32 {v(TT + 4)}, {v(TT + 3)}, {v(TT + 3)}"); yield
            e(f"v_mul_f32 {v(TT + 5)}, {v(TT + 2)}, {v(TT + 3)}"); yield
            e(f"v_fma_f32 {v(TT + 2)}, {v(TT + 2)}, {v(TT + 2)}, -{v(TT + 4)}"); yield
            e(f"v_add_f32 {v(TT + 3)}, {v(TT + 5)}, {v(TT + 5)}"); yield
        for k_, nsq in ((2, 4), (4, 3), (6, 1)):
            for _ in range(nsq):
                yield from square()
            e(f"v_mov_b32 {v(P + k_)}, {v(TT + 2)}"); yield
            e(f"v_xor_b32 {v(P + k_ + 1)}, {v(TT + 9)}, {v(TT + 3)}"); yield
        e(f"s_cmp_eq_u32 {s(S_W)}, 0")
        e(f"s_cselect_b32 {s(S_T1)}, {4 * PARS}, 0")
        e(f"v_lshrrev_b32 {v(TT)}, 5, v0")
        e(f"v_mul_u32_u24 {v(TT)}, {s(S_T1)}, {v(TT)}"); yield
        e(f"v_and_b32 {v(TT + 1)}, 31, v0"); yield
        e(f"v_mul_u32_u24 {v(TT + 1)}, 48, {v(TT + 1)}"); yield
        e(f"s_mul_i32 {s(S_T0)}, {s(S_W)}, {PARS}")
        e(f"s_add_u32 {s(S_T0)}, {s(S_T0)}, {L_PAR}")
        e(f"v_add3_u32 {v(TT)}, {v(TT)}, {v(TT + 1)}, {s(S_T0)}"); yield
        e.lds(f"ds_write_b128 {v(TT)}, {v(P, 4)}"); yield
        e.lds(f"ds_write_b128 {v(TT)}, {v(P + 4, 4)} offset:16"); yield
        e.lds(f"ds_write_b64 {v(TT)}, {v(P + 8, 2)} offset:32"); yield

    side = Sched()
    dq = Sched()
    dtags = []
    ucomplete = {0, 1, 2} if half == 1 else {0, 1}

    def dadd(gen, tag):
        dq.add(gen)
        dtags.append(tag)

    def dpump():
        while dq.q:
            try:
                next(dq.q[0])
                return
            except StopIteration:
                dq.q.pop(0)
                ucomplete.add(dtags.pop(0))

    def need_unit(u):
        while u not in ucomplete:
            for _ in dq.q[0]:
                pass
            dq.q.pop(0)
            ucomplete.add(dtags.pop(0))

    if half == 0:
        run(unit_gen(e, typ, half, 1, utok))
        dadd(unit_gen(e, typ, half, 2, utok), 2)
    else:
        run(unit_gen(e, typ, half, 2, utok))
    dadd(unit_gen(e, typ, half, 3, utok), 3)
    e.wait(vm=utok[0])
    stamp(e, SV, 3)
    e("s_barrier")
    stamp(e, SV, 4)

    ftok = {}

    def readA(S, idx):
        st, u = S // 4, S % 4
        slot = st % 4
        buf = V_FR + 12 * (S % 2)
        if idx == 0:
            e.lds(f"ds_read_b128 {v(V_X + 4 * S, 4)}, {v(V_XA + u)} offset:{slot * 4096}")
        k, m = tilesA[idx]
        d = buf + 4 * idx
        if k == 'S':
            rel = 0 if typ == 'X' else (m - stiles[0]) * REG
            lt = e.lds(f"ds_read_b128 {v(d, 4)}, {v(V_SA + u)} offset:{rel + slot * 4096}")
        else:
            fi = ft.index(m)
            for rd in range(2):
                off = (u >> 1) * REG + slot * 4096 + (16 * (u & 1) + 4 * rd) * 128
                lt = e.lds(f"ds_read_b64_tr_b16 {v(d + 2 * rd, 2)}, {v(V_TA + fi)} offset:{off}")
        ftok[('A', S, idx)] = lt

    def readB(S, idx):
        c, u = S // 8, S % 8
        buf = V_FR + 8 * (S % 2)
        for rd in range(2):
            off = (u >> 1) * REG + c * 4096 + (16 * (u & 1) + 4 * rd) * 128
            lt = e.lds(f"ds_read_b64_tr_b16 {v(buf + 4 * idx + 2 * rd, 2)}, {v(V_TB + idx)} offset:{off}")
        ftok[('B', S, idx)] = lt

    def btouch(TB_):
        if half == 0:
            srd(e, SRD_B, P_CRE, 512 * 1024)
            srd(e, SRD_S, P_CIM, 512 * 1024)
        e(f"s_and_b32 {s(S_T3)}, {s(S_MT)}, 7")
        e(f"s_lshl_b32 {s(S_T3)}, {s(S_T3)}, 10")
        e(f"s_add_u32 {s(S_T3)}, {s(S_T3)}, {s(S_B0)}")
        if half == 1:
            e(f"v_min_u32 {v(TB_)}, 55, v0")
            e(f"v_lshlrev_b32 {v(TB_)}, 13, {v(TB_)}")
            tok['bt'] = e.vm(f"buffer_load_dword {v(TB_ + 1)}, {v(TB_)}, {s(SRD_B, 4)}, {s(S_T3)} offen")
        else:
            e(f"v_and_b32 {v(TB_)}, 7, v0")
            e(f"v_lshlrev_b32 {v(TB_)}, 13, {v(TB_)}")
            e(f"v_bfe_u32 {v(TB_ + 1)}, v0, 3, 1")
            e(f"v_lshl_add_u32 {v(TB_)}, {v(TB_ + 1)}, 7, {v(TB_)}")
            e.vm(f"buffer_load_dword {v(TB_ + 1)}, {v(TB_)}, {s(SRD_B, 4)}, {s(S_T3)} offen")
            tok['bt'] = e.vm(f"buffer_load_dword {v(TB_ + 2)}, {v(TB_)}, {s(SRD_S, 4)}, {s(S_T3)} offen")

    for idx in range(len(tilesA)):
        readA(0, idx)
    for S in range(32):
        st, u = S // 4, S % 4
        if S == S_JOBS:
            need_unit('small')
            if half == 0:
                side.add(job_params())
            side.add(job_gate())
        if u == 3:
            need_unit(st + 1)
            if st == 5:
                while 'xfree1' not in tok:
                    side.pump(1)
            if st == 7:
                side.drain()
            e.wait(vm=utok[st + 1], lg=e.lg_seq - 1)
            if not FINE:
                stamp(e, SV, 6 + 2 * st)
            e("s_barrier")
            if not FINE or st == 7:
                stamp(e, SV, 7 + 2 * st if not FINE else 5)
            dadd(unit_gen(e, typ, half, st + 4, utok), st + 4)
            if st == 0:
                dadd(small_gen(), 'small')
        buf = V_FR + 12 * (S % 2)
        for idx, (k, m) in enumerate(tilesA):
            e.wait(lg=ftok[('A', S, idx)])
            if k == 'S':
                mfma(e, ACC[idx], V_X + 4 * S, buf + 4 * idx, S == 0)
            else:
                mfma(e, ACC[idx], buf + 4 * idx, V_X + 4 * S, S == 0)
            if S < 31:
                readA(S + 1, idx)
            elif idx < 2:
                readB(0, idx)
            if idx == 0 or len(dq.q) > 1 or (half == 0 and u == 3):
                dpump()
            if half == 0 and len(dq.q) > 1:
                dpump()
            side.pump(JR0 if half == 0 else JR1)
        if S == S_BTA:
            need_unit(7)
            btouch(1)
        if S == 8 and half == 0:
            lab = e.newlabel("epl_skip")
            e(f"s_cmp_lg_u32 {s(S_W)}, 0")
            e(f"s_cbranch_scc1 {lab}")
            e(f"global_load_dword {v(PP + 2)}, {v(PP + 1)}, {s(P_DBG, 2)} sc1")
            e.label(lab)
            tok['ep_seq'] = e.vm_seq
        if S == 18 and half == 0:
            lab = e.newlabel("ep_skip")
            lp = e.newlabel("ep_poll")
            lo = e.newlabel("ep_ok")
            e(f"s_cmp_lg_u32 {s(S_W)}, 0")
            e(f"s_cbranch_scc1 {lab}")
            e(f"s_mov_b32 {s(S_SPIN)}, 0")
            e(f"s_waitcnt vmcnt({min(63, e.vm_seq - tok['ep_seq'])})")
            e.label(lp)
            e(f"v_cmp_ne_u32 vcc, 0, {v(PP + 2)}")
            e(f"s_cbranch_vccnz {lo}")
            e("s_sleep 2")
            e(f"global_load_dword {v(PP + 2)}, {v(PP + 1)}, {s(P_DBG, 2)} sc1")
            e("s_waitcnt vmcnt(0)")
            spin_tail(e, lp)
            e.label(lo)
            e(f"v_mov_b32 {v(PP)}, {L_MISC}")
            e(f"ds_write_b32 {v(PP)}, {v(PP + 2)}")
            e("s_waitcnt lgkmcnt(0)")
            e.label(lab)
        if S == 20:
            e(f"v_mov_b32 {v(PP + 4)}, {L_MISC}")
            tok['epl'] = e.lds(f"ds_read_b32 {v(PP + 4)}, {v(PP + 4)}")
        if S == 21:
            e.wait(lg=tok['epl'])
            e(f"v_readfirstlane_b32 {s(S_EPOCH)}, {v(PP + 4)}")

    TMP = 40
    TS = 1
    SC = 10
    pa = 20
    ns = len(stiles)
    if half == 0:
        GR = ACC[2] if not STAMPS else V_X + 64
        GC = TMP
        FT = V_X + 64
        resv = set(range(16, 24))
    else:
        GR = V_X + 48
        GC = V_X + 64
        FT = V_X + 48
        resv = set(range(12, 24))
    if not stiles:
        resv = set()

    def job_pass1():
        e(f"v_and_b32 {v(pa)}, 31, v0"); yield
        e(f"v_mul_u32_u24 {v(pa)}, 48, {v(pa)}"); yield
        e(f"v_add_u32 {v(pa)}, {L_PAR}, {v(pa)}"); yield
        for j, m in enumerate(stiles):
            lt = e.lds(f"ds_read_b64 {v(TMP + 2 * j, 2)}, {v(pa)} offset:{m * PARS}"); yield
        e(f"v_lshlrev_b32 {v(TS)}, 2, v0"); yield
        e(f"s_lshl_b32 {s(S_T0)}, {s(S_W)}, 8")
        e(f"s_add_u32 {s(S_T0)}, {s(S_T0)}, {L_SEX}")
        e(f"v_add_u32 {v(TS)}, {s(S_T0)}, {v(TS)}"); yield
        e(f"v_mov_b32 {v(TS + 1)}, 0"); yield
        for j, m in enumerate(stiles):
            e.lds(f"ds_write_b32 {v(TS)}, {v(TS + 1)} offset:{m * 2048}"); yield
        e.nop(4)
        e.wait(lg=lt)
        for u in range(1, 16):
            dst = u % 2
            for j in range(ns):
                src_ = ACC[j] if u == 1 else SC + 2 * j + (u + 1) % 2
                e(f"v_fma_f32 {v(SC + 2 * j + dst)}, {v(TMP + 2 * j)}, {v(src_)}, {v(ACC[j] + u)}"); yield
            if ns == 1:
                e.nop(1)
            for j in range(ns):
                src_ = ACC[j] if u == 1 else SC + 2 * j + (u + 1) % 2
                e(f"v_fmac_f32_dpp {v(SC + 2 * j + dst)}, {v(src_)}, {v(TMP + 2 * j + 1)} {DPP_X1}"); yield
        for j, m in enumerate(stiles):
            e.lds(f"ds_write_b32 {v(TS)}, {v(SC + 2 * j + 1)} offset:{m * 2048 + 1024}"); yield
        e(f"s_add_u32 {s(S_T0)}, {s(S_W)}, {stiles[0]}")
        e(f"s_mul_i32 {s(S_T1)}, {s(S_T0)}, {PARS}")
        e(f"v_add_u32 {v(TS + 2)}, {s(S_T1)}, {v(pa)}")
        e(f"s_lshl_b32 {s(S_T1)}, {s(S_T0)}, 11")
        e(f"s_add_u32 {s(S_T1)}, {s(S_T1)}, {L_SEX}")
        e(f"v_and_b32 {v(TS + 1)}, 31, v0")
        e(f"v_lshlrev_b32 {v(TS + 3)}, 3, {v(TS + 1)}")
        e(f"v_lshl_add_u32 {v(TS + 1)}, {v(TS + 1)}, 2, {s(S_T1)}"); yield

    def blk_publish():
        lab = e.newlabel("pub_skip")
        e(f"s_cmp_ge_u32 {s(S_W)}, {ns}")
        e(f"s_cbranch_scc1 {lab}")
        e(f"ds_read_b64 {v(SC, 2)}, {v(TS + 2)} offset:8")
        for q in range(8):
            e(f"ds_read_b32 {v(SC + 2 + q)}, {v(TS + 1)} offset:{1024 + q * 128}")
        e(f"s_add_u32 {s(S_T0)}, {s(S_PUB)}, 4096")
        e("s_waitcnt lgkmcnt(0)")
        for q in range(1, 8):
            e(f"v_fmac_f32 {v(SC + 2 + q)}, {v(SC)}, {v(SC + 1 + q)}")
            e.nop(1)
            e(f"v_fmac_f32_dpp {v(SC + 2 + q)}, {v(SC + 1 + q)}, {v(SC + 1)} {DPP_X1}")
        e(f"v_mov_b32 {v(SC + 1)}, {s(S_EPOCH)}")
        e(f"v_mov_b32 {v(SC)}, {v(SC + 9)}")
        e("s_mov_b32 exec_hi, 0")
        e(f"buffer_store_dwordx2 {v(SC, 2)}, {v(TS + 3)}, {s(SRD_WS, 4)}, {s(S_T0)} offen sc1")
        e("s_mov_b64 exec, -1")
        e.label(lab)
        e(f"v_lshrrev_b32 {v(SC + 2)}, 5, v0")
        e(f"v_sub_u32 {v(SC + 2)}, 1, {v(SC + 2)}")
        e(f"v_lshl_add_u32 {v(TS + 3)}, {v(SC + 2)}, 8, {v(TS + 3)}")

    def gr_issue(lend):
        for t in range(8):
            e(f"buffer_load_dwordx2 {v(GR + 2 * t, 2)}, {v(TS + 3)}, {s(SRD_WS, 4)}, {s(S_PUB)} offen offset:{3584 - 512 * t} sc1")
            if t < 7:
                e(f"s_cmp_eq_u32 {s(S_T1)}, {t + 1}")
                e(f"s_cbranch_scc1 {lend}")

    def blk_grload():
        lab = e.newlabel("grl_skip")
        e(f"s_cmp_ge_u32 {s(S_W)}, {ns}")
        e(f"s_cbranch_scc1 {lab}")
        e(f"s_cmp_eq_u32 {s(S_I)}, 0")
        e(f"s_cbranch_scc1 {lab}")
        e(f"s_add_u32 {s(S_T1)}, {s(S_I)}, 1")
        e(f"s_lshr_b32 {s(S_T1)}, {s(S_T1)}, 1")
        gr_issue(lab)
        e.label(lab)
        tok['gr_seq'] = e.vm_seq

    def blk_carry():
        lab = e.newlabel("car_skip")
        e(f"s_cmp_ge_u32 {s(S_W)}, {ns}")
        e(f"s_cbranch_scc1 {lab}")
        e(f"s_cmp_eq_u32 {s(S_I)}, 0")
        e(f"s_cbranch_scc1 {lab}")
        e(f"ds_read_b128 {v(GC, 4)}, {v(TS + 2)} offset:16")
        e(f"s_add_u32 {s(S_T1)}, {s(S_I)}, 1")
        e(f"s_lshr_b32 {s(S_T1)}, {s(S_T1)}, 1")
        e(f"s_bitcmp1_b32 {s(S_I)}, 0")
        e(f"s_cselect_b32 {s(S_M0 + 1)}, 0, -1")
        e(f"s_mov_b32 {s(S_M0)}, -1")
        e(f"s_mov_b32 {s(S_SPIN)}, 0")
        e(f"s_waitcnt vmcnt({min(63, e.vm_seq - tok['gr_seq'])})")
        lp, lchk, lok, lre = (e.newlabel(x) for x in ("car_poll", "car_chk", "car_ok", "car_re"))
        e.label(lp)
        e(f"s_mov_b64 {s(S_M1, 2)}, 0")
        for t in range(8):
            e(f"v_cmp_ne_u32 vcc, {s(S_EPOCH)}, {v(GR + 2 * t + 1)}")
            if t < 7:
                e(f"s_cmp_eq_u32 {s(S_T1)}, {t + 1}")
                e(f"s_cbranch_scc1 {lchk}")
                e(f"s_or_b64 {s(S_M1, 2)}, {s(S_M1, 2)}, vcc")
        e.label(lchk)
        e(f"s_and_b64 vcc, vcc, {s(S_M0, 2)}")
        e(f"s_or_b64 {s(S_M1, 2)}, {s(S_M1, 2)}, vcc")
        e(f"s_cbranch_scc0 {lok}")
        e(f"s_add_u32 {s(S_SPIN)}, {s(S_SPIN)}, 1")
        e(f"s_cmp_ge_u32 {s(S_SPIN)}, 0x4000")
        e(f"s_cbranch_scc1 {lok}")
        e("s_sleep 1")
        gr_issue(lre)
        e.label(lre)
        e("s_waitcnt vmcnt(0)")
        e(f"s_branch {lp}")
        e.label(lok)
        e("s_waitcnt lgkmcnt(0)")
        ACCU = GC + 4
        e(f"v_mov_b32 {v(ACCU)}, 0")
        for t in range(7, -1, -1):
            ls = e.newlabel("hs")
            e(f"s_cmp_le_u32 {s(S_T1)}, {t}")
            e(f"s_cbranch_scc1 {ls}")
            e(f"s_cmp_eq_u32 {s(S_T1)}, {t + 1}")
            e(f"s_cselect_b64 vcc, {s(S_M0, 2)}, -1")
            e(f"v_cndmask_b32 {v(GR + 2 * t)}, 0, {v(GR + 2 * t)}, vcc")
            e(f"v_fmac_f32 {v(GR + 2 * t)}, {v(GC + 2)}, {v(ACCU)}")
            e(f"v_fmac_f32_dpp {v(GR + 2 * t)}, {v(ACCU)}, {v(GC + 3)} {DPP_X1}")
            e(f"v_mov_b32 {v(ACCU)}, {v(GR + 2 * t)}")
            e.label(ls)
        e.nop(1)
        e(f"v_mul_f32 {v(ACCU + 1)}, {v(GC)}, {v(ACCU)}")
        e(f"v_fmac_f32_dpp {v(ACCU + 1)}, {v(ACCU)}, {v(GC + 1)} {DPP_X1}")
        e(f"v_mov_b32 {v(ACCU + 2)}, 0")
        e.nop(1)
        e(f"v_permlane32_swap_b32 {v(ACCU + 1)}, {v(ACCU + 2)}")
        e.nop(1)
        e(f"v_add_f32 {v(ACCU)}, {v(ACCU)}, {v(ACCU + 2)}")
        e("s_mov_b32 exec_hi, 0")
        e(f"ds_write_b32 {v(TS + 1)}, {v(ACCU)} offset:{7 * 128}")
        e("s_mov_b64 exec, -1")
        e("s_waitcnt lgkmcnt(0)")
        e.label(lab)

    def job_final():
        PR = FT
        EV = FT + 4 * ns
        CC = SC + 2
        OT = FT + 12 * ns
        for j, m in enumerate(stiles):
            e.lds(f"ds_read_b128 {v(PR + 4 * j, 4)}, {v(pa)} offset:{m * PARS}"); yield
            for q in range(8):
                lt = e.lds(f"ds_read_b32 {v(EV + 8 * j + q)}, {v(TS)} offset:{m * 2048 + q * 128}")
                if q % 2:
                    yield
        e(f"s_mul_i32 {s(S_LB0)}, {s(S_W)}, 1280")
        e(f"s_add_u32 {s(S_LB0)}, {s(S_LB0)}, {141312 if half == 0 else 155136}")
        e(f"v_and_b32 {v(SC)}, 15, v0"); yield
        e(f"v_mul_u32_u24 {v(SC)}, 80, {v(SC)}"); yield
        e(f"v_lshrrev_b32 {v(SC + 1)}, 5, v0"); yield
        e(f"v_lshl_add_u32 {v(SC)}, {v(SC + 1)}, 5, {v(SC)}"); yield
        e(f"v_add_u32 {v(SC)}, {s(S_LB0)}, {v(SC)}"); yield
        e(f"v_bfe_u32 {v(SC + 2)}, v0, 2, 2"); yield
        e(f"v_lshl_add_u32 {v(SC + 1)}, {v(SC + 2)}, 1, {v(SC + 1)}"); yield
        e(f"v_mul_u32_u24 {v(SC + 1)}, 80, {v(SC + 1)}"); yield
        e(f"v_and_b32 {v(SC + 2)}, 1, v0"); yield
        e(f"v_lshl_add_u32 {v(SC + 1)}, {v(SC + 2)}, 5, {v(SC + 1)}"); yield
        e(f"v_bfe_u32 {v(SC + 2)}, v0, 4, 1"); yield
        e(f"v_lshl_add_u32 {v(SC + 1)}, {v(SC + 2)}, 4, {v(SC + 1)}"); yield
        e(f"v_bfe_u32 {v(SC + 2)}, v0, 1, 1"); yield
        e(f"v_lshl_add_u32 {v(SC + 1)}, {v(SC + 2)}, 3, {v(SC + 1)}"); yield
        e(f"v_add_u32 {v(SC + 1)}, {s(S_LB0)}, {v(SC + 1)}"); yield
        for j, m in enumerate(stiles):
            lc = e.lds(f"ds_read_b64 {v(CC + 2 * j, 2)}, {v(pa)} offset:{m * PARS + 32}"); yield
        e.wait(lg=lt)
        for q in range(1, 8):
            for j in range(ns):
                e(f"v_fmac_f32 {v(EV + 8 * j + q)}, {v(PR + 4 * j + 2)}, {v(EV + 8 * j + q - 1)}"); yield
            if ns == 1:
                e.nop(1)
            for j in range(ns):
                e(f"v_fmac_f32_dpp {v(EV + 8 * j + q)}, {v(EV + 8 * j + q - 1)}, {v(PR + 4 * j + 3)} {DPP_X1}"); yield
        e.wait(lg=lc)
        O = EV

        def post(j, u):
            t_ = OT + 2 * j + (u & 1)
            e(f"v_mul_f32 {v(t_)}, {v(CC + 2 * j)}, {v(ACC[j] + u)}")
            e(f"v_fmac_f32_dpp {v(t_)}, {v(ACC[j] + u)}, {v(CC + 2 * j + 1)} {DPP_X1}")
            if u & 1:
                e(f"v_cvt_pk_bf16_f32 {v(O + 8 * j + u // 2)}, {v(OT + 2 * j)}, {v(OT + 2 * j + 1)}")
        for u in range(16):
            for j in range(ns):
                prev = EV + 8 * j + 7 if u == 0 else ACC[j] + u - 1
                e(f"v_fmac_f32 {v(ACC[j] + u)}, {v(PR + 4 * j)}, {v(prev)}"); yield
            if u >= 2:
                for j in range(ns):
                    post(j, u - 2); yield
            elif ns == 1:
                e.nop(1)
            for j in range(ns):
                prev = EV + 8 * j + 7 if u == 0 else ACC[j] + u - 1
                e(f"v_fmac_f32_dpp {v(ACC[j] + u)}, {v(prev)}, {v(PR + 4 * j + 1)} {DPP_X1}"); yield
        for u in (14, 15):
            for j in range(ns):
                post(j, u); yield
        for j, m in enumerate(stiles):
            R = ACC[j]
            for kap in range(2):
                msk = "0x0000ffff" if kap == 0 else "0xffff0000"
                e(f"s_mov_b32 exec_lo, {msk}")
                e(f"s_mov_b32 exec_hi, {msk}")
                e.lds(f"ds_write_b128 {v(SC)}, {v(O + 8 * j, 4)}")
                e.lds(f"ds_write_b128 {v(SC)}, {v(O + 8 * j + 4, 4)} offset:16")
                e("s_mov_b64 exec, -1"); yield
                for rd in range(2):
                    lt = e.lds(f"ds_read_b64_tr_b16 {v(R + 4 * kap + 2 * rd, 2)}, {v(SC + 1)} offset:{8 * rd * 80}"); yield
            tok[('tr', j)] = lt
            if j > 0:
                yield from tr_store(j - 1)
        yield from tr_store(ns - 1)
        tok['final_done'] = True

    def tr_store(j):
        m = stiles[j]
        R = ACC[j]
        e.wait(lg=tok[('tr', j)])
        e(f"s_add_u32 {s(S_T0)}, {s(S_A2S)}, {m * 2048}")
        e.vm(f"buffer_store_dwordx4 {v(R, 4)}, {v(V_ST)}, {s(SRD_WS, 4)}, {s(S_T0)} offen sc1")
        e.last_store = e.vm(f"buffer_store_dwordx4 {v(R + 4, 4)}, {v(V_ST)}, {s(SRD_WS, 4)}, {s(S_T0)} offen offset:1024 sc1"); yield

    VD0, VD1, VR0, VR1 = 6, 7, 8, 9
    st_ = dict(cp=0, S=-1, avail=set(), next=0, inflight=[], freed={}, setup=False, lim=24)
    if half == 1:
        ntask = 28
        slot_tag = {0: 'p0', 1: 'p0', 2: 'p1', 3: 'p1', 4: 'p2', 5: 'p2', 6: 'done', 7: 'done',
                    8: 'done', 9: 'done', 10: 'done', 11: 'done'}
    else:
        ntask = 4
        slot_tag = {1: 'p1', 2: 'done'}
    slot_busy = {}

    def stage_setup():
        st_['setup'] = True
        e(f"v_lshrrev_b32 {v(VD0)}, 3, v0")
        if half == 1:
            e(f"v_bfe_u32 {v(VD1)}, v0, 4, 1")
            e(f"v_lshlrev_b32 {v(VD1)}, 2, {v(VD1)}")
            e(f"v_and_b32 {v(VR0)}, 7, v0")
            e(f"v_xor_b32 {v(VD1)}, {v(VD1)}, {v(VR0)}")
            e(f"v_lshlrev_b32 {v(VD1)}, 4, {v(VD1)}")
            e(f"v_lshl_add_u32 {v(VD0)}, {v(VD0)}, 10, {v(VD1)}")
            e(f"v_add_u32 {v(VD1)}, {8192 - 1024}, {v(VD0)}")
            e(f"v_bfe_u32 {v(VR1)}, v0, 2, 2")
            e(f"v_lshrrev_b32 {v(VR0)}, 5, v0")
            e(f"v_lshl_add_u32 {v(VR0)}, {v(VR0)}, 2, {v(VR1)}")
            e(f"v_lshlrev_b32 {v(VR0)}, 7, {v(VR0)}")
            e(f"v_lshrrev_b32 {v(VR1)}, 1, {v(VR1)}")
            e(f"v_lshl_add_u32 {v(VR0)}, {v(VR1)}, 6, {v(VR0)}")
            e(f"v_bfe_u32 {v(VR1)}, v0, 4, 1")
            e(f"v_lshl_add_u32 {v(VR0)}, {v(VR1)}, 5, {v(VR0)}")
            e(f"v_and_b32 {v(VR1)}, 3, v0")
            e(f"v_lshl_add_u32 {v(VR0)}, {v(VR1)}, 3, {v(VR0)}")
            e(f"v_add_u32 {v(VR0)}, {s(S_LBS)}, {v(VR0)}")
            e(f"v_xor_b32 {v(VR1)}, 64, {v(VR0)}")
        else:
            e(f"v_lshrrev_b32 {v(VD1)}, 4, v0")
            e(f"v_and_b32 {v(VR0)}, 7, v0")
            e(f"v_xor_b32 {v(VD1)}, {v(VD1)}, {v(VR0)}")
            e(f"v_lshlrev_b32 {v(VD1)}, 4, {v(VD1)}")
            e(f"v_lshl_add_u32 {v(VD0)}, {v(VD0)}, 10, {v(VD1)}")
            e(f"v_xor_b32 {v(VD1)}, 64, {v(VD0)}")
            e(f"v_add_u32 {v(VD1)}, {8192 - 1024}, {v(VD1)}")
            e(f"v_and_b32 {v(VR0)}, 31, v0")
            e(f"v_lshlrev_b32 {v(VR0)}, 7, {v(VR0)}")
            e(f"v_bfe_u32 {v(VR1)}, v0, 1, 3")
            e(f"v_lshl_add_u32 {v(VR0)}, {v(VR1)}, 4, {v(VR0)}")
            e(f"v_lshrrev_b32 {v(VR1)}, 5, v0")
            e(f"v_lshl_add_u32 {v(VR0)}, {v(VR1)}, 12, {v(VR0)}")
            e(f"v_add_u32 {v(VR0)}, {s(S_LBS)}, {v(VR0)}")

    def slot_off(sl):
        if half == 1:
            return sl * 2048
        return {0: 4096, 1: 0, 2: 8192}[sl]

    def stage_dma(task, sl):
        if sl in st_['freed']:
            e.wait(lg=st_['freed'].pop(sl))
        if half == 1:
            if sl < 8:
                e(f"s_add_u32 m0, {s(S_LBS)}, {sl * 2048}")
            else:
                e(f"s_lshl_b32 {s(S_T3)}, {s(S_W)}, 13")
                e(f"s_add_u32 m0, {s(S_T3)}, {L_TOP + (sl - 8) * 2048}")
            e(f"s_add_u32 {s(S_T3)}, {s(S_B0)}, {task * 16384}")
            dma(e, VD0, SRD_B, S_T3)
            t = dma(e, VD1, SRD_B, S_T3, 1024)
        else:
            u_, nu = task // 2, task % 2
            for mat, sr in ((0, SRD_B), (1, SRD_S)):
                e(f"s_add_u32 m0, {s(S_LBS)}, {slot_off(sl) + mat * 4096}")
                e(f"s_add_u32 {s(S_T3)}, {s(S_B0)}, {nu * 32768 + u_ * 128}")
                dma(e, VD0, sr, S_T3)
                dma(e, VD1, sr, S_T3, 1024)
                e(f"s_add_u32 {s(S_T3)}, {s(S_T3)}, {16384 - 2048}")
                dma(e, VD0, sr, S_T3, 2048)
                t = dma(e, VD1, sr, S_T3, 3072)
        slot_busy[sl] = task
        st_['inflight'].append((task, sl, t, st_['cp']))

    def task_regs(task):
        if half == 1:
            return [2 * task, 2 * task + 1]
        u_, nu = task // 2, task % 2
        return [2 * (8 * u_ + k) + nu for k in range(8)]

    def regs_free(task):
        for x in task_regs(task):
            if x > st_['S'] or (x in resv and 'final_done' not in tok):
                return False
        return True

    def stage_xfer(task, sl, t):
        e.wait(vm=t)
        if half == 1:
            for h2 in range(2):
                for rd in range(2):
                    lt = e.lds(f"ds_read_b64_tr_b16 {v(V_X + 8 * task + 4 * h2 + 2 * rd, 2)}, {v(VR0 + h2)} offset:{sl * 2048 + rd * 1024}")
        else:
            u_, nu = task // 2, task % 2
            for k in range(8):
                if k:
                    e(f"v_xor_b32 {v(VR1)}, {16 * k}, {v(VR0)}")
                lt = e.lds(f"ds_read_b128 {v(V_X + 8 * (8 * u_ + k) + 4 * nu, 4)}, {v(VR1 if k else VR0)} offset:{slot_off(sl)}")
        st_['freed'][sl] = lt
        del slot_busy[sl]

    def checkpoint(force=False, maxdma=1):
        st_['cp'] += 1
        if not st_['setup']:
            return
        for it in list(st_['inflight']):
            task, sl, t, cp = it
            resident = half == 1 and task >= 16
            if resident:
                st_['inflight'].remove(it)
                continue
            if (force or st_['cp'] - cp >= BLAT) and regs_free(task):
                stage_xfer(task, sl, t)
                st_['inflight'].remove(it)
                if not force:
                    break
        n = 0
        while st_['next'] < min(ntask, st_.get('lim', 99)) and n < maxdma:
            task = st_['next']
            if half == 1 and task >= 16:
                cand = [task - 16]
            elif half == 1:
                cand = list(range(8))
            else:
                cand = list(slot_tag.keys())
            cand = [c_ for c_ in cand if c_ not in slot_busy and slot_tag[c_] in st_['avail']]
            if not cand:
                break
            stage_dma(task, cand[0])
            st_['next'] += 1
            n += 1

    fidx = [(idx, m) for idx, (k, m) in enumerate(tilesA) if k == 'F']
    deferred = []
    if typ == 'X':
        e(f"s_setprio {1 - half}")
    for S in range(32):
        c, u = S // 8, S % 8
        if S == 1 and stiles:
            if S_BTA >= 0:
                e.wait(vm=tok['bt'])
            side.add(job_pass1())
        if S == 2 and not stiles:
            for idx, m in fidx:
                side.add(ffn_epilogue(e, ACC[idx], TMP, S_A2A, m, deferred))
        if S == 5:
            if stiles:
                side.drain()
            e.wait(lg=e.lg_seq - 1)
            e("s_barrier")
            if stiles:
                blk_publish()
                for idx, m in fidx:
                    side.add(ffn_epilogue(e, ACC[idx], TMP, S_A2A, m, deferred))
        if u == 7 and c < 3:
            need_unit(11 if c == 0 else 9 + c)
            if c == 2 and stiles:
                side.drain()
                stamp(e, SV, 40)
                blk_carry()
                stamp(e, SV, 41)
            e.wait(vm=utok[9 + c], lg=e.lg_seq - 1)
            stamp(e, SV, 30 + 2 * c)
            e("s_barrier")
            stamp(e, SV, 31 + 2 * c)
            if EARLYB:
                st_['avail'].add(f"p{c}")
        if S == 24 and stiles:
            side.add(job_final())
        buf = V_FR + 8 * (S % 2)
        for idx in range(2):
            e.wait(lg=ftok[('B', S, idx)])
            mfma(e, ACC[3 + idx], buf + 4 * idx, V_X + 4 * S, S == 0)
            if S < 31:
                readB(S + 1, idx)
            if idx == 0:
                dpump()
            side.pump(4 if S < 24 else 6)
        st_['S'] = S
        if S == S_BT:
            need_unit(11)
            stage_setup()
            if S_BTA < 0:
                btouch(V_X)
        if S >= S_QUIET and deferred:
            e.vm(deferred.pop(0))
        if S >= S_BS:
            checkpoint()
        if S == max(9, S_QUIET) and half == 0:
            lab = e.newlabel("g_skip")
            e(f"v_lshlrev_b32 {v(SC + 6)}, 2, v0")
            e(f"v_add_u32 {v(SC + 7)}, {L_MISC + 64}, {v(SC + 6)}")
            e(f"s_cmp_lg_u32 {s(S_W)}, 0")
            e(f"s_cbranch_scc1 {lab}")
            e("s_mov_b64 exec, 0xff")
            e(f"ds_read_b32 {v(SC + 7)}, {v(SC + 7)}")
            e("s_waitcnt lgkmcnt(0)")
            e(f"buffer_store_dword {v(SC + 7)}, {v(SC + 6)}, {s(SRD_WS, 4)}, {s(S_GOFF)} offen sc1")
            e("s_mov_b64 exec, -1")
            e.label(lab)
        if S == S_GR and stiles:
            blk_grload()
        if FINE and S % 2 == 1:
            stamp(e, SV, 6 + S // 2)

    stamp(e, SV, 36)
    e.nop(8)
    if not stiles:
        side.drain()
    while deferred:
        e.vm(deferred.pop(0))
    ep = Sched()
    ep.add(ffn_epilogue(e, ACC[3], TMP, S_A2B, 2 * half))
    ep.add(ffn_epilogue(e, ACC[4], TMP, S_A2B, 2 * half + 1))
    side.pump(4)
    e.nop(4)
    cnt = 0
    while not (side.empty() and ep.empty()):
        side.pump(1)
        ep.pump(1)
        cnt += 1
        if cnt % TAILCP == 0 and not ep.empty():
            checkpoint()
    stamp(e, SV, 42)
    e.wait(vm=e.vm_seq - 1, lg=e.lg_seq - 1)
    stamp(e, SV, 43)
    e("s_setprio 0")
    e("s_barrier")
    if half == 0:
        lab = e.newlabel("done_skip")
        e(f"v_mov_b32 v1, {s(S_EPOCH)}")
        e("v_mov_b32 v2, 0")
        e(f"s_cmp_lg_u32 {s(S_W)}, 0")
        e(f"s_cbranch_scc1 {lab}")
        e(f"s_lshl_b32 {s(S_T0)}, {s(S_I)}, 11")
        e(f"s_lshl_b32 {s(S_T1)}, {s(S_COL)}, 7")
        e(f"s_add_u32 {s(S_T0)}, {s(S_T0)}, {s(S_T1)}")
        e(f"s_add_u32 {s(S_T0)}, {s(S_T0)}, {WS_DONE}")
        e("s_mov_b64 exec, 1")
        e(f"buffer_store_dword v1, v2, {s(SRD_WS, 4)}, {s(S_T0)} offen sc1")
        e("s_mov_b64 exec, -1")
        e.label(lab)
    else:
        e.nop(12)
    st_['avail'] |= {'p0', 'p1', 'p2', 'done'}
    if half == 1:
        checkpoint(force=False, maxdma=12)
        for task in range(24, 28):
            stage_dma(task, task - 16)
        ntask = 24
        st_['lim'] = 24
    guard = 0
    while st_['next'] < ntask or st_['inflight']:
        checkpoint(force=False, maxdma=12)
        if st_['inflight']:
            task, sl, t, cp = st_['inflight'][0]
            if not (half == 1 and task >= 16):
                stage_xfer(task, sl, t)
            st_['inflight'].pop(0)
        guard += 1
        assert guard < 200
    stamp(e, SV, 44)
    if STAMPS:
        e(f"v_mov_b32 v15, {v(SV)}")
    e(f"s_branch L_P2_{half}")


def phase2(e, half):
    SV = 15
    e.label(f"L_P2_{half}")
    e.vm_done = e.vm_seq = 0
    e.lg_done = e.lg_seq = 0
    NS = 16 if half == 0 else 28
    YSTART = 6 if half == 0 else 24
    SO = SRD_U
    SRD2 = SRD_G
    srd(e, SO, P_OUT, 2048 * 2048)
    e(f"s_add_u32 {s(SRD2)}, {s(P_WS)}, {KS * 1024}")
    e(f"s_addc_u32 {s(SRD2 + 1)}, {s(P_WS + 1)}, 0")
    e(f"s_and_b32 {s(SRD2 + 1)}, {s(SRD2 + 1)}, 0xffff")
    e(f"s_mov_b32 {s(SRD2 + 2)}, {WS_END - KS * 1024}")
    e(f"s_mov_b32 {s(SRD2 + 3)}, 0x00020000")
    VL = 12
    e(f"v_mov_b32 {v(VL)}, {v(V_ST)}")
    e(f"s_lshr_b32 {s(S_K0)}, {s(S_MT)}, 1")
    e(f"s_lshl_b32 {s(S_K0)}, {s(S_K0)}, 11")
    e(f"s_add_u32 {s(S_K0)}, {s(S_K0)}, {WS_DONE}")
    e("v_and_b32 v1, 15, v0")
    e("v_lshlrev_b32 v1, 7, v1")
    if half == 1:
        e(f"s_lshl_b32 {s(S_T0)}, {s(S_W)}, 13")
        e(f"s_add_u32 {s(S_T0)}, {s(S_T0)}, {L_TOP}")
        e(f"s_sub_u32 {s(S_T0)}, {s(S_T0)}, {s(S_LBS)}")
        e(f"v_add_u32 v10, {s(S_T0)}, v8")
        e(f"v_add_u32 v11, {s(S_T0)}, v9")

    def poll(mask_expr_lo):
        lp, lo = e.newlabel("pd"), e.newlabel("pd_ok")
        e(f"s_mov_b32 {s(S_SPIN)}, 0")
        e.label(lp)
        e(f"buffer_load_dword v2, v1, {s(SRD_WS, 4)}, {s(S_K0)} offen sc1")
        e("s_waitcnt vmcnt(0)")
        e(f"v_cmp_ne_u32 vcc, {s(S_EPOCH)}, v2")
        e(f"s_and_b32 {s(S_T0)}, vcc_lo, {s(S_M0)}")
        e(f"s_cbranch_scc0 {lo}")
        e("s_sleep 1")
        spin_tail(e, lp)
        e.label(lo)
        e.vm_done = e.vm_seq
    e(f"s_lshl_b32 {s(S_T1)}, {s(S_W)}, 2")
    e(f"s_lshl_b32 {s(S_M0)}, 7, {s(S_T1)}")
    e("s_mov_b64 exec, 0xffff")
    poll(None)
    e("s_mov_b64 exec, -1")
    e("s_waitcnt lgkmcnt(0)")
    stamp(e, SV, 45)
    AC = 64
    free = [24 + 8 * k for k in range(5)]
    aslot, atok = {}, {}
    pending = list(range(NS))
    state = dict(y=False)

    def ld2(dst, j):
        hi, lo_ = (j // 4) * 4096, (j % 4) * 1024
        b = S_A0
        if hi:
            e(f"s_add_u32 {s(S_T0)}, {s(S_A0)}, {hi}")
            b = S_T0
        o = f" offset:{lo_}" if lo_ else ""
        e.vm(f"buffer_load_dwordx4 {v(dst, 4)}, {v(VL)}, {s(SRD_WS, 4)}, {s(b)} offen{o} sc1")
        return e.vm(f"buffer_load_dwordx4 {v(dst + 4, 4)}, {v(VL)}, {s(SRD2, 4)}, {s(b)} offen{o} sc1")

    def issue_next():
        while pending and free:
            j = pending[0]
            if j >= YSTART and not state['y']:
                return
            pending.pop(0)
            r = free.pop(0)
            aslot[j] = r
            atok[j] = ld2(r, j)

    def ycheck_issue():
        e("s_mov_b64 exec, 0xffff")
        state['ytok'] = e.vm(f"buffer_load_dword v2, v1, {s(SRD_WS, 4)}, {s(S_K0)} offen sc1")
        e("s_mov_b64 exec, -1")

    def ycheck():
        lp, lo = e.newlabel("py"), e.newlabel("py_ok")
        e.wait(vm=state['ytok'])
        e(f"s_mov_b32 {s(S_SPIN)}, 0")
        e("s_mov_b64 exec, 0xffff")
        e.label(lp)
        e(f"v_cmp_ne_u32 vcc, {s(S_EPOCH)}, v2")
        e(f"s_cbranch_vccz {lo}")
        e("s_sleep 1")
        e(f"buffer_load_dword v2, v1, {s(SRD_WS, 4)}, {s(S_K0)} offen sc1")
        e("s_waitcnt vmcnt(0)")
        spin_tail(e, lp)
        e.label(lo)
        e("s_mov_b64 exec, -1")
        state['y'] = True

    issue_next()
    e(f"s_lshl_b32 {s(S_T0)}, {s(S_W)}, 2")
    e(f"s_add_u32 {s(S_T0)}, {s(S_T0)}, {32 * half}")
    e("v_lshrrev_b32 v3, 4, v0")
    e(f"v_add_u32 v3, {s(S_T0)}, v3")
    e("v_and_b32 v4, 15, v0")
    e(f"s_lshl_b32 {s(S_T1)}, {s(S_NT)}, 6")
    e(f"v_lshl_add_u32 v4, v4, 2, {s(S_T1)}")
    e("v_lshlrev_b32 v4, 1, v4")
    e(f"s_lshl_b32 {s(S_T1)}, {s(S_MT)}, 6")
    e(f"v_add_u32 v5, {s(S_T1)}, v3")
    e("v_lshl_add_u32 v5, v5, 10, v4")
    e("v_lshlrev_b32 v3, 2, v3")
    e(f"s_lshl_b32 {s(S_GOFF)}, {s(S_MT)}, 8")
    e(f"s_add_u32 {s(S_GOFF)}, {s(S_GOFF)}, {WS_G}")
    YI = 2 if half == 0 else 12
    YC = 5 if half == 0 else 15
    btok = {}

    def bread(j):
        r = j - 16
        for h2 in range(2):
            for rd in range(2):
                areg = (8 + h2) if r < 8 else (10 + h2)
                off = (r % 8) * 2048 + rd * 1024
                btok[j] = e.lds(f"ds_read_b64_tr_b16 {v(bbuf[j] + 4 * h2 + 2 * rd, 2)}, {v(areg)} offset:{off}")
    bbuf = {}
    for j in range(NS):
        if j == YI:
            ycheck_issue()
        if j == YC:
            ycheck()
            issue_next()
        if j == NS - 4:
            e.vm(f"buffer_load_dword v13, v3, {s(SRD_WS, 4)}, {s(S_GOFF)} offen sc1")
            e.vm(f"buffer_load_dword v14, v3, {s(SRD_WS, 4)}, {s(S_GOFF)} offen offset:64 sc1")
            e.vm(f"global_load_dwordx2 v[6:7], v4, {s(P_DSK, 2)}")
            e.vm(f"buffer_load_dwordx2 v[16:17], v5, {s(SRD_X, 4)}, 0 offen")
            e(f"s_mov_b32 {s(S_T0)}, {16 * 1024}")
            e.vm(f"buffer_load_dwordx2 v[18:19], v5, {s(SRD_X, 4)}, {s(S_T0)} offen")
        if half == 1 and j + 1 >= 16 and j + 1 < NS:
            bbuf[j + 1] = V_X + 8 * ((j + 1) % 2)
            bread(j + 1)
        a = aslot[j]
        b = V_X + 8 * j if j < 16 else bbuf[j]
        e.wait(vm=atok[j] - 1, lg=btok.get(j))
        mfma(e, AC, b, a, j == 0)
        mfma(e, AC + 16, b + 4, a, j == 0)
        e.wait(vm=atok[j])
        mfma(e, AC + 32, b, a + 4, j == 0)
        mfma(e, AC + 48, b + 4, a + 4, j == 0)
        free.append(a)
        if 2 <= j < 16:
            free.append(b)
        issue_next()
    stamp(e, SV, 46)
    e("v_and_b32 v1, 31, v0")
    e("v_lshrrev_b32 v2, 5, v0")
    e("v_and_b32 v8, 7, v0")
    e("v_xor_b32 v2, v2, v8")
    e("v_lshlrev_b32 v2, 4, v2")
    e("v_lshl_add_u32 v1, v1, 8, v2")
    e(f"v_add_u32 v8, {s(S_LBS)}, v1")
    for a in range(1, 4):
        e(f"v_xor_b32 {v(8 + a)}, {32 * a}, v8")
    e.nop(4)
    for mi in range(2):
        for ni in range(2):
            A = AC + 32 * mi + 16 * ni
            for a in range(4):
                e.lds(f"ds_write_b128 {v(8 + a)}, {v(A + 4 * a, 4)} offset:{mi * 8192 + ni * 128}")
    e("v_lshrrev_b32 v1, 4, v0")
    e("v_and_b32 v2, 15, v0")
    e("v_xor_b32 v2, v2, v1")
    e("v_lshlrev_b32 v2, 4, v2")
    e("v_lshl_add_u32 v1, v1, 8, v2")
    e(f"s_lshl_b32 {s(S_T0)}, {s(S_WV)}, 11")
    e(f"v_add_u32 v1, {s(S_T0)}, v1")
    e("v_xor_b32 v2, 64, v1")
    e("v_add_u32 v2, 1024, v2")
    e(f"v_add_u32 v3, {4 * REG}, v1")
    e(f"v_add_u32 v4, {4 * REG}, v2")
    e("v_lshlrev_b32 v5, 1, v5")
    e("s_waitcnt vmcnt(0)")
    SK, DS, FS = 24, 32, 40
    for k in range(2):
        e(f"v_lshlrev_b32 {v(DS + 2 * k)}, 16, {v(6 + k)}")
        e(f"v_and_b32 {v(DS + 2 * k + 1)}, 0xffff0000, {v(6 + k)}")
    for p in range(2):
        for k in range(2):
            e(f"v_lshlrev_b32 {v(SK + 4 * p + 2 * k)}, 16, {v(16 + 2 * p + k)}")
            e(f"v_and_b32 {v(SK + 4 * p + 2 * k + 1)}, 0xffff0000, {v(16 + 2 * p + k)}")
        for k in range(4):
            e(f"v_mul_f32 {v(SK + 4 * p + k)}, {v(SK + 4 * p + k)}, {v(DS + k)}")
        for k in range(2):
            e(f"v_cvt_pk_bf16_f32 v36, {v(SK + 4 * p + 2 * k)}, {v(SK + 4 * p + 2 * k + 1)}")
            e(f"v_lshlrev_b32 {v(SK + 4 * p + 2 * k)}, 16, v36")
            e(f"v_and_b32 {v(SK + 4 * p + 2 * k + 1)}, 0xffff0000, v36")
        e(f"v_sub_f32 {v(20 + p)}, 1.0, {v(13 + p)}")
        e(f"v_cvt_pk_bf16_f32 {v(20 + p)}, {v(20 + p)}, {v(20 + p)}")
        e(f"v_lshlrev_b32 {v(20 + p)}, 16, {v(20 + p)}")
    e.wait_all_lg()
    stamp(e, SV, 47)
    e("s_barrier")
    stamp(e, SV, 48)
    toks = []
    for q in range(8):
        for p in range(2):
            ar = (1 + p) if q < 4 else (3 + p)
            toks.append(e.lds(f"ds_read_b128 {v(AC + 8 * q + 4 * p, 4)}, {v(ar)} offset:{(q % 4) * REG}"))
    for q in range(4):
        e.wait(lg=toks[2 * q + 1])
        for k in range(8):
            e(f"v_add_f32 {v(SK + k)}, {v(SK + k)}, {v(AC + 8 * q + k)}")
    for k in range(8):
        e(f"v_mul_f32 {v(SK + k)}, {v(13 + k // 4)}, {v(SK + k)}")
    e.wait(lg=toks[11])
    for k in range(8):
        e(f"v_add_f32 {v(FS + k)}, {v(AC + 32 + k)}, {v(AC + 40 + k)}")
    e.wait(lg=toks[15])
    for k in range(8):
        e(f"v_add_f32 {v(AC + 48 + k)}, {v(AC + 48 + k)}, {v(AC + 56 + k)}")
    for k in range(8):
        e(f"v_add_f32 {v(FS + k)}, {v(FS + k)}, {v(AC + 48 + k)}")
    for k in range(8):
        e(f"v_fmac_f32 {v(SK + k)}, {v(20 + k // 4)}, {v(FS + k)}")
    e.vm(f"buffer_store_dwordx4 {v(SK, 4)}, v5, {s(SO, 4)}, 0 offen{OUTP}")
    e(f"s_mov_b32 {s(S_T0)}, {16 * 2048}")
    e.vm(f"buffer_store_dwordx4 {v(SK + 4, 4)}, v5, {s(SO, 4)}, {s(S_T0)} offen{OUTP}")
    if STAMPS:
        stamp(e, SV, 49)
        e("s_waitcnt vmcnt(0)")
        stamp(e, SV, 50)
        stamp(e, SV, 61, True)
        e("s_lshl_b32 s96, s2, 3")
        e(f"s_add_u32 s96, s96, {s(S_WV)}")
        e("s_lshl_b32 s96, s96, 8")
        e(f"s_add_u32 s96, s96, {WS_STAMP}")
        e("v_lshl_add_u32 v1, v0, 2, s96")
        e(f"global_store_dword v1, {v(SV)}, {s(P_WS, 2)}")
    e("s_endpgm")


def gen():
    e = Path()
    prologue_common(e)
    out = [e]
    for typ, half, lab in (('X', 0, None), ('X', 1, 'L_X1'), ('Y', 0, 'L_Y0'), ('Y', 1, 'L_Y1')):
        p = e.fork()
        if lab:
            p.label(lab)
        path(p, typ, half)
        out.append(p)
    for half in range(2):
        z = Path()
        phase2(z, half)
        out.append(z)
    z = Path()
    z.label("L_exit")
    z("s_endpgm")
    z.label("L_code_end")
    out.append(z)
    return "".join(x.text() for x in out)


HERE = os.path.dirname(os.path.abspath(__file__))
HEADER = open(os.path.join(HERE, "..", "cdna_kernels", NAME + ".s.ref")).read()


def main():
    hdr = []
    for line in HEADER.splitlines():
        if line.startswith(";") and "@launch" not in line:
            hdr.append(line)
        elif not line.startswith(";"):
            break
    out = "\n".join(hdr) + "\n"
    out += f"; @launch grid=(256,1,1) block=(512,1,1) lds={LDS_BYTES}\n"
    out += '.amdgcn_target "amdgcn-amd-amdhsa--gfx950"\n.text\n'
    name = NAME + "_kernel"
    out += f".globl {name}\n.p2align 8\n.type {name},@function\n{name}:\n" + gen()
    out += '.section .rodata,"a"\n'
    out += f""".p2align 6
.amdhsa_kernel {name}
  .amdhsa_next_free_vgpr 256
  .amdhsa_next_free_sgpr 102
  .amdhsa_accum_offset 256
  .amdhsa_group_segment_fixed_size 0
  .amdhsa_kernarg_size 136
  .amdhsa_user_sgpr_count 2
  .amdhsa_user_sgpr_kernarg_segment_ptr 1
  .amdhsa_system_sgpr_workgroup_id_x 1
  .amdhsa_float_denorm_mode_32 3
  .amdhsa_float_denorm_mode_16_64 3
.end_amdhsa_kernel
"""
    dst = sys.argv[1] if len(sys.argv) > 1 else os.path.join(HERE, "..", "cdna_kernels", NAME + ".s")
    open(dst, "w").write(out)
    print("wrote", dst, len(out), "bytes")


if __name__ == "__main__":
    main()
```

```python
import sys, os
sys.path.insert(0, os.path.dirname(os.path.abspath(__file__)))
from asmlib import Emit, v, s

NAME = "gated_mix__ssm_conv_s5__swiglu_ffn__prompt"


def env(name, default):
    return int(os.environ.get(name, str(default)))


STAMPS = env("STAMPS", 0)
DBGT = env("DBGT", 0)
OUTP = os.environ.get("OUTP", " sc1")
FINE = env("FINE", 0)
ROTMASK = env("ROTMASK", 7)
CODEPF = env("CODEPF", 1)
JR0, JR1 = env("JR0", 3), env("JR1", 2)
S_JOBS = env("S_JOBS", 10)
S_GR = env("S_GR", 19)
EARLYB = env("EARLYB", 0)
S_QUIET = env("S_QUIET", 18)
S_BTA = env("S_BTA", -1)
S_BT = env("S_BT", 6)
S_BS = env("S_BS", 18)
BLAT = env("BLAT", 6)
TAILCP = env("TAILCP", 10)

KS = 176
WS_A2 = 0
A2_BYTES = 64 * KS * 1024
WS_G = A2_BYTES + 16 * KS * 1024
WS_AGG = WS_G + 8192
AGG_BYTES = 32 * 8192
WS_DONE = WS_AGG + AGG_BYTES
WS_END = WS_DONE + 32768
WS_STAMP = 24 << 20

REG = 16384
L_SEX = 131072
L_PAR = 147456
PARS = 1536
L_MISC = 161792
L_TOP = 131072
LDS_BYTES = 163840

LOG2E = 0x3FB8AA3B
NLOG2E = 0xBFB8AA3B
INV2PI = 0x3E22F983

S_ROT = 1
S_WV, S_W, S_HALF, S_I, S_CQ, S_JJ, S_UA, S_UB, S_ST0 = 3, 4, 5, 6, 7, 8, 9, 10, 11
S_T0, S_T1, S_T2, S_T3 = 12, 13, 14, 15
P_X, P_LRE, P_LIM, P_BRE, P_BIM, P_CRE, P_CIM, P_LDT = 16, 18, 20, 22, 24, 26, 28, 30
P_DSK, P_BX, P_WG, P_WU, P_WD, P_GW, P_OUT, P_DBG = 32, 34, 36, 38, 40, 42, 44, 46
P_WS = 48
S_MT, S_NT = 50, 51
SRD_X, SRD_S, SRD_G, SRD_U, SRD_WS, SRD_B = 52, 56, 60, 64, 68, 72
S_K0, S_K1 = 76, 77
S_LB0, S_LB1, S_LB2 = 78, 79, 80
S_NL2E = 81
S_A2A, S_A2B, S_A2S = 82, 83, 84
S_COL = 85
S_SPIN = 86
S_GOFF = 87
S_M0, S_M1 = 88, 90
S_PUB = 93
S_LBS = 94
S_B0 = 95
S_A0 = 35
S_EPOCH = 34

V_DA = 1
V_DB = 6
V_XA = 10
V_SA = 14
V_TA = 18
V_TB = 21
V_ST = 23
V_FR = 24
ACC = [48, 64, 80, 96, 112]
V_X = 128

DPP_X1 = "quad_perm:[1,0,3,2] row_mask:0xf bank_mask:0xf"
DPP_X2 = "quad_perm:[2,3,0,1] row_mask:0xf bank_mask:0xf"


class Path(Emit):
    cnt = 0

    def newlabel(self, base):
        Path.cnt += 1
        return f"L_{base}_{Path.cnt}"

    def fork(self):
        e = Path()
        e.vm_seq, e.vm_done, e.lg_seq, e.lg_done = self.vm_seq, self.vm_done, self.lg_seq, self.lg_done
        return e


class Sched:
    def __init__(self):
        self.q = []

    def add(self, gen):
        self.q.append(gen)

    def pump(self, n):
        while n > 0 and self.q:
            try:
                next(self.q[0])
                n -= 1
            except StopIteration:
                self.q.pop(0)

    def drain(self):
        self.pump(1 << 30)

    def empty(self):
        return not self.q


def run(gen):
    for _ in gen:
        pass


def srd(e, d, ptr, nbytes):
    e(f"s_mov_b32 {s(d)}, {s(ptr)}")
    e(f"s_and_b32 {s(d + 1)}, {s(ptr + 1)}, 0xffff")
    e(f"s_mov_b32 {s(d + 2)}, {nbytes}")
    e(f"s_mov_b32 {s(d + 3)}, 0x00020000")


def stamp(e, vr, idx, real=False):
    if not STAMPS:
        return
    e(f"{'s_memrealtime' if real else 's_memtime'} s[96:97]")
    e("s_waitcnt lgkmcnt(0)")
    e(f"v_writelane_b32 {v(vr)}, s96, {idx}")


def mfma(e, d, a, b, first):
    c = "0" if first else v(d, 16)
    e(f"v_mfma_f32_32x32x16_bf16 {v(d, 16)}, {v(a, 4)}, {v(b, 4)}, {c}")


def dma(e, voff, srd_, soff, off=0):
    o = f" offset:{off}" if off else ""
    return e.vm(f"buffer_load_dwordx4 {v(voff)}, {s(srd_, 4)}, {s(soff)} offen{o} lds")


def spin_tail(e, lp, sleep=1):
    e(f"s_add_u32 {s(S_SPIN)}, {s(S_SPIN)}, 1")
    e(f"s_cmp_lt_u32 {s(S_SPIN)}, 0x4000")
    e(f"s_cbranch_scc1 {lp}")


def prologue_common(e):
    e("s_cmp_ge_u32 s2, 256")
    e("s_cbranch_scc1 L_exit")
    if STAMPS or DBGT:
        e("s_memtime s[98:99]")
        e("s_memrealtime s[100:101]")
    e(f"s_load_dwordx16 {s(16, 16)}, s[0:1], 0")
    e(f"s_load_dwordx16 {s(32, 16)}, s[0:1], 64")
    e(f"s_load_dwordx2 {s(48, 2)}, s[0:1], 128")
    if CODEPF:
        e("s_getpc_b64 s[4:5]")
        e.label("L_pc")
        e("s_lshr_b32 s6, s2, 3")
        e("s_lshl_b32 s6, s6, 4")
        e("v_and_b32 v2, 15, v0")
        e("v_add_u32 v2, s6, v2")
        e("v_lshlrev_b32 v2, 7, v2")
        e("v_min_u32 v2, L_code_end-L_pc-4, v2")
        e("v_cmp_gt_u32 vcc, 16, v0")
        e("s_and_saveexec_b64 s[8:9], vcc")
        e("s_cbranch_execz L_nopf")
        e("global_load_dword v223, v2, s[4:5]")
        e.label("L_nopf")
        e("s_mov_b64 exec, s[8:9]")
    e("v_lshrrev_b32 v1, 6, v0")
    e("v_and_b32 v0, 63, v0")
    e(f"v_readfirstlane_b32 {s(S_WV)}, v1")
    e(f"s_and_b32 {s(S_T0)}, s2, 7")
    e(f"s_lshr_b32 {s(S_T1)}, s2, 3")
    e(f"s_lshr_b32 {s(S_CQ)}, {s(S_T0)}, 1")
    e(f"s_and_b32 {s(S_T2)}, {s(S_T0)}, 1")
    e(f"s_lshl_b32 {s(S_T3)}, {s(S_T2)}, 3")
    e(f"s_and_b32 {s(S_I)}, {s(S_T1)}, 7")
    e(f"s_add_u32 {s(S_I)}, {s(S_I)}, {s(S_T3)}")
    e(f"s_lshr_b32 {s(S_JJ)}, {s(S_T1)}, 3")
    e(f"s_and_b32 {s(S_W)}, {s(S_WV)}, 3")
    e(f"s_lshr_b32 {s(S_HALF)}, {s(S_WV)}, 2")
    e(f"s_lshl_b32 {s(S_MT)}, {s(S_CQ)}, 3")
    e(f"s_and_b32 {s(S_T3)}, {s(S_T1)}, 7")
    e(f"s_add_u32 {s(S_MT)}, {s(S_MT)}, {s(S_T3)}")
    e(f"s_lshl_b32 {s(S_NT)}, {s(S_T2)}, 2")
    e(f"s_add_u32 {s(S_NT)}, {s(S_NT)}, {s(S_JJ)}")
    e(f"s_mul_i32 {s(S_UA)}, {s(S_CQ)}, 7")
    e(f"s_lshl_b32 {s(S_T2)}, {s(S_JJ)}, 1")
    e(f"s_add_u32 {s(S_UA)}, {s(S_UA)}, {s(S_T2)}")
    e(f"s_add_u32 {s(S_UB)}, {s(S_UA)}, 1")
    e(f"s_cmp_eq_u32 {s(S_JJ)}, 3")
    e(f"s_cselect_b32 {s(S_UB)}, {s(S_UA)}, {s(S_UB)}")
    e(f"s_lshl_b32 {s(S_ST0)}, {s(S_CQ)}, 3")
    e(f"s_add_u32 {s(S_ST0)}, {s(S_ST0)}, {s(S_JJ)}")
    e(f"s_lshl_b32 {s(S_COL)}, {s(S_CQ)}, 2")
    e(f"s_add_u32 {s(S_COL)}, {s(S_COL)}, {s(S_JJ)}")
    e(f"s_cmp_eq_u32 {s(S_JJ)}, 3")
    e(f"s_cselect_b32 {s(S_T0)}, 2, 0")
    e(f"s_add_u32 {s(S_T0)}, {s(S_T0)}, {s(S_HALF)}")
    e(f"s_cmp_eq_u32 {s(S_T0)}, 1")
    e("s_cbranch_scc1 L_X1")
    e(f"s_cmp_eq_u32 {s(S_T0)}, 2")
    e("s_cbranch_scc1 L_Y0")
    e(f"s_cmp_eq_u32 {s(S_T0)}, 3")
    e("s_cbranch_scc1 L_Y1")


def krot(e, dst, add, mul):
    e(f"s_add_u32 {s(dst)}, {s(S_ROT)}, {add}")
    e(f"s_and_b32 {s(dst)}, {s(dst)}, 7")
    e(f"s_mul_i32 {s(dst)}, {s(dst)}, {mul}")


def unit_gen(e, typ, half, unit, utok):
    slot = unit % 4
    if unit >= 8:
        c = unit - 8
        e(f"s_add_u32 m0, {s(S_LB2)}, {slot * 4096}")
        krot(e, S_K1, 2 * c + half, 64 * 3584)
        dma(e, V_DB, SRD_G, S_K1); yield
        dma(e, V_DB + 1, SRD_G, S_K1, 1024); yield
        e(f"s_add_u32 m0, {s(S_LB2)}, {4 * REG + slot * 4096}")
        e("s_nop 0")
        dma(e, V_DB + 2, SRD_U, S_K1); yield
        utok[unit] = dma(e, V_DB + 3, SRD_U, S_K1, 1024); yield
        return
    if half == 1:
        e(f"s_add_u32 m0, {s(S_LB0)}, {slot * 4096}")
        krot(e, S_K0, unit, 128)
        for q in range(4):
            utok[unit] = dma(e, V_DA + q, SRD_X, S_K0, 1024 * q); yield
        return
    if typ == 'X':
        e(f"s_add_u32 m0, {s(S_LB0)}, {8 * REG + slot * 4096}")
        krot(e, S_K0, unit, 128)
        dma(e, V_DA, SRD_S, S_K0); yield
        e(f"s_add_u32 m0, {s(S_LB1)}, {4 * REG + slot * 4096}")
        e(f"s_mul_i32 {s(S_K1)}, {s(S_K0)}, {64 * 3584 // 128}")
        dma(e, V_DA + 1, SRD_G, S_K1); yield
        dma(e, V_DA + 2, SRD_G, S_K1, 1024); yield
        e(f"s_add_u32 m0, {s(S_LB1)}, {6 * REG + slot * 4096}")
        e("s_nop 0")
        dma(e, V_DA + 3, SRD_U, S_K1); yield
        utok[unit] = dma(e, V_DA + 4, SRD_U, S_K1, 1024); yield
        return
    for m in range(5):
        e(f"s_add_u32 m0, {s(S_LB0)}, {(4 + m) * REG + slot * 4096}")
        if m == 0:
            krot(e, S_K0, unit, 128)
        else:
            e(f"s_add_u32 {s(S_K0)}, {s(S_K0)}, 16384")
        utok[unit] = dma(e, V_DA, SRD_S, S_K0); yield


def ffn_epilogue(e, A, T, sbase, t, defer=None):
    G, U = A, A + 8
    for k in range(8):
        e(f"v_mul_f32 {v(T + k)}, {s(S_NL2E)}, {v(G + k)}"); yield
    for k in range(8):
        e(f"v_exp_f32 {v(T + k)}, {v(T + k)}"); yield
        e(f"v_mul_f32 {v(U + k)}, {v(G + k)}, {v(U + k)}"); yield
    for k in range(8):
        e(f"v_add_f32 {v(T + k)}, 1.0, {v(T + k)}"); yield
    for k in range(8):
        e(f"v_rcp_f32 {v(T + k)}, {v(T + k)}"); yield
        if k >= 2:
            e(f"v_mul_f32 {v(U + k - 2)}, {v(U + k - 2)}, {v(T + k - 2)}"); yield
    e(f"v_mul_f32 {v(U + 6)}, {v(U + 6)}, {v(T + 6)}"); yield
    e(f"v_mul_f32 {v(U + 7)}, {v(U + 7)}, {v(T + 7)}"); yield
    for p in range(4):
        e(f"v_cvt_pk_bf16_f32 {v(G + p)}, {v(U + 2 * p)}, {v(U + 2 * p + 1)}"); yield
    o = f" offset:{1024 * t}" if t else ""
    txt = f"buffer_store_dwordx4 {v(G, 4)}, {v(V_ST)}, {s(SRD_WS, 4)}, {s(sbase)} offen{o} sc1"
    if defer is not None:
        defer.append(txt)
    else:
        e.last_store = e.vm(txt); yield


def path(e, typ, half):
    T = 96
    SV = 95 if half == 0 else 5
    tok = {}
    utok = {}
    if STAMPS:
        e(f"v_mov_b32 {v(SV)}, 0")
    if half == 1:
        e("s_setprio 1")
    e(f"v_lshrrev_b32 {v(T)}, 3, v0")
    e(f"v_and_b32 {v(T + 1)}, 7, v0")
    e(f"v_lshrrev_b32 {v(T + 2)}, 4, v0")
    e(f"v_lshrrev_b32 {v(T + 3)}, 5, v0")
    e(f"v_and_b32 {v(T + 4)}, 31, v0")
    e(f"v_and_b32 {v(T + 5)}, 1, {v(T + 2)}")
    e(f"v_lshlrev_b32 {v(T + 5)}, 1, {v(T + 5)}")
    e(f"v_xor_b32 {v(T + 5)}, {v(T + 5)}, {v(T + 1)}")
    e(f"v_lshlrev_b32 {v(T + 5)}, 4, {v(T + 5)}")
    e(f"v_mul_u32_u24 {v(T + 6)}, 3584, {v(T)}")
    e(f"v_add_u32 {v(T + 5)}, {v(T + 5)}, {v(T + 6)}")
    e(f"v_lshlrev_b32 {v(V_ST)}, 4, v0")
    if half == 1:
        e(f"v_bfe_u32 {v(T + 14)}, v0, 3, 2")
        e(f"v_lshl_add_u32 {v(T + 14)}, {v(T + 3)}, 4, {v(T + 14)}")
        e(f"v_xor_b32 {v(T + 15)}, {v(T + 1)}, {v(T + 2)}")
        e(f"v_lshlrev_b32 {v(T + 15)}, 4, {v(T + 15)}")
        e(f"v_lshl_add_u32 {v(T + 14)}, {v(T + 14)}, 10, {v(T + 15)}")
        e(f"s_lshl_b32 {s(S_T0)}, {s(S_I)}, 17")
        e(f"s_lshl_b32 {s(S_T1)}, {s(S_W)}, 15")
        e(f"s_add_u32 {s(S_T0)}, {s(S_T0)}, {s(S_T1)}")
        e(f"v_add_u32 {v(V_DA)}, {s(S_T0)}, {v(T + 14)}")
        e(f"v_xor_b32 {v(T + 14)}, 64, {v(V_DA)}")
        e(f"v_add_u32 {v(V_DA + 1)}, {4096 - 1024}, {v(T + 14)}")
        e(f"v_add_u32 {v(V_DA + 2)}, {2 * (4096 - 1024)}, {v(V_DA)}")
        e(f"v_add_u32 {v(V_DA + 3)}, {3 * (4096 - 1024)}, {v(T + 14)}")
        e(f"s_lshl_b32 {s(S_LB0)}, {s(S_W)}, 14")
        e("s_waitcnt lgkmcnt(0)")
        srd(e, SRD_X, P_X, 2048 * 1024)
    else:
        e(f"s_lshr_b32 {s(S_T0)}, {s(S_W)}, 1")
        e(f"s_lshl_b32 {s(S_T0)}, {s(S_T0)}, 2")
        e(f"v_xor_b32 {v(T + 14)}, {v(T + 1)}, {v(T + 2)}")
        e(f"v_xor_b32 {v(T + 14)}, {s(S_T0)}, {v(T + 14)}")
        e(f"v_lshlrev_b32 {v(T + 14)}, 4, {v(T + 14)}")
        e(f"v_lshl_add_u32 {v(T + 14)}, {v(T)}, 10, {v(T + 14)}")
        e(f"s_lshl_b32 {s(S_T0)}, {s(S_ST0)}, 14")
        e(f"s_and_b32 {s(S_T1)}, {s(S_W)}, 1")
        e(f"s_lshl_b32 {s(S_T1)}, {s(S_T1)}, 13")
        e(f"s_add_u32 {s(S_T0)}, {s(S_T0)}, {s(S_T1)}")
        e(f"v_add_u32 {v(V_DA)}, {s(S_T0)}, {v(T + 14)}")
        e(f"s_lshl_b32 {s(S_LB0)}, {s(S_W)}, 10")
        if typ == 'X':
            e(f"s_mul_i32 {s(S_T0)}, {s(S_W)}, {16 * 3584}")
            e(f"s_lshl_b32 {s(S_T1)}, {s(S_UA)}, 7")
            e(f"s_add_u32 {s(S_T0)}, {s(S_T0)}, {s(S_T1)}")
            e(f"v_add_u32 {v(V_DA + 1)}, {s(S_T0)}, {v(T + 5)}")
            e(f"v_add_u32 {v(V_DA + 2)}, {8 * 3584 - 1024}, {v(V_DA + 1)}")
            e(f"v_xor_b32 {v(V_DA + 3)}, 64, {v(V_DA + 1)}")
            e(f"v_xor_b32 {v(V_DA + 4)}, 64, {v(V_DA + 2)}")
            e(f"s_lshr_b32 {s(S_LB1)}, {s(S_W)}, 1")
            e(f"s_lshl_b32 {s(S_LB1)}, {s(S_LB1)}, 14")
            e(f"s_and_b32 {s(S_T0)}, {s(S_W)}, 1")
            e(f"s_lshl_b32 {s(S_T0)}, {s(S_T0)}, 11")
            e(f"s_add_u32 {s(S_LB1)}, {s(S_LB1)}, {s(S_T0)}")
        e("s_waitcnt lgkmcnt(0)")
        e(f"s_cmp_lt_u32 {s(S_W)}, 2")
        e(f"s_cselect_b32 {s(SRD_S)}, {s(P_BRE)}, {s(P_BIM)}")
        e(f"s_cselect_b32 {s(SRD_S + 1)}, {s(P_BRE + 1)}, {s(P_BIM + 1)}")
        e(f"s_and_b32 {s(SRD_S + 1)}, {s(SRD_S + 1)}, 0xffff")
        e(f"s_mov_b32 {s(SRD_S + 2)}, {512 * 1024}")
        e(f"s_mov_b32 {s(SRD_S + 3)}, 0x00020000")
        if typ == 'X':
            srd(e, SRD_G, P_WG, 512 * 3584)
            srd(e, SRD_U, P_WU, 512 * 3584)
    if STAMPS:
        e(f"v_writelane_b32 {v(SV)}, s98, 0")
        e(f"v_writelane_b32 {v(SV)}, s100, 60")
    stamp(e, SV, 1)
    e(f"s_lshl_b32 {s(S_ROT)}, {s(S_JJ)}, 1")
    e(f"s_add_u32 {s(S_ROT)}, {s(S_ROT)}, {s(S_I)}")
    e(f"s_and_b32 {s(S_ROT)}, {s(S_ROT)}, {ROTMASK}")
    run(unit_gen(e, typ, half, 0, utok))
    stamp(e, SV, 51)
    G = 224
    PP = 236
    if half == 0:
        lab = e.newlabel("ep_skip")
        e(f"v_mov_b32 {v(PP + 1)}, 0")
        e(f"s_lshl_b32 {s(S_T0)}, {s(S_W)}, 3")
        e(f"s_or_b32 {s(S_T0)}, {s(S_T0)}, s2")
        e(f"s_cmp_ge_u32 {s(S_T0)}, 8")
        e(f"s_cbranch_scc1 {lab}")
        e(f"s_memrealtime {s(S_M0, 2)}")
        e("s_waitcnt lgkmcnt(0)")
        e(f"s_or_b32 {s(S_T0)}, {s(S_M0)}, 1")
        e(f"v_mov_b32 {v(PP)}, {s(S_T0)}")
        e("s_mov_b64 exec, 1")
        e(f"global_atomic_cmpswap {v(PP + 1)}, {v(PP, 2)}, {s(P_DBG, 2)} sc1")
        e("s_mov_b64 exec, -1")
        e.label(lab)
        srd(e, SRD_X, P_X, 2048 * 1024)
    if not (half == 0 and typ == 'X'):
        srd(e, SRD_G, P_WG, 512 * 3584)
        srd(e, SRD_U, P_WU, 512 * 3584)
    srd(e, SRD_WS, P_WS, WS_END)
    e(f"s_mov_b32 {s(S_NL2E)}, {NLOG2E:#x}")
    e("s_barrier")
    if half == 1:
        run(unit_gen(e, typ, half, 1, utok))
    stamp(e, SV, 52)
    e(f"s_lshl_b32 {s(S_T0)}, {s(S_I)}, 7")
    e(f"s_lshl_b32 {s(S_T1)}, {s(S_COL)}, 3")
    e(f"s_add_u32 {s(S_T0)}, {s(S_T0)}, {s(S_T1)}")
    e(f"s_add_u32 {s(S_T0)}, {s(S_T0)}, {s(S_WV)}")
    e(f"s_lshl_b32 {s(S_T1)}, {s(S_T0)}, 10")
    e(f"s_lshl_b32 {s(S_GOFF)}, {s(S_T0)}, 2")
    e(f"s_add_u32 {s(S_GOFF)}, {s(S_GOFF)}, {WS_G}")
    e(f"v_add_u32 {v(PP + 3)}, {s(S_T1)}, {v(V_ST)}")
    own0 = 0 if half == 0 else 2
    e(f"s_add_u32 {s(S_PUB)}, {s(S_ST0)}, {s(S_W)}")
    e(f"s_lshl_b32 {s(S_PUB)}, {s(S_PUB)}, 13")
    e(f"s_add_u32 {s(S_PUB)}, {s(S_PUB)}, {WS_AGG + own0 * 8192}")
    e(f"s_lshl_b32 {s(S_T0)}, {s(S_I)}, 8")
    e(f"s_add_u32 {s(S_PUB)}, {s(S_PUB)}, {s(S_T0)}")
    if half == 0:
        e(f"s_cmp_eq_u32 {s(S_W)}, 0")
        e(f"s_cselect_b32 {s(S_T1)}, 4, 0")
        e(f"v_mul_u32_u24 {v(G + 8)}, {s(S_T1)}, {v(T + 3)}")
        e(f"s_add_u32 {s(S_T0)}, {s(S_ST0)}, {s(S_W)}")
        e(f"v_add_u32 {v(G + 8)}, {s(S_T0)}, {v(G + 8)}")
        e(f"v_min_u32 {v(G + 8)}, 31, {v(G + 8)}")
        e(f"v_and_b32 {v(G + 9)}, 30, v0")
        e(f"v_lshl_add_u32 {v(G + 8)}, {v(G + 8)}, 5, {v(G + 9)}")
    e(f"s_mul_i32 {s(S_T0)}, {s(S_W)}, {16 * 3584}")
    e(f"s_lshl_b32 {s(S_T1)}, {s(S_UB)}, 7")
    e(f"s_add_u32 {s(S_T0)}, {s(S_T0)}, {s(S_T1)}")
    e(f"v_add_u32 {v(V_DB)}, {s(S_T0)}, {v(T + 5)}")
    e(f"v_add_u32 {v(V_DB + 1)}, {8 * 3584 - 1024}, {v(V_DB)}")
    e(f"v_xor_b32 {v(V_DB + 2)}, 64, {v(V_DB)}")
    e(f"v_xor_b32 {v(V_DB + 3)}, 64, {v(V_DB + 1)}")
    e(f"v_bfe_u32 {v(T + 6)}, v0, 1, 3")
    e(f"v_xor_b32 {v(T + 6)}, {v(T + 6)}, {v(T + 3)}")
    e(f"v_lshlrev_b32 {v(T + 6)}, 4, {v(T + 6)}")
    e(f"v_lshl_add_u32 {v(T + 6)}, {v(T + 4)}, 7, {v(T + 6)}")
    e(f"s_lshl_b32 {s(S_T0)}, {s(S_W)}, 14")
    e(f"v_add_u32 {v(V_XA)}, {s(S_T0)}, {v(T + 6)}")
    for u in range(1, 4):
        e(f"v_xor_b32 {v(V_XA + u)}, {32 * u}, {v(V_XA)}")
    e(f"v_bfe_u32 {v(T + 7)}, v0, 2, 2")
    e(f"v_lshl_add_u32 {v(T + 8)}, {v(T + 3)}, 3, {v(T + 7)}")
    e(f"v_lshlrev_b32 {v(T + 8)}, 7, {v(T + 8)}")
    e(f"v_and_b32 {v(T + 11)}, 3, v0")
    e(f"v_lshl_add_u32 {v(T + 8)}, {v(T + 11)}, 3, {v(T + 8)}")
    e(f"v_and_b32 {v(T + 9)}, 1, {v(T + 2)}")
    e(f"v_lshrrev_b32 {v(T + 10)}, 1, {v(T + 7)}")
    e(f"v_lshl_add_u32 {v(T + 10)}, {v(T + 9)}, 1, {v(T + 10)}")
    e(f"v_lshl_add_u32 {v(T + 8)}, {v(T + 10)}, 5, {v(T + 8)}")
    e(f"v_lshl_add_u32 {v(T + 10)}, {v(T + 9)}, 16, {v(T + 8)}")
    e(f"v_xor_b32 {v(V_TB)}, {64 * half}, {v(T + 10)}")
    e(f"v_xor_b32 {v(V_TB + 1)}, 32, {v(V_TB)}")
    if typ == 'X':
        tilesA = [('S', 0), ('F', 0)] if half == 0 else [('F', 1), ('F', 2), ('F', 3)]
    else:
        tilesA = [('S', 0), ('S', 1)] if half == 0 else [('S', 2), ('S', 3), ('S', 4)]
    stiles = [m for k, m in tilesA if k == 'S']
    ft = [m for k, m in tilesA if k == 'F']
    if ft:
        e(f"v_lshl_add_u32 {v(T + 10)}, {v(T + 9)}, 15, {v(T + 8)}")
        e(f"v_add_u32 {v(T + 10)}, {4 * REG}, {v(T + 10)}")
        for idx, t in enumerate(ft):
            e(f"v_xor_b32 {v(V_TA + idx)}, {32 * t}, {v(T + 10)}")
    if stiles:
        e(f"v_and_b32 {v(T + 12)}, 1, v0")
        e(f"v_lshrrev_b32 {v(T + 13)}, 1, {v(T + 4)}")
        e(f"v_lshl_add_u32 {v(T + 13)}, {v(T + 12)}, 4, {v(T + 13)}")
        e(f"v_bfe_u32 {v(T + 14)}, {v(T + 13)}, 1, 2")
        e(f"v_lshl_add_u32 {v(T + 14)}, {v(T + 12)}, 2, {v(T + 14)}")
        e(f"v_xor_b32 {v(T + 14)}, {v(T + 14)}, {v(T + 3)}")
        e(f"v_lshlrev_b32 {v(T + 14)}, 4, {v(T + 14)}")
        e(f"v_lshl_add_u32 {v(T + 14)}, {v(T + 13)}, 7, {v(T + 14)}")
        base = (8 * REG) if typ == 'X' else (4 + stiles[0]) * REG
        e(f"v_add_u32 {v(V_SA)}, {base}, {v(T + 14)}")
        for u in range(1, 4):
            e(f"v_xor_b32 {v(V_SA + u)}, {32 * u}, {v(V_SA)}")
    e(f"s_lshr_b32 {s(S_LB2)}, {s(S_WV)}, 1")
    e(f"s_lshl_b32 {s(S_LB2)}, {s(S_LB2)}, 14")
    e(f"s_and_b32 {s(S_T0)}, {s(S_WV)}, 1")
    e(f"s_lshl_b32 {s(S_T0)}, {s(S_T0)}, 11")
    e(f"s_add_u32 {s(S_LB2)}, {s(S_LB2)}, {s(S_T0)}")
    e(f"s_lshl_b32 {s(S_LBS)}, {s(S_WV)}, 14")
    e(f"s_lshl_b32 {s(S_T0)}, {s(S_I)}, 2")
    e(f"s_add_u32 {s(S_T0)}, {s(S_T0)}, {s(S_W)}")
    e(f"s_mul_i32 {s(S_T0)}, {s(S_T0)}, {KS * 1024}")
    e(f"s_lshl_b32 {s(S_T1)}, {s(S_UA)}, 12")
    e(f"s_add_u32 {s(S_A2A)}, {s(S_T0)}, {s(S_T1)}")
    e(f"s_lshl_b32 {s(S_T1)}, {s(S_UB)}, 12")
    e(f"s_add_u32 {s(S_A2B)}, {s(S_T0)}, {s(S_T1)}")
    e(f"s_lshl_b32 {s(S_T1)}, {s(S_ST0)}, 11")
    e(f"s_add_u32 {s(S_A2S)}, {s(S_T0)}, {s(S_T1)}")
    e(f"s_add_u32 {s(S_A2S)}, {s(S_A2S)}, {112 * 1024}")
    e(f"s_mul_i32 {s(S_A0)}, {s(S_MT)}, {2 * KS * 1024}")
    if half == 0:
        e(f"s_lshl_b32 {s(S_T0)}, {s(S_W)}, 14")
        e(f"s_add_u32 {s(S_A0)}, {s(S_A0)}, {s(S_T0)}")
        e(f"s_add_u32 {s(S_A0)}, {s(S_A0)}, {112 * 1024}")
        e(f"s_lshl_b32 {s(S_B0)}, {s(S_NT)}, 16")
        e(f"s_lshl_b32 {s(S_T0)}, {s(S_W)}, 8")
        e(f"s_add_u32 {s(S_B0)}, {s(S_B0)}, {s(S_T0)}")
    else:
        e(f"s_mul_i32 {s(S_T0)}, {s(S_W)}, {28 * 1024}")
        e(f"s_add_u32 {s(S_A0)}, {s(S_A0)}, {s(S_T0)}")
        e(f"s_mul_i32 {s(S_B0)}, {s(S_W)}, {448 * 1024}")
        e(f"s_lshl_b32 {s(S_T0)}, {s(S_NT)}, 7")
        e(f"s_add_u32 {s(S_B0)}, {s(S_B0)}, {s(S_T0)}")
        srd(e, SRD_B, P_WD, 1792 * 1024)
    stamp(e, SV, 2)

    def small_gen():
        if half == 0:
            e.vm(f"global_load_ushort {v(G + 9)}, {v(G + 8)}, {s(P_LRE, 2)}")
            e.vm(f"global_load_ushort {v(G + 10)}, {v(G + 8)}, {s(P_LIM, 2)}")
            tok['par'] = e.vm(f"global_load_ushort {v(G + 11)}, {v(G + 8)}, {s(P_LDT, 2)}"); yield
        e.vm(f"buffer_load_dwordx4 {v(G, 4)}, {v(PP + 3)}, {s(SRD_X, 4)}, 0 offen"); yield
        tok['gw'] = e.vm(f"global_load_dwordx4 {v(G + 4, 4)}, {v(V_ST)}, {s(P_GW, 2)}"); yield

    def job_gate():
        TT = 96
        e.wait(vm=tok['gw'])
        for j in range(4):
            e(f"v_lshlrev_b32 {v(TT + 2 * j)}, 16, {v(G + j)}"); yield
            e(f"v_and_b32 {v(TT + 2 * j + 1)}, 0xffff0000, {v(G + j)}"); yield
            e(f"v_lshlrev_b32 {v(TT + 8 + 2 * j)}, 16, {v(G + 4 + j)}"); yield
            e(f"v_and_b32 {v(TT + 8 + 2 * j + 1)}, 0xffff0000, {v(G + 4 + j)}"); yield
        tok['xfree1'] = True
        for j in range(8):
            e(f"v_mul_f32 {v(TT + j)}, {v(TT + j)}, {v(TT + 8 + j)}"); yield
        for j in range(4):
            e(f"v_cvt_pk_bf16_f32 {v(TT + 8 + j)}, {v(TT + 2 * j)}, {v(TT + 2 * j + 1)}"); yield
        for j in range(4):
            e(f"v_lshlrev_b32 {v(TT + 2 * j)}, 16, {v(TT + 8 + j)}"); yield
            e(f"v_and_b32 {v(TT + 2 * j + 1)}, 0xffff0000, {v(TT + 8 + j)}"); yield
        for j in range(4):
            e(f"v_add_f32 {v(TT + j)}, {v(TT + j)}, {v(TT + 4 + j)}"); yield
        e(f"v_add_f32 {v(TT)}, {v(TT)}, {v(TT + 2)}"); yield
        e(f"v_add_f32 {v(TT + 1)}, {v(TT + 1)}, {v(TT + 3)}"); yield
        e(f"v_add_f32 {v(TT)}, {v(TT)}, {v(TT + 1)}"); yield
        a, b = TT, TT + 1
        for d in (DPP_X1, DPP_X2, "row_half_mirror row_mask:0xf bank_mask:0xf", "row_mirror row_mask:0xf bank_mask:0xf"):
            e.nop(2)
            e(f"v_add_f32_dpp {v(b)}, {v(a)}, {v(a)} {d}"); yield
            a, b = b, a
        e.nop(1)
        e(f"v_readlane_b32 {s(S_T0)}, {v(a)}, 16")
        e(f"v_readlane_b32 {s(S_T1)}, {v(a)}, 32")
        e(f"v_readlane_b32 {s(S_T2)}, {v(a)}, 48")
        e.nop(2)
        e(f"v_add_f32 {v(a)}, {s(S_T0)}, {v(a)}")
        e(f"v_mov_b32 {v(b)}, {s(S_T1)}")
        e(f"v_add_f32 {v(b)}, {s(S_T2)}, {v(b)}"); yield
        e(f"v_add_f32 {v(a)}, {v(a)}, {v(b)}"); yield
        e(f"v_cvt_pk_bf16_f32 {v(a)}, {v(a)}, {v(a)}"); yield
        e(f"v_lshlrev_b32 {v(a)}, 16, {v(a)}"); yield
        e(f"v_mul_f32 {v(a)}, {s(S_NL2E)}, {v(a)}"); yield
        e(f"v_exp_f32 {v(a)}, {v(a)}"); yield
        e(f"s_lshl_b32 {s(S_T0)}, {s(S_WV)}, 2")
        e(f"s_add_u32 {s(S_T0)}, {s(S_T0)}, {L_MISC + 64}")
        e(f"v_mov_b32 {v(b)}, {s(S_T0)}"); yield
        e(f"v_add_f32 {v(a)}, 1.0, {v(a)}"); yield
        e(f"v_rcp_f32 {v(a)}, {v(a)}"); yield
        e.nop(1)
        e(f"v_cvt_pk_bf16_f32 {v(a)}, {v(a)}, {v(a)}"); yield
        e(f"v_lshlrev_b32 {v(a)}, 16, {v(a)}"); yield
        e("s_mov_b64 exec, 1")
        e.lds(f"ds_write_b32 {v(b)}, {v(a)}")
        e("s_mov_b64 exec, -1"); yield

    def job_params():
        TT = 80
        P = 112
        LRE, LIM, LD = TT + 10, TT + 11, TT + 12
        e.wait(vm=tok['par'])
        e(f"v_lshlrev_b32 {v(LRE)}, 16, {v(G + 9)}"); yield
        e(f"v_lshlrev_b32 {v(LIM)}, 16, {v(G + 10)}"); yield
        e(f"v_lshlrev_b32 {v(LD)}, 16, {v(G + 11)}"); yield
        e(f"v_mul_f32 {v(LD)}, {LOG2E:#x}, {v(LD)}"); yield
        e(f"v_exp_f32 {v(LD)}, {v(LD)}"); yield
        e(f"v_mul_f32 {v(TT + 5)}, {v(LRE)}, {v(LRE)}"); yield
        e(f"v_cvt_pk_bf16_f32 {v(LD)}, {v(LD)}, {v(LD)}"); yield
        e(f"v_lshlrev_b32 {v(LD)}, 16, {v(LD)}"); yield
        e(f"v_mul_f32 {v(TT)}, {v(LD)}, {v(LRE)}"); yield
        e(f"v_mul_f32 {v(TT + 1)}, {v(LD)}, {v(LIM)}"); yield
        e(f"v_mul_f32 {v(TT)}, {LOG2E:#x}, {v(TT)}"); yield
        e(f"v_exp_f32 {v(TT)}, {v(TT)}"); yield
        e(f"v_mul_f32 {v(TT + 1)}, {INV2PI:#x}, {v(TT + 1)}"); yield
        e(f"v_rndne_f32 {v(TT + 2)}, {v(TT + 1)}"); yield
        e(f"v_sub_f32 {v(TT + 1)}, {v(TT + 1)}, {v(TT + 2)}"); yield
        e(f"v_cos_f32 {v(TT + 2)}, {v(TT + 1)}"); yield
        e(f"v_sin_f32 {v(TT + 3)}, {v(TT + 1)}"); yield
        e(f"v_fmac_f32 {v(TT + 5)}, {v(LIM)}, {v(LIM)}"); yield
        e(f"v_mul_f32 {v(TT + 2)}, {v(TT)}, {v(TT + 2)}"); yield
        e(f"v_mul_f32 {v(TT + 3)}, {v(TT)}, {v(TT + 3)}"); yield
        e(f"v_rcp_f32 {v(TT + 5)}, {v(TT + 5)}"); yield
        e(f"v_add_f32 {v(TT + 4)}, -1.0, {v(TT + 2)}"); yield
        e(f"v_mul_f32 {v(TT + 6)}, {v(TT + 4)}, {v(LRE)}"); yield
        e(f"v_fmac_f32 {v(TT + 6)}, {v(TT + 3)}, {v(LIM)}"); yield
        e(f"v_mul_f32 {v(TT + 7)}, {v(TT + 3)}, {v(LRE)}"); yield
        e(f"v_fma_f32 {v(TT + 7)}, -{v(TT + 4)}, {v(LIM)}, {v(TT + 7)}"); yield
        e(f"v_add_f32 {v(TT + 5)}, {v(TT + 5)}, {v(TT + 5)}"); yield
        e(f"v_mul_f32 {v(TT + 6)}, {v(TT + 6)}, {v(TT + 5)}"); yield
        e(f"v_mul_f32 {v(TT + 7)}, {v(TT + 7)}, {v(TT + 5)}"); yield
        e(f"v_and_b32 {v(TT + 8)}, 1, v0"); yield
        e(f"v_lshlrev_b32 {v(TT + 8)}, 31, {v(TT + 8)}"); yield
        e(f"v_xor_b32 {v(TT + 9)}, 0x80000000, {v(TT + 8)}"); yield
        e(f"v_xor_b32 {v(P + 8)}, {v(TT + 8)}, {v(TT + 6)}"); yield
        e(f"v_xor_b32 {v(P + 9)}, 0x80000000, {v(TT + 7)}"); yield
        e(f"v_mov_b32 {v(P)}, {v(TT + 2)}"); yield
        e(f"v_xor_b32 {v(P + 1)}, {v(TT + 9)}, {v(TT + 3)}"); yield

        def square():
            e(f"v_mul_f32 {v(TT + 4)}, {v(TT + 3)}, {v(TT + 3)}"); yield
            e(f"v_mul_f32 {v(TT + 5)}, {v(TT + 2)}, {v(TT + 3)}"); yield
            e(f"v_fma_f32 {v(TT + 2)}, {v(TT + 2)}, {v(TT + 2)}, -{v(TT + 4)}"); yield
            e(f"v_add_f32 {v(TT + 3)}, {v(TT + 5)}, {v(TT + 5)}"); yield
        for k_, nsq in ((2, 4), (4, 3), (6, 1)):
            for _ in range(nsq):
                yield from square()
            e(f"v_mov_b32 {v(P + k_)}, {v(TT + 2)}"); yield
            e(f"v_xor_b32 {v(P + k_ + 1)}, {v(TT + 9)}, {v(TT + 3)}"); yield
        e(f"s_cmp_eq_u32 {s(S_W)}, 0")
        e(f"s_cselect_b32 {s(S_T1)}, {4 * PARS}, 0")
        e(f"v_lshrrev_b32 {v(TT)}, 5, v0")
        e(f"v_mul_u32_u24 {v(TT)}, {s(S_T1)}, {v(TT)}"); yield
        e(f"v_and_b32 {v(TT + 1)}, 31, v0"); yield
        e(f"v_mul_u32_u24 {v(TT + 1)}, 48, {v(TT + 1)}"); yield
        e(f"s_mul_i32 {s(S_T0)}, {s(S_W)}, {PARS}")
        e(f"s_add_u32 {s(S_T0)}, {s(S_T0)}, {L_PAR}")
        e(f"v_add3_u32 {v(TT)}, {v(TT)}, {v(TT + 1)}, {s(S_T0)}"); yield
        e.lds(f"ds_write_b128 {v(TT)}, {v(P, 4)}"); yield
        e.lds(f"ds_write_b128 {v(TT)}, {v(P + 4, 4)} offset:16"); yield
        e.lds(f"ds_write_b64 {v(TT)}, {v(P + 8, 2)} offset:32"); yield

    side = Sched()
    dq = Sched()
    dtags = []
    ucomplete = {0, 1, 2} if half == 1 else {0, 1}

    def dadd(gen, tag):
        dq.add(gen)
        dtags.append(tag)

    def dpump():
        while dq.q:
            try:
                next(dq.q[0])
                return
            except StopIteration:
                dq.q.pop(0)
                ucomplete.add(dtags.pop(0))

    def need_unit(u):
        while u not in ucomplete:
            for _ in dq.q[0]:
                pass
            dq.q.pop(0)
            ucomplete.add(dtags.pop(0))

    if half == 0:
        run(unit_gen(e, typ, half, 1, utok))
        dadd(unit_gen(e, typ, half, 2, utok), 2)
    else:
        run(unit_gen(e, typ, half, 2, utok))
    dadd(unit_gen(e, typ, half, 3, utok), 3)
    e.wait(vm=utok[0])
    stamp(e, SV, 3)
    e("s_barrier")
    stamp(e, SV, 4)

    ftok = {}

    def readA(S, idx):
        st, u = S // 4, S % 4
        slot = st % 4
        buf = V_FR + 12 * (S % 2)
        if idx == 0:
            e.lds(f"ds_read_b128 {v(V_X + 4 * S, 4)}, {v(V_XA + u)} offset:{slot * 4096}")
        k, m = tilesA[idx]
        d = buf + 4 * idx
        if k == 'S':
            rel = 0 if typ == 'X' else (m - stiles[0]) * REG
            lt = e.lds(f"ds_read_b128 {v(d, 4)}, {v(V_SA + u)} offset:{rel + slot * 4096}")
        else:
            fi = ft.index(m)
            for rd in range(2):
                off = (u >> 1) * REG + slot * 4096 + (16 * (u & 1) + 4 * rd) * 128
                lt = e.lds(f"ds_read_b64_tr_b16 {v(d + 2 * rd, 2)}, {v(V_TA + fi)} offset:{off}")
        ftok[('A', S, idx)] = lt

    def readB(S, idx):
        c, u = S // 8, S % 8
        buf = V_FR + 8 * (S % 2)
        for rd in range(2):
            off = (u >> 1) * REG + c * 4096 + (16 * (u & 1) + 4 * rd) * 128
            lt = e.lds(f"ds_read_b64_tr_b16 {v(buf + 4 * idx + 2 * rd, 2)}, {v(V_TB + idx)} offset:{off}")
        ftok[('B', S, idx)] = lt

    def btouch(TB_):
        if half == 0:
            srd(e, SRD_B, P_CRE, 512 * 1024)
            srd(e, SRD_S, P_CIM, 512 * 1024)
        e(f"s_and_b32 {s(S_T3)}, {s(S_MT)}, 7")
        e(f"s_lshl_b32 {s(S_T3)}, {s(S_T3)}, 10")
        e(f"s_add_u32 {s(S_T3)}, {s(S_T3)}, {s(S_B0)}")
        if half == 1:
            e(f"v_min_u32 {v(TB_)}, 55, v0")
            e(f"v_lshlrev_b32 {v(TB_)}, 13, {v(TB_)}")
            tok['bt'] = e.vm(f"buffer_load_dword {v(TB_ + 1)}, {v(TB_)}, {s(SRD_B, 4)}, {s(S_T3)} offen")
        else:
            e(f"v_and_b32 {v(TB_)}, 7, v0")
            e(f"v_lshlrev_b32 {v(TB_)}, 13, {v(TB_)}")
            e(f"v_bfe_u32 {v(TB_ + 1)}, v0, 3, 1")
            e(f"v_lshl_add_u32 {v(TB_)}, {v(TB_ + 1)}, 7, {v(TB_)}")
            e.vm(f"buffer_load_dword {v(TB_ + 1)}, {v(TB_)}, {s(SRD_B, 4)}, {s(S_T3)} offen")
            tok['bt'] = e.vm(f"buffer_load_dword {v(TB_ + 2)}, {v(TB_)}, {s(SRD_S, 4)}, {s(S_T3)} offen")

    for idx in range(len(tilesA)):
        readA(0, idx)
    for S in range(32):
        st, u = S // 4, S % 4
        if S == S_JOBS:
            need_unit('small')
            if half == 0:
                side.add(job_params())
            side.add(job_gate())
        if u == 3:
            need_unit(st + 1)
            if st == 5:
                while 'xfree1' not in tok:
                    side.pump(1)
            if st == 7:
                side.drain()
            e.wait(vm=utok[st + 1], lg=e.lg_seq - 1)
            if not FINE:
                stamp(e, SV, 6 + 2 * st)
            e("s_barrier")
            if not FINE or st == 7:
                stamp(e, SV, 7 + 2 * st if not FINE else 5)
            dadd(unit_gen(e, typ, half, st + 4, utok), st + 4)
            if st == 0:
                dadd(small_gen(), 'small')
        buf = V_FR + 12 * (S % 2)
        for idx, (k, m) in enumerate(tilesA):
            e.wait(lg=ftok[('A', S, idx)])
            if k == 'S':
                mfma(e, ACC[idx], V_X + 4 * S, buf + 4 * idx, S == 0)
            else:
                mfma(e, ACC[idx], buf + 4 * idx, V_X + 4 * S, S == 0)
            if S < 31:
                readA(S + 1, idx)
            elif idx < 2:
                readB(0, idx)
            if idx == 0 or len(dq.q) > 1 or (half == 0 and u == 3):
                dpump()
            if half == 0 and len(dq.q) > 1:
                dpump()
            side.pump(JR0 if half == 0 else JR1)
        if S == S_BTA:
            need_unit(7)
            btouch(1)
        if S == 8 and half == 0:
            lab = e.newlabel("epl_skip")
            e(f"s_cmp_lg_u32 {s(S_W)}, 0")
            e(f"s_cbranch_scc1 {lab}")
            e(f"global_load_dword {v(PP + 2)}, {v(PP + 1)}, {s(P_DBG, 2)} sc1")
            e.label(lab)
            tok['ep_seq'] = e.vm_seq
        if S == 18 and half == 0:
            lab = e.newlabel("ep_skip")
            lp = e.newlabel("ep_poll")
            lo = e.newlabel("ep_ok")
            e(f"s_cmp_lg_u32 {s(S_W)}, 0")
            e(f"s_cbranch_scc1 {lab}")
            e(f"s_mov_b32 {s(S_SPIN)}, 0")
            e(f"s_waitcnt vmcnt({min(63, e.vm_seq - tok['ep_seq'])})")
            e.label(lp)
            e(f"v_cmp_ne_u32 vcc, 0, {v(PP + 2)}")
            e(f"s_cbranch_vccnz {lo}")
            e("s_sleep 2")
            e(f"global_load_dword {v(PP + 2)}, {v(PP + 1)}, {s(P_DBG, 2)} sc1")
            e("s_waitcnt vmcnt(0)")
            spin_tail(e, lp)
            e.label(lo)
            e(f"v_mov_b32 {v(PP)}, {L_MISC}")
            e(f"ds_write_b32 {v(PP)}, {v(PP + 2)}")
            e("s_waitcnt lgkmcnt(0)")
            e.label(lab)
        if S == 20:
            e(f"v_mov_b32 {v(PP + 4)}, {L_MISC}")
            tok['epl'] = e.lds(f"ds_read_b32 {v(PP + 4)}, {v(PP + 4)}")
        if S == 21:
            e.wait(lg=tok['epl'])
            e(f"v_readfirstlane_b32 {s(S_EPOCH)}, {v(PP + 4)}")

    TMP = 40
    TS = 1
    SC = 10
    pa = 20
    ns = len(stiles)
    if half == 0:
        GR = ACC[2] if not STAMPS else V_X + 64
        GC = TMP
        FT = V_X + 64
        resv = set(range(16, 24))
    else:
        GR = V_X + 48
        GC = V_X + 64
        FT = V_X + 48
        resv = set(range(12, 24))
    if not stiles:
        resv = set()

    def job_pass1():
        e(f"v_and_b32 {v(pa)}, 31, v0"); yield
        e(f"v_mul_u32_u24 {v(pa)}, 48, {v(pa)}"); yield
        e(f"v_add_u32 {v(pa)}, {L_PAR}, {v(pa)}"); yield
        for j, m in enumerate(stiles):
            lt = e.lds(f"ds_read_b64 {v(TMP + 2 * j, 2)}, {v(pa)} offset:{m * PARS}"); yield
        e(f"v_lshlrev_b32 {v(TS)}, 2, v0"); yield
        e(f"s_lshl_b32 {s(S_T0)}, {s(S_W)}, 8")
        e(f"s_add_u32 {s(S_T0)}, {s(S_T0)}, {L_SEX}")
        e(f"v_add_u32 {v(TS)}, {s(S_T0)}, {v(TS)}"); yield
        e(f"v_mov_b32 {v(TS + 1)}, 0"); yield
        for j, m in enumerate(stiles):
            e.lds(f"ds_write_b32 {v(TS)}, {v(TS + 1)} offset:{m * 2048}"); yield
        e.nop(4)
        e.wait(lg=lt)
        for u in range(1, 16):
            dst = u % 2
            for j in range(ns):
                src_ = ACC[j] if u == 1 else SC + 2 * j + (u + 1) % 2
                e(f"v_fma_f32 {v(SC + 2 * j + dst)}, {v(TMP + 2 * j)}, {v(src_)}, {v(ACC[j] + u)}"); yield
            if ns == 1:
                e.nop(1)
            for j in range(ns):
                src_ = ACC[j] if u == 1 else SC + 2 * j + (u + 1) % 2
                e(f"v_fmac_f32_dpp {v(SC + 2 * j + dst)}, {v(src_)}, {v(TMP + 2 * j + 1)} {DPP_X1}"); yield
        for j, m in enumerate(stiles):
            e.lds(f"ds_write_b32 {v(TS)}, {v(SC + 2 * j + 1)} offset:{m * 2048 + 1024}"); yield
        e(f"s_add_u32 {s(S_T0)}, {s(S_W)}, {stiles[0]}")
        e(f"s_mul_i32 {s(S_T1)}, {s(S_T0)}, {PARS}")
        e(f"v_add_u32 {v(TS + 2)}, {s(S_T1)}, {v(pa)}")
        e(f"s_lshl_b32 {s(S_T1)}, {s(S_T0)}, 11")
        e(f"s_add_u32 {s(S_T1)}, {s(S_T1)}, {L_SEX}")
        e(f"v_and_b32 {v(TS + 1)}, 31, v0")
        e(f"v_lshlrev_b32 {v(TS + 3)}, 3, {v(TS + 1)}")
        e(f"v_lshl_add_u32 {v(TS + 1)}, {v(TS + 1)}, 2, {s(S_T1)}"); yield

    def blk_publish():
        lab = e.newlabel("pub_skip")
        e(f"s_cmp_ge_u32 {s(S_W)}, {ns}")
        e(f"s_cbranch_scc1 {lab}")
        e(f"ds_read_b64 {v(SC, 2)}, {v(TS + 2)} offset:8")
        for q in range(8):
            e(f"ds_read_b32 {v(SC + 2 + q)}, {v(TS + 1)} offset:{1024 + q * 128}")
        e(f"s_add_u32 {s(S_T0)}, {s(S_PUB)}, 4096")
        e("s_waitcnt lgkmcnt(0)")
        for q in range(1, 8):
            e(f"v_fmac_f32 {v(SC + 2 + q)}, {v(SC)}, {v(SC + 1 + q)}")
            e.nop(1)
            e(f"v_fmac_f32_dpp {v(SC + 2 + q)}, {v(SC + 1 + q)}, {v(SC + 1)} {DPP_X1}")
        e(f"v_mov_b32 {v(SC + 1)}, {s(S_EPOCH)}")
        e(f"v_mov_b32 {v(SC)}, {v(SC + 9)}")
        e("s_mov_b32 exec_hi, 0")
        e(f"buffer_store_dwordx2 {v(SC, 2)}, {v(TS + 3)}, {s(SRD_WS, 4)}, {s(S_T0)} offen sc1")
        e("s_mov_b64 exec, -1")
        e.label(lab)
        e(f"v_lshrrev_b32 {v(SC + 2)}, 5, v0")
        e(f"v_sub_u32 {v(SC + 2)}, 1, {v(SC + 2)}")
        e(f"v_lshl_add_u32 {v(TS + 3)}, {v(SC + 2)}, 8, {v(TS + 3)}")

    def gr_issue(lend):
        for t in range(8):
            e(f"buffer_load_dwordx2 {v(GR + 2 * t, 2)}, {v(TS + 3)}, {s(SRD_WS, 4)}, {s(S_PUB)} offen offset:{3584 - 512 * t} sc1")
            if t < 7:
                e(f"s_cmp_eq_u32 {s(S_T1)}, {t + 1}")
                e(f"s_cbranch_scc1 {lend}")

    def blk_grload():
        lab = e.newlabel("grl_skip")
        e(f"s_cmp_ge_u32 {s(S_W)}, {ns}")
        e(f"s_cbranch_scc1 {lab}")
        e(f"s_cmp_eq_u32 {s(S_I)}, 0")
        e(f"s_cbranch_scc1 {lab}")
        e(f"s_add_u32 {s(S_T1)}, {s(S_I)}, 1")
        e(f"s_lshr_b32 {s(S_T1)}, {s(S_T1)}, 1")
        gr_issue(lab)
        e.label(lab)
        tok['gr_seq'] = e.vm_seq

    def blk_carry():
        lab = e.newlabel("car_skip")
        e(f"s_cmp_ge_u32 {s(S_W)}, {ns}")
        e(f"s_cbranch_scc1 {lab}")
        e(f"s_cmp_eq_u32 {s(S_I)}, 0")
        e(f"s_cbranch_scc1 {lab}")
        e(f"ds_read_b128 {v(GC, 4)}, {v(TS + 2)} offset:16")
        e(f"s_add_u32 {s(S_T1)}, {s(S_I)}, 1")
        e(f"s_lshr_b32 {s(S_T1)}, {s(S_T1)}, 1")
        e(f"s_bitcmp1_b32 {s(S_I)}, 0")
        e(f"s_cselect_b32 {s(S_M0 + 1)}, 0, -1")
        e(f"s_mov_b32 {s(S_M0)}, -1")
        e(f"s_mov_b32 {s(S_SPIN)}, 0")
        e(f"s_waitcnt vmcnt({min(63, e.vm_seq - tok['gr_seq'])})")
        lp, lchk, lok, lre = (e.newlabel(x) for x in ("car_poll", "car_chk", "car_ok", "car_re"))
        e.label(lp)
        e(f"s_mov_b64 {s(S_M1, 2)}, 0")
        for t in range(8):
            e(f"v_cmp_ne_u32 vcc, {s(S_EPOCH)}, {v(GR + 2 * t + 1)}")
            if t < 7:
                e(f"s_cmp_eq_u32 {s(S_T1)}, {t + 1}")
                e(f"s_cbranch_scc1 {lchk}")
                e(f"s_or_b64 {s(S_M1, 2)}, {s(S_M1, 2)}, vcc")
        e.label(lchk)
        e(f"s_and_b64 vcc, vcc, {s(S_M0, 2)}")
        e(f"s_or_b64 {s(S_M1, 2)}, {s(S_M1, 2)}, vcc")
        e(f"s_cbranch_scc0 {lok}")
        e(f"s_add_u32 {s(S_SPIN)}, {s(S_SPIN)}, 1")
        e(f"s_cmp_ge_u32 {s(S_SPIN)}, 0x4000")
        e(f"s_cbranch_scc1 {lok}")
        e("s_sleep 1")
        gr_issue(lre)
        e.label(lre)
        e("s_waitcnt vmcnt(0)")
        e(f"s_branch {lp}")
        e.label(lok)
        e("s_waitcnt lgkmcnt(0)")
        ACCU = GC + 4
        e(f"v_mov_b32 {v(ACCU)}, 0")
        for t in range(7, -1, -1):
            ls = e.newlabel("hs")
            e(f"s_cmp_le_u32 {s(S_T1)}, {t}")
            e(f"s_cbranch_scc1 {ls}")
            e(f"s_cmp_eq_u32 {s(S_T1)}, {t + 1}")
            e(f"s_cselect_b64 vcc, {s(S_M0, 2)}, -1")
            e(f"v_cndmask_b32 {v(GR + 2 * t)}, 0, {v(GR + 2 * t)}, vcc")
            e(f"v_fmac_f32 {v(GR + 2 * t)}, {v(GC + 2)}, {v(ACCU)}")
            e(f"v_fmac_f32_dpp {v(GR + 2 * t)}, {v(ACCU)}, {v(GC + 3)} {DPP_X1}")
            e(f"v_mov_b32 {v(ACCU)}, {v(GR + 2 * t)}")
            e.label(ls)
        e.nop(1)
        e(f"v_mul_f32 {v(ACCU + 1)}, {v(GC)}, {v(ACCU)}")
        e(f"v_fmac_f32_dpp {v(ACCU + 1)}, {v(ACCU)}, {v(GC + 1)} {DPP_X1}")
        e(f"v_mov_b32 {v(ACCU + 2)}, 0")
        e.nop(1)
        e(f"v_permlane32_swap_b32 {v(ACCU + 1)}, {v(ACCU + 2)}")
        e.nop(1)
        e(f"v_add_f32 {v(ACCU)}, {v(ACCU)}, {v(ACCU + 2)}")
        e("s_mov_b32 exec_hi, 0")
        e(f"ds_write_b32 {v(TS + 1)}, {v(ACCU)} offset:{7 * 128}")
        e("s_mov_b64 exec, -1")
        e("s_waitcnt lgkmcnt(0)")
        e.label(lab)

    def job_final():
        PR = FT
        EV = FT + 4 * ns
        CC = SC + 2
        OT = FT + 12 * ns
        for j, m in enumerate(stiles):
            e.lds(f"ds_read_b128 {v(PR + 4 * j, 4)}, {v(pa)} offset:{m * PARS}"); yield
            for q in range(8):
                lt = e.lds(f"ds_read_b32 {v(EV + 8 * j + q)}, {v(TS)} offset:{m * 2048 + q * 128}")
                if q % 2:
                    yield
        e(f"s_mul_i32 {s(S_LB0)}, {s(S_W)}, 1280")
        e(f"s_add_u32 {s(S_LB0)}, {s(S_LB0)}, {141312 if half == 0 else 155136}")
        e(f"v_and_b32 {v(SC)}, 15, v0"); yield
        e(f"v_mul_u32_u24 {v(SC)}, 80, {v(SC)}"); yield
        e(f"v_lshrrev_b32 {v(SC + 1)}, 5, v0"); yield
        e(f"v_lshl_add_u32 {v(SC)}, {v(SC + 1)}, 5, {v(SC)}"); yield
        e(f"v_add_u32 {v(SC)}, {s(S_LB0)}, {v(SC)}"); yield
        e(f"v_bfe_u32 {v(SC + 2)}, v0, 2, 2"); yield
        e(f"v_lshl_add_u32 {v(SC + 1)}, {v(SC + 2)}, 1, {v(SC + 1)}"); yield
        e(f"v_mul_u32_u24 {v(SC + 1)}, 80, {v(SC + 1)}"); yield
        e(f"v_and_b32 {v(SC + 2)}, 1, v0"); yield
        e(f"v_lshl_add_u32 {v(SC + 1)}, {v(SC + 2)}, 5, {v(SC + 1)}"); yield
        e(f"v_bfe_u32 {v(SC + 2)}, v0, 4, 1"); yield
        e(f"v_lshl_add_u32 {v(SC + 1)}, {v(SC + 2)}, 4, {v(SC + 1)}"); yield
        e(f"v_bfe_u32 {v(SC + 2)}, v0, 1, 1"); yield
        e(f"v_lshl_add_u32 {v(SC + 1)}, {v(SC + 2)}, 3, {v(SC + 1)}"); yield
        e(f"v_add_u32 {v(SC + 1)}, {s(S_LB0)}, {v(SC + 1)}"); yield
        for j, m in enumerate(stiles):
            lc = e.lds(f"ds_read_b64 {v(CC + 2 * j, 2)}, {v(pa)} offset:{m * PARS + 32}"); yield
        e.wait(lg=lt)
        for q in range(1, 8):
            for j in range(ns):
                e(f"v_fmac_f32 {v(EV + 8 * j + q)}, {v(PR + 4 * j + 2)}, {v(EV + 8 * j + q - 1)}"); yield
            if ns == 1:
                e.nop(1)
            for j in range(ns):
                e(f"v_fmac_f32_dpp {v(EV + 8 * j + q)}, {v(EV + 8 * j + q - 1)}, {v(PR + 4 * j + 3)} {DPP_X1}"); yield
        e.wait(lg=lc)
        O = EV

        def post(j, u):
            t_ = OT + 2 * j + (u & 1)
            e(f"v_mul_f32 {v(t_)}, {v(CC + 2 * j)}, {v(ACC[j] + u)}")
            e(f"v_fmac_f32_dpp {v(t_)}, {v(ACC[j] + u)}, {v(CC + 2 * j + 1)} {DPP_X1}")
            if u & 1:
                e(f"v_cvt_pk_bf16_f32 {v(O + 8 * j + u // 2)}, {v(OT + 2 * j)}, {v(OT + 2 * j + 1)}")
        for u in range(16):
            for j in range(ns):
                prev = EV + 8 * j + 7 if u == 0 else ACC[j] + u - 1
                e(f"v_fmac_f32 {v(ACC[j] + u)}, {v(PR + 4 * j)}, {v(prev)}"); yield
            if u >= 2:
                for j in range(ns):
                    post(j, u - 2); yield
            elif ns == 1:
                e.nop(1)
            for j in range(ns):
                prev = EV + 8 * j + 7 if u == 0 else ACC[j] + u - 1
                e(f"v_fmac_f32_dpp {v(ACC[j] + u)}, {v(prev)}, {v(PR + 4 * j + 1)} {DPP_X1}"); yield
        for u in (14, 15):
            for j in range(ns):
                post(j, u); yield
        for j, m in enumerate(stiles):
            R = ACC[j]
            for kap in range(2):
                msk = "0x0000ffff" if kap == 0 else "0xffff0000"
                e(f"s_mov_b32 exec_lo, {msk}")
                e(f"s_mov_b32 exec_hi, {msk}")
                e.lds(f"ds_write_b128 {v(SC)}, {v(O + 8 * j, 4)}")
                e.lds(f"ds_write_b128 {v(SC)}, {v(O + 8 * j + 4, 4)} offset:16")
                e("s_mov_b64 exec, -1"); yield
                for rd in range(2):
                    lt = e.lds(f"ds_read_b64_tr_b16 {v(R + 4 * kap + 2 * rd, 2)}, {v(SC + 1)} offset:{8 * rd * 80}"); yield
            tok[('tr', j)] = lt
            if j > 0:
                yield from tr_store(j - 1)
        yield from tr_store(ns - 1)
        tok['final_done'] = True

    def tr_store(j):
        m = stiles[j]
        R = ACC[j]
        e.wait(lg=tok[('tr', j)])
        e(f"s_add_u32 {s(S_T0)}, {s(S_A2S)}, {m * 2048}")
        e.vm(f"buffer_store_dwordx4 {v(R, 4)}, {v(V_ST)}, {s(SRD_WS, 4)}, {s(S_T0)} offen sc1")
        e.last_store = e.vm(f"buffer_store_dwordx4 {v(R + 4, 4)}, {v(V_ST)}, {s(SRD_WS, 4)}, {s(S_T0)} offen offset:1024 sc1"); yield

    VD0, VD1, VR0, VR1 = 6, 7, 8, 9
    st_ = dict(cp=0, S=-1, avail=set(), next=0, inflight=[], freed={}, setup=False, lim=24)
    if half == 1:
        ntask = 28
        slot_tag = {0: 'p0', 1: 'p0', 2: 'p1', 3: 'p1', 4: 'p2', 5: 'p2', 6: 'done', 7: 'done',
                    8: 'done', 9: 'done', 10: 'done', 11: 'done'}
    else:
        ntask = 4
        slot_tag = {1: 'p1', 2: 'done'}
    slot_busy = {}

    def stage_setup():
        st_['setup'] = True
        e(f"v_lshrrev_b32 {v(VD0)}, 3, v0")
        if half == 1:
            e(f"v_bfe_u32 {v(VD1)}, v0, 4, 1")
            e(f"v_lshlrev_b32 {v(VD1)}, 2, {v(VD1)}")
            e(f"v_and_b32 {v(VR0)}, 7, v0")
            e(f"v_xor_b32 {v(VD1)}, {v(VD1)}, {v(VR0)}")
            e(f"v_lshlrev_b32 {v(VD1)}, 4, {v(VD1)}")
            e(f"v_lshl_add_u32 {v(VD0)}, {v(VD0)}, 10, {v(VD1)}")
            e(f"v_add_u32 {v(VD1)}, {8192 - 1024}, {v(VD0)}")
            e(f"v_bfe_u32 {v(VR1)}, v0, 2, 2")
            e(f"v_lshrrev_b32 {v(VR0)}, 5, v0")
            e(f"v_lshl_add_u32 {v(VR0)}, {v(VR0)}, 2, {v(VR1)}")
            e(f"v_lshlrev_b32 {v(VR0)}, 7, {v(VR0)}")
            e(f"v_lshrrev_b32 {v(VR1)}, 1, {v(VR1)}")
            e(f"v_lshl_add_u32 {v(VR0)}, {v(VR1)}, 6, {v(VR0)}")
            e(f"v_bfe_u32 {v(VR1)}, v0, 4, 1")
            e(f"v_lshl_add_u32 {v(VR0)}, {v(VR1)}, 5, {v(VR0)}")
            e(f"v_and_b32 {v(VR1)}, 3, v0")
            e(f"v_lshl_add_u32 {v(VR0)}, {v(VR1)}, 3, {v(VR0)}")
            e(f"v_add_u32 {v(VR0)}, {s(S_LBS)}, {v(VR0)}")
            e(f"v_xor_b32 {v(VR1)}, 64, {v(VR0)}")
        else:
            e(f"v_lshrrev_b32 {v(VD1)}, 4, v0")
            e(f"v_and_b32 {v(VR0)}, 7, v0")
            e(f"v_xor_b32 {v(VD1)}, {v(VD1)}, {v(VR0)}")
            e(f"v_lshlrev_b32 {v(VD1)}, 4, {v(VD1)}")
            e(f"v_lshl_add_u32 {v(VD0)}, {v(VD0)}, 10, {v(VD1)}")
            e(f"v_xor_b32 {v(VD1)}, 64, {v(VD0)}")
            e(f"v_add_u32 {v(VD1)}, {8192 - 1024}, {v(VD1)}")
            e(f"v_and_b32 {v(VR0)}, 31, v0")
            e(f"v_lshlrev_b32 {v(VR0)}, 7, {v(VR0)}")
            e(f"v_bfe_u32 {v(VR1)}, v0, 1, 3")
            e(f"v_lshl_add_u32 {v(VR0)}, {v(VR1)}, 4, {v(VR0)}")
            e(f"v_lshrrev_b32 {v(VR1)}, 5, v0")
            e(f"v_lshl_add_u32 {v(VR0)}, {v(VR1)}, 12, {v(VR0)}")
            e(f"v_add_u32 {v(VR0)}, {s(S_LBS)}, {v(VR0)}")

    def slot_off(sl):
        if half == 1:
            return sl * 2048
        return {0: 4096, 1: 0, 2: 8192}[sl]

    def stage_dma(task, sl):
        if sl in st_['freed']:
            e.wait(lg=st_['freed'].pop(sl))
        if half == 1:
            if sl < 8:
                e(f"s_add_u32 m0, {s(S_LBS)}, {sl * 2048}")
            else:
                e(f"s_lshl_b32 {s(S_T3)}, {s(S_W)}, 13")
                e(f"s_add_u32 m0, {s(S_T3)}, {L_TOP + (sl - 8) * 2048}")
            e(f"s_add_u32 {s(S_T3)}, {s(S_B0)}, {task * 16384}")
            dma(e, VD0, SRD_B, S_T3)
            t = dma(e, VD1, SRD_B, S_T3, 1024)
        else:
            u_, nu = task // 2, task % 2
            for mat, sr in ((0, SRD_B), (1, SRD_S)):
                e(f"s_add_u32 m0, {s(S_LBS)}, {slot_off(sl) + mat * 4096}")
                e(f"s_add_u32 {s(S_T3)}, {s(S_B0)}, {nu * 32768 + u_ * 128}")
                dma(e, VD0, sr, S_T3)
                dma(e, VD1, sr, S_T3, 1024)
                e(f"s_add_u32 {s(S_T3)}, {s(S_T3)}, {16384 - 2048}")
                dma(e, VD0, sr, S_T3, 2048)
                t = dma(e, VD1, sr, S_T3, 3072)
        slot_busy[sl] = task
        st_['inflight'].append((task, sl, t, st_['cp']))

    def task_regs(task):
        if half == 1:
            return [2 * task, 2 * task + 1]
        u_, nu = task // 2, task % 2
        return [2 * (8 * u_ + k) + nu for k in range(8)]

    def regs_free(task):
        for x in task_regs(task):
            if x > st_['S'] or (x in resv and 'final_done' not in tok):
                return False
        return True

    def stage_xfer(task, sl, t):
        e.wait(vm=t)
        if half == 1:
            for h2 in range(2):
                for rd in range(2):
                    lt = e.lds(f"ds_read_b64_tr_b16 {v(V_X + 8 * task + 4 * h2 + 2 * rd, 2)}, {v(VR0 + h2)} offset:{sl * 2048 + rd * 1024}")
        else:
            u_, nu = task // 2, task % 2
            for k in range(8):
                if k:
                    e(f"v_xor_b32 {v(VR1)}, {16 * k}, {v(VR0)}")
                lt = e.lds(f"ds_read_b128 {v(V_X + 8 * (8 * u_ + k) + 4 * nu, 4)}, {v(VR1 if k else VR0)} offset:{slot_off(sl)}")
        st_['freed'][sl] = lt
        del slot_busy[sl]

    def checkpoint(force=False, maxdma=1):
        st_['cp'] += 1
        if not st_['setup']:
            return
        for it in list(st_['inflight']):
            task, sl, t, cp = it
            resident = half == 1 and task >= 16
            if resident:
                st_['inflight'].remove(it)
                continue
            if (force or st_['cp'] - cp >= BLAT) and regs_free(task):
                stage_xfer(task, sl, t)
                st_['inflight'].remove(it)
                if not force:
                    break
        n = 0
        while st_['next'] < min(ntask, st_.get('lim', 99)) and n < maxdma:
            task = st_['next']
            if half == 1 and task >= 16:
                cand = [task - 16]
            elif half == 1:
                cand = list(range(8))
            else:
                cand = list(slot_tag.keys())
            cand = [c_ for c_ in cand if c_ not in slot_busy and slot_tag[c_] in st_['avail']]
            if not cand:
                break
            stage_dma(task, cand[0])
            st_['next'] += 1
            n += 1

    fidx = [(idx, m) for idx, (k, m) in enumerate(tilesA) if k == 'F']
    deferred = []
    if typ == 'X':
        e(f"s_setprio {1 - half}")
    for S in range(32):
        c, u = S // 8, S % 8
        if S == 1 and stiles:
            if S_BTA >= 0:
                e.wait(vm=tok['bt'])
            side.add(job_pass1())
        if S == 2 and not stiles:
            for idx, m in fidx:
                side.add(ffn_epilogue(e, ACC[idx], TMP, S_A2A, m, deferred))
        if S == 5:
            if stiles:
                side.drain()
            e.wait(lg=e.lg_seq - 1)
            e("s_barrier")
            if stiles:
                blk_publish()
                for idx, m in fidx:
                    side.add(ffn_epilogue(e, ACC[idx], TMP, S_A2A, m, deferred))
        if u == 7 and c < 3:
            need_unit(11 if c == 0 else 9 + c)
            if c == 2 and stiles:
                side.drain()
                stamp(e, SV, 40)
                blk_carry()
                stamp(e, SV, 41)
            e.wait(vm=utok[9 + c], lg=e.lg_seq - 1)
            stamp(e, SV, 30 + 2 * c)
            e("s_barrier")
            stamp(e, SV, 31 + 2 * c)
            if EARLYB:
                st_['avail'].add(f"p{c}")
        if S == 24 and stiles:
            side.add(job_final())
        buf = V_FR + 8 * (S % 2)
        for idx in range(2):
            e.wait(lg=ftok[('B', S, idx)])
            mfma(e, ACC[3 + idx], buf + 4 * idx, V_X + 4 * S, S == 0)
            if S < 31:
                readB(S + 1, idx)
            if idx == 0:
                dpump()
            side.pump(4 if S < 24 else 6)
        st_['S'] = S
        if S == S_BT:
            need_unit(11)
            stage_setup()
            if S_BTA < 0:
                btouch(V_X)
        if S >= S_QUIET and deferred:
            e.vm(deferred.pop(0))
        if S >= S_BS:
            checkpoint()
        if S == max(9, S_QUIET) and half == 0:
            lab = e.newlabel("g_skip")
            e(f"v_lshlrev_b32 {v(SC + 6)}, 2, v0")
            e(f"v_add_u32 {v(SC + 7)}, {L_MISC + 64}, {v(SC + 6)}")
            e(f"s_cmp_lg_u32 {s(S_W)}, 0")
            e(f"s_cbranch_scc1 {lab}")
            e("s_mov_b64 exec, 0xff")
            e(f"ds_read_b32 {v(SC + 7)}, {v(SC + 7)}")
            e("s_waitcnt lgkmcnt(0)")
            e(f"buffer_store_dword {v(SC + 7)}, {v(SC + 6)}, {s(SRD_WS, 4)}, {s(S_GOFF)} offen sc1")
            e("s_mov_b64 exec, -1")
            e.label(lab)
        if S == S_GR and stiles:
            blk_grload()
        if FINE and S % 2 == 1:
            stamp(e, SV, 6 + S // 2)

    stamp(e, SV, 36)
    e.nop(8)
    if not stiles:
        side.drain()
    while deferred:
        e.vm(deferred.pop(0))
    ep = Sched()
    ep.add(ffn_epilogue(e, ACC[3], TMP, S_A2B, 2 * half))
    ep.add(ffn_epilogue(e, ACC[4], TMP, S_A2B, 2 * half + 1))
    side.pump(4)
    e.nop(4)
    cnt = 0
    while not (side.empty() and ep.empty()):
        side.pump(1)
        ep.pump(1)
        cnt += 1
        if cnt % TAILCP == 0 and not ep.empty():
            checkpoint()
    stamp(e, SV, 42)
    e.wait(vm=e.vm_seq - 1, lg=e.lg_seq - 1)
    stamp(e, SV, 43)
    e("s_setprio 0")
    e("s_barrier")
    if half == 0:
        lab = e.newlabel("done_skip")
        e(f"v_mov_b32 v1, {s(S_EPOCH)}")
        e("v_mov_b32 v2, 0")
        e(f"s_cmp_lg_u32 {s(S_W)}, 0")
        e(f"s_cbranch_scc1 {lab}")
        e(f"s_lshl_b32 {s(S_T0)}, {s(S_I)}, 11")
        e(f"s_lshl_b32 {s(S_T1)}, {s(S_COL)}, 7")
        e(f"s_add_u32 {s(S_T0)}, {s(S_T0)}, {s(S_T1)}")
        e(f"s_add_u32 {s(S_T0)}, {s(S_T0)}, {WS_DONE}")
        e("s_mov_b64 exec, 1")
        e(f"buffer_store_dword v1, v2, {s(SRD_WS, 4)}, {s(S_T0)} offen sc1")
        e("s_mov_b64 exec, -1")
        e.label(lab)
    else:
        e.nop(12)
    st_['avail'] |= {'p0', 'p1', 'p2', 'done'}
    if half == 1:
        checkpoint(force=False, maxdma=12)
        for task in range(24, 28):
            stage_dma(task, task - 16)
        ntask = 24
        st_['lim'] = 24
    guard = 0
    while st_['next'] < ntask or st_['inflight']:
        checkpoint(force=False, maxdma=12)
        if st_['inflight']:
            task, sl, t, cp = st_['inflight'][0]
            if not (half == 1 and task >= 16):
                stage_xfer(task, sl, t)
            st_['inflight'].pop(0)
        guard += 1
        assert guard < 200
    stamp(e, SV, 44)
    if STAMPS:
        e(f"v_mov_b32 v15, {v(SV)}")
    e(f"s_branch L_P2_{half}")


def phase2(e, half):
    SV = 15
    e.label(f"L_P2_{half}")
    e.vm_done = e.vm_seq = 0
    e.lg_done = e.lg_seq = 0
    NS = 16 if half == 0 else 28
    YSTART = 6 if half == 0 else 24
    SO = SRD_U
    SRD2 = SRD_G
    srd(e, SO, P_OUT, 2048 * 2048)
    e(f"s_add_u32 {s(SRD2)}, {s(P_WS)}, {KS * 1024}")
    e(f"s_addc_u32 {s(SRD2 + 1)}, {s(P_WS + 1)}, 0")
    e(f"s_and_b32 {s(SRD2 + 1)}, {s(SRD2 + 1)}, 0xffff")
    e(f"s_mov_b32 {s(SRD2 + 2)}, {WS_END - KS * 1024}")
    e(f"s_mov_b32 {s(SRD2 + 3)}, 0x00020000")
    VL = 12
    e(f"v_mov_b32 {v(VL)}, {v(V_ST)}")
    e(f"s_lshr_b32 {s(S_K0)}, {s(S_MT)}, 1")
    e(f"s_lshl_b32 {s(S_K0)}, {s(S_K0)}, 11")
    e(f"s_add_u32 {s(S_K0)}, {s(S_K0)}, {WS_DONE}")
    e("v_and_b32 v1, 15, v0")
    e("v_lshlrev_b32 v1, 7, v1")
    if half == 1:
        e(f"s_lshl_b32 {s(S_T0)}, {s(S_W)}, 13")
        e(f"s_add_u32 {s(S_T0)}, {s(S_T0)}, {L_TOP}")
        e(f"s_sub_u32 {s(S_T0)}, {s(S_T0)}, {s(S_LBS)}")
        e(f"v_add_u32 v10, {s(S_T0)}, v8")
        e(f"v_add_u32 v11, {s(S_T0)}, v9")

    def poll(mask_expr_lo):
        lp, lo = e.newlabel("pd"), e.newlabel("pd_ok")
        e(f"s_mov_b32 {s(S_SPIN)}, 0")
        e.label(lp)
        e(f"buffer_load_dword v2, v1, {s(SRD_WS, 4)}, {s(S_K0)} offen sc1")
        e("s_waitcnt vmcnt(0)")
        e(f"v_cmp_ne_u32 vcc, {s(S_EPOCH)}, v2")
        e(f"s_and_b32 {s(S_T0)}, vcc_lo, {s(S_M0)}")
        e(f"s_cbranch_scc0 {lo}")
        e("s_sleep 1")
        spin_tail(e, lp)
        e.label(lo)
        e.vm_done = e.vm_seq
    e(f"s_lshl_b32 {s(S_T1)}, {s(S_W)}, 2")
    e(f"s_lshl_b32 {s(S_M0)}, 7, {s(S_T1)}")
    e("s_mov_b64 exec, 0xffff")
    poll(None)
    e("s_mov_b64 exec, -1")
    e("s_waitcnt lgkmcnt(0)")
    stamp(e, SV, 45)
    AC = 64
    free = [24 + 8 * k for k in range(5)]
    aslot, atok = {}, {}
    pending = list(range(NS))
    state = dict(y=False)

    def ld2(dst, j):
        hi, lo_ = (j // 4) * 4096, (j % 4) * 1024
        b = S_A0
        if hi:
            e(f"s_add_u32 {s(S_T0)}, {s(S_A0)}, {hi}")
            b = S_T0
        o = f" offset:{lo_}" if lo_ else ""
        e.vm(f"buffer_load_dwordx4 {v(dst, 4)}, {v(VL)}, {s(SRD_WS, 4)}, {s(b)} offen{o} sc1")
        return e.vm(f"buffer_load_dwordx4 {v(dst + 4, 4)}, {v(VL)}, {s(SRD2, 4)}, {s(b)} offen{o} sc1")

    def issue_next():
        while pending and free:
            j = pending[0]
            if j >= YSTART and not state['y']:
                return
            pending.pop(0)
            r = free.pop(0)
            aslot[j] = r
            atok[j] = ld2(r, j)

    def ycheck_issue():
        e("s_mov_b64 exec, 0xffff")
        state['ytok'] = e.vm(f"buffer_load_dword v2, v1, {s(SRD_WS, 4)}, {s(S_K0)} offen sc1")
        e("s_mov_b64 exec, -1")

    def ycheck():
        lp, lo = e.newlabel("py"), e.newlabel("py_ok")
        e.wait(vm=state['ytok'])
        e(f"s_mov_b32 {s(S_SPIN)}, 0")
        e("s_mov_b64 exec, 0xffff")
        e.label(lp)
        e(f"v_cmp_ne_u32 vcc, {s(S_EPOCH)}, v2")
        e(f"s_cbranch_vccz {lo}")
        e("s_sleep 1")
        e(f"buffer_load_dword v2, v1, {s(SRD_WS, 4)}, {s(S_K0)} offen sc1")
        e("s_waitcnt vmcnt(0)")
        spin_tail(e, lp)
        e.label(lo)
        e("s_mov_b64 exec, -1")
        state['y'] = True

    issue_next()
    e(f"s_lshl_b32 {s(S_T0)}, {s(S_W)}, 2")
    e(f"s_add_u32 {s(S_T0)}, {s(S_T0)}, {32 * half}")
    e("v_lshrrev_b32 v3, 4, v0")
    e(f"v_add_u32 v3, {s(S_T0)}, v3")
    e("v_and_b32 v4, 15, v0")
    e(f"s_lshl_b32 {s(S_T1)}, {s(S_NT)}, 6")
    e(f"v_lshl_add_u32 v4, v4, 2, {s(S_T1)}")
    e("v_lshlrev_b32 v4, 1, v4")
    e(f"s_lshl_b32 {s(S_T1)}, {s(S_MT)}, 6")
    e(f"v_add_u32 v5, {s(S_T1)}, v3")
    e("v_lshl_add_u32 v5, v5, 10, v4")
    e("v_lshlrev_b32 v3, 2, v3")
    e(f"s_lshl_b32 {s(S_GOFF)}, {s(S_MT)}, 8")
    e(f"s_add_u32 {s(S_GOFF)}, {s(S_GOFF)}, {WS_G}")
    YI = 2 if half == 0 else 12
    YC = 5 if half == 0 else 15
    btok = {}

    def bread(j):
        r = j - 16
        for h2 in range(2):
            for rd in range(2):
                areg = (8 + h2) if r < 8 else (10 + h2)
                off = (r % 8) * 2048 + rd * 1024
                btok[j] = e.lds(f"ds_read_b64_tr_b16 {v(bbuf[j] + 4 * h2 + 2 * rd, 2)}, {v(areg)} offset:{off}")
    bbuf = {}
    for j in range(NS):
        if j == YI:
            ycheck_issue()
        if j == YC:
            ycheck()
            issue_next()
        if j == NS - 4:
            e.vm(f"buffer_load_dword v13, v3, {s(SRD_WS, 4)}, {s(S_GOFF)} offen sc1")
            e.vm(f"buffer_load_dword v14, v3, {s(SRD_WS, 4)}, {s(S_GOFF)} offen offset:64 sc1")
            e.vm(f"global_load_dwordx2 v[6:7], v4, {s(P_DSK, 2)}")
            e.vm(f"buffer_load_dwordx2 v[16:17], v5, {s(SRD_X, 4)}, 0 offen")
            e(f"s_mov_b32 {s(S_T0)}, {16 * 1024}")
            e.vm(f"buffer_load_dwordx2 v[18:19], v5, {s(SRD_X, 4)}, {s(S_T0)} offen")
        if half == 1 and j + 1 >= 16 and j + 1 < NS:
            bbuf[j + 1] = V_X + 8 * ((j + 1) % 2)
            bread(j + 1)
        a = aslot[j]
        b = V_X + 8 * j if j < 16 else bbuf[j]
        e.wait(vm=atok[j] - 1, lg=btok.get(j))
        mfma(e, AC, b, a, j == 0)
        mfma(e, AC + 16, b + 4, a, j == 0)
        e.wait(vm=atok[j])
        mfma(e, AC + 32, b, a + 4, j == 0)
        mfma(e, AC + 48, b + 4, a + 4, j == 0)
        free.append(a)
        if 2 <= j < 16:
            free.append(b)
        issue_next()
    stamp(e, SV, 46)
    e("v_and_b32 v1, 31, v0")
    e("v_lshrrev_b32 v2, 5, v0")
    e("v_and_b32 v8, 7, v0")
    e("v_xor_b32 v2, v2, v8")
    e("v_lshlrev_b32 v2, 4, v2")
    e("v_lshl_add_u32 v1, v1, 8, v2")
    e(f"v_add_u32 v8, {s(S_LBS)}, v1")
    for a in range(1, 4):
        e(f"v_xor_b32 {v(8 + a)}, {32 * a}, v8")
    e.nop(4)
    for mi in range(2):
        for ni in range(2):
            A = AC + 32 * mi + 16 * ni
            for a in range(4):
                e.lds(f"ds_write_b128 {v(8 + a)}, {v(A + 4 * a, 4)} offset:{mi * 8192 + ni * 128}")
    e("v_lshrrev_b32 v1, 4, v0")
    e("v_and_b32 v2, 15, v0")
    e("v_xor_b32 v2, v2, v1")
    e("v_lshlrev_b32 v2, 4, v2")
    e("v_lshl_add_u32 v1, v1, 8, v2")
    e(f"s_lshl_b32 {s(S_T0)}, {s(S_WV)}, 11")
    e(f"v_add_u32 v1, {s(S_T0)}, v1")
    e("v_xor_b32 v2, 64, v1")
    e("v_add_u32 v2, 1024, v2")
    e(f"v_add_u32 v3, {4 * REG}, v1")
    e(f"v_add_u32 v4, {4 * REG}, v2")
    e("v_lshlrev_b32 v5, 1, v5")
    e("s_waitcnt vmcnt(0)")
    SK, DS, FS = 24, 32, 40
    for k in range(2):
        e(f"v_lshlrev_b32 {v(DS + 2 * k)}, 16, {v(6 + k)}")
        e(f"v_and_b32 {v(DS + 2 * k + 1)}, 0xffff0000, {v(6 + k)}")
    for p in range(2):
        for k in range(2):
            e(f"v_lshlrev_b32 {v(SK + 4 * p + 2 * k)}, 16, {v(16 + 2 * p + k)}")
            e(f"v_and_b32 {v(SK + 4 * p + 2 * k + 1)}, 0xffff0000, {v(16 + 2 * p + k)}")
        for k in range(4):
            e(f"v_mul_f32 {v(SK + 4 * p + k)}, {v(SK + 4 * p + k)}, {v(DS + k)}")
        for k in range(2):
            e(f"v_cvt_pk_bf16_f32 v36, {v(SK + 4 * p + 2 * k)}, {v(SK + 4 * p + 2 * k + 1)}")
            e(f"v_lshlrev_b32 {v(SK + 4 * p + 2 * k)}, 16, v36")
            e(f"v_and_b32 {v(SK + 4 * p + 2 * k + 1)}, 0xffff0000, v36")
        e(f"v_sub_f32 {v(20 + p)}, 1.0, {v(13 + p)}")
        e(f"v_cvt_pk_bf16_f32 {v(20 + p)}, {v(20 + p)}, {v(20 + p)}")
        e(f"v_lshlrev_b32 {v(20 + p)}, 16, {v(20 + p)}")
    e.wait_all_lg()
    stamp(e, SV, 47)
    e("s_barrier")
    stamp(e, SV, 48)
    toks = []
    for q in range(8):
        for p in range(2):
            ar = (1 + p) if q < 4 else (3 + p)
            toks.append(e.lds(f"ds_read_b128 {v(AC + 8 * q + 4 * p, 4)}, {v(ar)} offset:{(q % 4) * REG}"))
    for q in range(4):
        e.wait(lg=toks[2 * q + 1])
        for k in range(8):
            e(f"v_add_f32 {v(SK + k)}, {v(SK + k)}, {v(AC + 8 * q + k)}")
    for k in range(8):
        e(f"v_mul_f32 {v(SK + k)}, {v(13 + k // 4)}, {v(SK + k)}")
    e.wait(lg=toks[11])
    for k in range(8):
        e(f"v_add_f32 {v(FS + k)}, {v(AC + 32 + k)}, {v(AC + 40 + k)}")
    e.wait(lg=toks[15])
    for k in range(8):
        e(f"v_add_f32 {v(AC + 48 + k)}, {v(AC + 48 + k)}, {v(AC + 56 + k)}")
    for k in range(8):
        e(f"v_add_f32 {v(FS + k)}, {v(FS + k)}, {v(AC + 48 + k)}")
    for k in range(8):
        e(f"v_fmac_f32 {v(SK + k)}, {v(20 + k // 4)}, {v(FS + k)}")
    e.vm(f"buffer_store_dwordx4 {v(SK, 4)}, v5, {s(SO, 4)}, 0 offen{OUTP}")
    e(f"s_mov_b32 {s(S_T0)}, {16 * 2048}")
    e.vm(f"buffer_store_dwordx4 {v(SK + 4, 4)}, v5, {s(SO, 4)}, {s(S_T0)} offen{OUTP}")
    if STAMPS:
        stamp(e, SV, 49)
        e("s_waitcnt vmcnt(0)")
        stamp(e, SV, 50)
        stamp(e, SV, 61, True)
        e("s_lshl_b32 s96, s2, 3")
        e(f"s_add_u32 s96, s96, {s(S_WV)}")
        e("s_lshl_b32 s96, s96, 8")
        e(f"s_add_u32 s96, s96, {WS_STAMP}")
        e("v_lshl_add_u32 v1, v0, 2, s96")
        e(f"global_store_dword v1, {v(SV)}, {s(P_WS, 2)}")
    if DBGT and half == 1:
        lab = e.newlabel("dbgt")
        e(f"s_cmp_lg_u32 {s(S_W)}, 0")
        e(f"s_cbranch_scc1 {lab}")
        e("s_waitcnt vmcnt(0)")
        e("s_memrealtime s[96:97]")
        e("s_memtime s[12:13]")
        e("s_waitcnt lgkmcnt(0)")
        e("s_not_b32 s100, s100")
        e("s_sub_u32 s12, s12, s98")
        e("v_mov_b32 v1, 8")
        e("v_mov_b32 v2, s100")
        e("v_mov_b32 v3, s96")
        e("v_mov_b32 v4, s12")
        e("s_mov_b64 exec, 1")
        e(f"global_atomic_umax v1, v2, {s(P_DBG, 2)} sc1")
        e(f"global_atomic_umax v1, v3, {s(P_DBG, 2)} offset:4 sc1")
        e(f"global_atomic_umax v1, v4, {s(P_DBG, 2)} offset:8 sc1")
        e.label(lab)
    e("s_endpgm")


def gen():
    e = Path()
    prologue_common(e)
    out = [e]
    for typ, half, lab in (('X', 0, None), ('X', 1, 'L_X1'), ('Y', 0, 'L_Y0'), ('Y', 1, 'L_Y1')):
        p = e.fork()
        if lab:
            p.label(lab)
        path(p, typ, half)
        out.append(p)
    for half in range(2):
        z = Path()
        phase2(z, half)
        out.append(z)
    z = Path()
    z.label("L_exit")
    z("s_endpgm")
    z.label("L_code_end")
    out.append(z)
    return "".join(x.text() for x in out)


HERE = os.path.dirname(os.path.abspath(__file__))
HEADER = open(os.path.join(HERE, "..", "cdna_kernels", NAME + ".s.ref")).read()


def main():
    hdr = []
    for line in HEADER.splitlines():
        if line.startswith(";") and "@launch" not in line:
            hdr.append(line)
        elif not line.startswith(";"):
            break
    out = "\n".join(hdr) + "\n"
    out += f"; @launch grid=(256,1,1) block=(512,1,1) lds={LDS_BYTES}\n"
    out += '.amdgcn_target "amdgcn-amd-amdhsa--gfx950"\n.text\n'
    name = NAME + "_kernel"
    out += f".globl {name}\n.p2align 8\n.type {name},@function\n{name}:\n" + gen()
    out += '.section .rodata,"a"\n'
    out += f""".p2align 6
.amdhsa_kernel {name}
  .amdhsa_next_free_vgpr 256
  .amdhsa_next_free_sgpr 102
  .amdhsa_accum_offset 256
  .amdhsa_group_segment_fixed_size 0
  .amdhsa_kernarg_size 136
  .amdhsa_user_sgpr_count 2
  .amdhsa_user_sgpr_kernarg_segment_ptr 1
  .amdhsa_system_sgpr_workgroup_id_x 1
  .amdhsa_float_denorm_mode_32 3
  .amdhsa_float_denorm_mode_16_64 3
.end_amdhsa_kernel
"""
    dst = sys.argv[1] if len(sys.argv) > 1 else os.path.join(HERE, "..", "cdna_kernels", NAME + ".s")
    open(dst, "w").write(out)
    print("wrote", dst, len(out), "bytes")


if __name__ == "__main__":
    main()
```

```python
import sys, os
sys.path.insert(0, os.path.dirname(os.path.abspath(__file__)))
from asmlib import Emit, v, s

NAME = "gated_mix__ssm_conv_s5__swiglu_ffn__prompt"


def env(name, default):
    return int(os.environ.get(name, str(default)))


STAMPS = env("STAMPS", 0)
DBGT = env("DBGT", 0)
OUTP = os.environ.get("OUTP", " sc1")
FINE = env("FINE", 0)
ROTMASK = env("ROTMASK", 7)
CODEPF = env("CODEPF", 1)
JR0, JR1 = env("JR0", 3), env("JR1", 2)
S_JOBS = env("S_JOBS", 10)
S_GR = env("S_GR", 19)
EARLYB = env("EARLYB", 0)
S_QUIET = env("S_QUIET", 18)
S_BTA = env("S_BTA", -1)
S_BT = env("S_BT", 6)
S_BS = env("S_BS", 18)
BLAT = env("BLAT", 6)
TAILCP = env("TAILCP", 10)

KS = 176
WS_A2 = 0
A2_BYTES = 64 * KS * 1024
WS_G = A2_BYTES + 16 * KS * 1024
WS_AGG = WS_G + 8192
AGG_BYTES = 32 * 8192
WS_DONE = WS_AGG + AGG_BYTES
WS_END = WS_DONE + 32768
WS_STAMP = 24 << 20

REG = 16384
L_SEX = 131072
L_PAR = 147456
PARS = 1536
L_MISC = 161792
L_TOP = 131072
LDS_BYTES = 163840

LOG2E = 0x3FB8AA3B
NLOG2E = 0xBFB8AA3B
INV2PI = 0x3E22F983

S_ROT = 1
S_WV, S_W, S_HALF, S_I, S_CQ, S_JJ, S_UA, S_UB, S_ST0 = 3, 4, 5, 6, 7, 8, 9, 10, 11
S_T0, S_T1, S_T2, S_T3 = 12, 13, 14, 15
P_X, P_LRE, P_LIM, P_BRE, P_BIM, P_CRE, P_CIM, P_LDT = 16, 18, 20, 22, 24, 26, 28, 30
P_DSK, P_BX, P_WG, P_WU, P_WD, P_GW, P_OUT, P_DBG = 32, 34, 36, 38, 40, 42, 44, 46
P_WS = 48
S_MT, S_NT = 50, 51
SRD_X, SRD_S, SRD_G, SRD_U, SRD_WS, SRD_B = 52, 56, 60, 64, 68, 72
S_K0, S_K1 = 76, 77
S_LB0, S_LB1, S_LB2 = 78, 79, 80
S_NL2E = 81
S_A2A, S_A2B, S_A2S = 82, 83, 84
S_COL = 85
S_SPIN = 86
S_GOFF = 87
S_M0, S_M1 = 88, 90
S_PUB = 93
S_LBS = 94
S_B0 = 95
S_A0 = 35
S_EPOCH = 34

V_DA = 1
V_DB = 6
V_XA = 10
V_SA = 14
V_TA = 18
V_TB = 21
V_ST = 23
V_FR = 24
ACC = [48, 64, 80, 96, 112]
V_X = 128

DPP_X1 = "quad_perm:[1,0,3,2] row_mask:0xf bank_mask:0xf"
DPP_X2 = "quad_perm:[2,3,0,1] row_mask:0xf bank_mask:0xf"


class Path(Emit):
    cnt = 0

    def newlabel(self, base):
        Path.cnt += 1
        return f"L_{base}_{Path.cnt}"

    def fork(self):
        e = Path()
        e.vm_seq, e.vm_done, e.lg_seq, e.lg_done = self.vm_seq, self.vm_done, self.lg_seq, self.lg_done
        return e


class Sched:
    def __init__(self):
        self.q = []

    def add(self, gen):
        self.q.append(gen)

    def pump(self, n):
        while n > 0 and self.q:
            try:
                next(self.q[0])
                n -= 1
            except StopIteration:
                self.q.pop(0)

    def drain(self):
        self.pump(1 << 30)

    def empty(self):
        return not self.q


def run(gen):
    for _ in gen:
        pass


def srd(e, d, ptr, nbytes):
    e(f"s_mov_b32 {s(d)}, {s(ptr)}")
    e(f"s_and_b32 {s(d + 1)}, {s(ptr + 1)}, 0xffff")
    e(f"s_mov_b32 {s(d + 2)}, {nbytes}")
    e(f"s_mov_b32 {s(d + 3)}, 0x00020000")


STMAP = [int(x) for x in os.environ.get("STMAP", "").split(",") if x]
DBGWG = env("DBGWG", 200)
DBGWV = env("DBGWV", 0)


def stamp(e, vr, idx, real=False):
    if not STAMPS:
        return
    if STMAP:
        if idx not in STMAP:
            return
        idx = 1 + STMAP.index(idx)
    e(f"{'s_memrealtime' if real else 's_memtime'} s[96:97]")
    e("s_waitcnt lgkmcnt(0)")
    e(f"v_writelane_b32 {v(vr)}, s96, {idx}")


def mfma(e, d, a, b, first):
    c = "0" if first else v(d, 16)
    e(f"v_mfma_f32_32x32x16_bf16 {v(d, 16)}, {v(a, 4)}, {v(b, 4)}, {c}")


def dma(e, voff, srd_, soff, off=0):
    o = f" offset:{off}" if off else ""
    return e.vm(f"buffer_load_dwordx4 {v(voff)}, {s(srd_, 4)}, {s(soff)} offen{o} lds")


def spin_tail(e, lp, sleep=1):
    e(f"s_add_u32 {s(S_SPIN)}, {s(S_SPIN)}, 1")
    e(f"s_cmp_lt_u32 {s(S_SPIN)}, 0x4000")
    e(f"s_cbranch_scc1 {lp}")


def prologue_common(e):
    e("s_cmp_ge_u32 s2, 256")
    e("s_cbranch_scc1 L_exit")
    if STAMPS or DBGT:
        e("s_memtime s[98:99]")
        e("s_memrealtime s[100:101]")
    e(f"s_load_dwordx16 {s(16, 16)}, s[0:1], 0")
    e(f"s_load_dwordx16 {s(32, 16)}, s[0:1], 64")
    e(f"s_load_dwordx2 {s(48, 2)}, s[0:1], 128")
    if CODEPF:
        e("s_getpc_b64 s[4:5]")
        e.label("L_pc")
        e("s_lshr_b32 s6, s2, 3")
        e("s_lshl_b32 s6, s6, 4")
        e("v_and_b32 v2, 15, v0")
        e("v_add_u32 v2, s6, v2")
        e("v_lshlrev_b32 v2, 7, v2")
        e("v_min_u32 v2, L_code_end-L_pc-4, v2")
        e("v_cmp_gt_u32 vcc, 16, v0")
        e("s_and_saveexec_b64 s[8:9], vcc")
        e("s_cbranch_execz L_nopf")
        e("global_load_dword v223, v2, s[4:5]")
        e.label("L_nopf")
        e("s_mov_b64 exec, s[8:9]")
    e("v_lshrrev_b32 v1, 6, v0")
    e("v_and_b32 v0, 63, v0")
    e(f"v_readfirstlane_b32 {s(S_WV)}, v1")
    e(f"s_and_b32 {s(S_T0)}, s2, 7")
    e(f"s_lshr_b32 {s(S_T1)}, s2, 3")
    e(f"s_lshr_b32 {s(S_CQ)}, {s(S_T0)}, 1")
    e(f"s_and_b32 {s(S_T2)}, {s(S_T0)}, 1")
    e(f"s_lshl_b32 {s(S_T3)}, {s(S_T2)}, 3")
    e(f"s_and_b32 {s(S_I)}, {s(S_T1)}, 7")
    e(f"s_add_u32 {s(S_I)}, {s(S_I)}, {s(S_T3)}")
    e(f"s_lshr_b32 {s(S_JJ)}, {s(S_T1)}, 3")
    e(f"s_and_b32 {s(S_W)}, {s(S_WV)}, 3")
    e(f"s_lshr_b32 {s(S_HALF)}, {s(S_WV)}, 2")
    e(f"s_lshl_b32 {s(S_MT)}, {s(S_CQ)}, 3")
    e(f"s_and_b32 {s(S_T3)}, {s(S_T1)}, 7")
    e(f"s_add_u32 {s(S_MT)}, {s(S_MT)}, {s(S_T3)}")
    e(f"s_lshl_b32 {s(S_NT)}, {s(S_T2)}, 2")
    e(f"s_add_u32 {s(S_NT)}, {s(S_NT)}, {s(S_JJ)}")
    e(f"s_mul_i32 {s(S_UA)}, {s(S_CQ)}, 7")
    e(f"s_lshl_b32 {s(S_T2)}, {s(S_JJ)}, 1")
    e(f"s_add_u32 {s(S_UA)}, {s(S_UA)}, {s(S_T2)}")
    e(f"s_add_u32 {s(S_UB)}, {s(S_UA)}, 1")
    e(f"s_cmp_eq_u32 {s(S_JJ)}, 3")
    e(f"s_cselect_b32 {s(S_UB)}, {s(S_UA)}, {s(S_UB)}")
    e(f"s_lshl_b32 {s(S_ST0)}, {s(S_CQ)}, 3")
    e(f"s_add_u32 {s(S_ST0)}, {s(S_ST0)}, {s(S_JJ)}")
    e(f"s_lshl_b32 {s(S_COL)}, {s(S_CQ)}, 2")
    e(f"s_add_u32 {s(S_COL)}, {s(S_COL)}, {s(S_JJ)}")
    e(f"s_cmp_eq_u32 {s(S_JJ)}, 3")
    e(f"s_cselect_b32 {s(S_T0)}, 2, 0")
    e(f"s_add_u32 {s(S_T0)}, {s(S_T0)}, {s(S_HALF)}")
    e(f"s_cmp_eq_u32 {s(S_T0)}, 1")
    e("s_cbranch_scc1 L_X1")
    e(f"s_cmp_eq_u32 {s(S_T0)}, 2")
    e("s_cbranch_scc1 L_Y0")
    e(f"s_cmp_eq_u32 {s(S_T0)}, 3")
    e("s_cbranch_scc1 L_Y1")


def krot(e, dst, add, mul):
    e(f"s_add_u32 {s(dst)}, {s(S_ROT)}, {add}")
    e(f"s_and_b32 {s(dst)}, {s(dst)}, 7")
    e(f"s_mul_i32 {s(dst)}, {s(dst)}, {mul}")


def unit_gen(e, typ, half, unit, utok):
    slot = unit % 4
    if unit >= 8:
        c = unit - 8
        e(f"s_add_u32 m0, {s(S_LB2)}, {slot * 4096}")
        krot(e, S_K1, 2 * c + half, 64 * 3584)
        dma(e, V_DB, SRD_G, S_K1); yield
        dma(e, V_DB + 1, SRD_G, S_K1, 1024); yield
        e(f"s_add_u32 m0, {s(S_LB2)}, {4 * REG + slot * 4096}")
        e("s_nop 0")
        dma(e, V_DB + 2, SRD_U, S_K1); yield
        utok[unit] = dma(e, V_DB + 3, SRD_U, S_K1, 1024); yield
        return
    if half == 1:
        e(f"s_add_u32 m0, {s(S_LB0)}, {slot * 4096}")
        krot(e, S_K0, unit, 128)
        for q in range(4):
            utok[unit] = dma(e, V_DA + q, SRD_X, S_K0, 1024 * q); yield
        return
    if typ == 'X':
        e(f"s_add_u32 m0, {s(S_LB0)}, {8 * REG + slot * 4096}")
        krot(e, S_K0, unit, 128)
        dma(e, V_DA, SRD_S, S_K0); yield
        e(f"s_add_u32 m0, {s(S_LB1)}, {4 * REG + slot * 4096}")
        e(f"s_mul_i32 {s(S_K1)}, {s(S_K0)}, {64 * 3584 // 128}")
        dma(e, V_DA + 1, SRD_G, S_K1); yield
        dma(e, V_DA + 2, SRD_G, S_K1, 1024); yield
        e(f"s_add_u32 m0, {s(S_LB1)}, {6 * REG + slot * 4096}")
        e("s_nop 0")
        dma(e, V_DA + 3, SRD_U, S_K1); yield
        utok[unit] = dma(e, V_DA + 4, SRD_U, S_K1, 1024); yield
        return
    for m in range(5):
        e(f"s_add_u32 m0, {s(S_LB0)}, {(4 + m) * REG + slot * 4096}")
        if m == 0:
            krot(e, S_K0, unit, 128)
        else:
            e(f"s_add_u32 {s(S_K0)}, {s(S_K0)}, 16384")
        utok[unit] = dma(e, V_DA, SRD_S, S_K0); yield


def ffn_epilogue(e, A, T, sbase, t, defer=None):
    G, U = A, A + 8
    for k in range(8):
        e(f"v_mul_f32 {v(T + k)}, {s(S_NL2E)}, {v(G + k)}"); yield
    for k in range(8):
        e(f"v_exp_f32 {v(T + k)}, {v(T + k)}"); yield
        e(f"v_mul_f32 {v(U + k)}, {v(G + k)}, {v(U + k)}"); yield
    for k in range(8):
        e(f"v_add_f32 {v(T + k)}, 1.0, {v(T + k)}"); yield
    for k in range(8):
        e(f"v_rcp_f32 {v(T + k)}, {v(T + k)}"); yield
        if k >= 2:
            e(f"v_mul_f32 {v(U + k - 2)}, {v(U + k - 2)}, {v(T + k - 2)}"); yield
    e(f"v_mul_f32 {v(U + 6)}, {v(U + 6)}, {v(T + 6)}"); yield
    e(f"v_mul_f32 {v(U + 7)}, {v(U + 7)}, {v(T + 7)}"); yield
    for p in range(4):
        e(f"v_cvt_pk_bf16_f32 {v(G + p)}, {v(U + 2 * p)}, {v(U + 2 * p + 1)}"); yield
    o = f" offset:{1024 * t}" if t else ""
    txt = f"buffer_store_dwordx4 {v(G, 4)}, {v(V_ST)}, {s(SRD_WS, 4)}, {s(sbase)} offen{o} sc1"
    if defer is not None:
        defer.append(txt)
    else:
        e.last_store = e.vm(txt); yield


def path(e, typ, half):
    T = 96
    SV = 95 if half == 0 else 5
    tok = {}
    utok = {}
    if STAMPS:
        e(f"v_mov_b32 {v(SV)}, 0")
    if half == 1:
        e("s_setprio 1")
    e(f"v_lshrrev_b32 {v(T)}, 3, v0")
    e(f"v_and_b32 {v(T + 1)}, 7, v0")
    e(f"v_lshrrev_b32 {v(T + 2)}, 4, v0")
    e(f"v_lshrrev_b32 {v(T + 3)}, 5, v0")
    e(f"v_and_b32 {v(T + 4)}, 31, v0")
    e(f"v_and_b32 {v(T + 5)}, 1, {v(T + 2)}")
    e(f"v_lshlrev_b32 {v(T + 5)}, 1, {v(T + 5)}")
    e(f"v_xor_b32 {v(T + 5)}, {v(T + 5)}, {v(T + 1)}")
    e(f"v_lshlrev_b32 {v(T + 5)}, 4, {v(T + 5)}")
    e(f"v_mul_u32_u24 {v(T + 6)}, 3584, {v(T)}")
    e(f"v_add_u32 {v(T + 5)}, {v(T + 5)}, {v(T + 6)}")
    e(f"v_lshlrev_b32 {v(V_ST)}, 4, v0")
    if half == 1:
        e(f"v_bfe_u32 {v(T + 14)}, v0, 3, 2")
        e(f"v_lshl_add_u32 {v(T + 14)}, {v(T + 3)}, 4, {v(T + 14)}")
        e(f"v_xor_b32 {v(T + 15)}, {v(T + 1)}, {v(T + 2)}")
        e(f"v_lshlrev_b32 {v(T + 15)}, 4, {v(T + 15)}")
        e(f"v_lshl_add_u32 {v(T + 14)}, {v(T + 14)}, 10, {v(T + 15)}")
        e(f"s_lshl_b32 {s(S_T0)}, {s(S_I)}, 17")
        e(f"s_lshl_b32 {s(S_T1)}, {s(S_W)}, 15")
        e(f"s_add_u32 {s(S_T0)}, {s(S_T0)}, {s(S_T1)}")
        e(f"v_add_u32 {v(V_DA)}, {s(S_T0)}, {v(T + 14)}")
        e(f"v_xor_b32 {v(T + 14)}, 64, {v(V_DA)}")
        e(f"v_add_u32 {v(V_DA + 1)}, {4096 - 1024}, {v(T + 14)}")
        e(f"v_add_u32 {v(V_DA + 2)}, {2 * (4096 - 1024)}, {v(V_DA)}")
        e(f"v_add_u32 {v(V_DA + 3)}, {3 * (4096 - 1024)}, {v(T + 14)}")
        e(f"s_lshl_b32 {s(S_LB0)}, {s(S_W)}, 14")
        e("s_waitcnt lgkmcnt(0)")
        srd(e, SRD_X, P_X, 2048 * 1024)
    else:
        e(f"s_lshr_b32 {s(S_T0)}, {s(S_W)}, 1")
        e(f"s_lshl_b32 {s(S_T0)}, {s(S_T0)}, 2")
        e(f"v_xor_b32 {v(T + 14)}, {v(T + 1)}, {v(T + 2)}")
        e(f"v_xor_b32 {v(T + 14)}, {s(S_T0)}, {v(T + 14)}")
        e(f"v_lshlrev_b32 {v(T + 14)}, 4, {v(T + 14)}")
        e(f"v_lshl_add_u32 {v(T + 14)}, {v(T)}, 10, {v(T + 14)}")
        e(f"s_lshl_b32 {s(S_T0)}, {s(S_ST0)}, 14")
        e(f"s_and_b32 {s(S_T1)}, {s(S_W)}, 1")
        e(f"s_lshl_b32 {s(S_T1)}, {s(S_T1)}, 13")
        e(f"s_add_u32 {s(S_T0)}, {s(S_T0)}, {s(S_T1)}")
        e(f"v_add_u32 {v(V_DA)}, {s(S_T0)}, {v(T + 14)}")
        e(f"s_lshl_b32 {s(S_LB0)}, {s(S_W)}, 10")
        if typ == 'X':
            e(f"s_mul_i32 {s(S_T0)}, {s(S_W)}, {16 * 3584}")
            e(f"s_lshl_b32 {s(S_T1)}, {s(S_UA)}, 7")
            e(f"s_add_u32 {s(S_T0)}, {s(S_T0)}, {s(S_T1)}")
            e(f"v_add_u32 {v(V_DA + 1)}, {s(S_T0)}, {v(T + 5)}")
            e(f"v_add_u32 {v(V_DA + 2)}, {8 * 3584 - 1024}, {v(V_DA + 1)}")
            e(f"v_xor_b32 {v(V_DA + 3)}, 64, {v(V_DA + 1)}")
            e(f"v_xor_b32 {v(V_DA + 4)}, 64, {v(V_DA + 2)}")
            e(f"s_lshr_b32 {s(S_LB1)}, {s(S_W)}, 1")
            e(f"s_lshl_b32 {s(S_LB1)}, {s(S_LB1)}, 14")
            e(f"s_and_b32 {s(S_T0)}, {s(S_W)}, 1")
            e(f"s_lshl_b32 {s(S_T0)}, {s(S_T0)}, 11")
            e(f"s_add_u32 {s(S_LB1)}, {s(S_LB1)}, {s(S_T0)}")
        e("s_waitcnt lgkmcnt(0)")
        e(f"s_cmp_lt_u32 {s(S_W)}, 2")
        e(f"s_cselect_b32 {s(SRD_S)}, {s(P_BRE)}, {s(P_BIM)}")
        e(f"s_cselect_b32 {s(SRD_S + 1)}, {s(P_BRE + 1)}, {s(P_BIM + 1)}")
        e(f"s_and_b32 {s(SRD_S + 1)}, {s(SRD_S + 1)}, 0xffff")
        e(f"s_mov_b32 {s(SRD_S + 2)}, {512 * 1024}")
        e(f"s_mov_b32 {s(SRD_S + 3)}, 0x00020000")
        if typ == 'X':
            srd(e, SRD_G, P_WG, 512 * 3584)
            srd(e, SRD_U, P_WU, 512 * 3584)
    if STAMPS:
        e(f"v_writelane_b32 {v(SV)}, s98, 0")
        e(f"v_writelane_b32 {v(SV)}, s100, 60")
    stamp(e, SV, 1)
    e(f"s_lshl_b32 {s(S_ROT)}, {s(S_JJ)}, 1")
    e(f"s_add_u32 {s(S_ROT)}, {s(S_ROT)}, {s(S_I)}")
    e(f"s_and_b32 {s(S_ROT)}, {s(S_ROT)}, {ROTMASK}")
    run(unit_gen(e, typ, half, 0, utok))
    stamp(e, SV, 51)
    G = 224
    PP = 236
    if half == 0:
        lab = e.newlabel("ep_skip")
        e(f"v_mov_b32 {v(PP + 1)}, 0")
        e(f"s_lshl_b32 {s(S_T0)}, {s(S_W)}, 3")
        e(f"s_or_b32 {s(S_T0)}, {s(S_T0)}, s2")
        e(f"s_cmp_ge_u32 {s(S_T0)}, 8")
        e(f"s_cbranch_scc1 {lab}")
        e(f"s_memrealtime {s(S_M0, 2)}")
        e("s_waitcnt lgkmcnt(0)")
        e(f"s_or_b32 {s(S_T0)}, {s(S_M0)}, 1")
        e(f"v_mov_b32 {v(PP)}, {s(S_T0)}")
        e("s_mov_b64 exec, 1")
        e(f"global_atomic_cmpswap {v(PP + 1)}, {v(PP, 2)}, {s(P_DBG, 2)} sc1")
        e("s_mov_b64 exec, -1")
        e.label(lab)
        srd(e, SRD_X, P_X, 2048 * 1024)
    if not (half == 0 and typ == 'X'):
        srd(e, SRD_G, P_WG, 512 * 3584)
        srd(e, SRD_U, P_WU, 512 * 3584)
    srd(e, SRD_WS, P_WS, WS_END)
    e(f"s_mov_b32 {s(S_NL2E)}, {NLOG2E:#x}")
    e("s_barrier")
    if half == 1:
        run(unit_gen(e, typ, half, 1, utok))
    stamp(e, SV, 52)
    e(f"s_lshl_b32 {s(S_T0)}, {s(S_I)}, 7")
    e(f"s_lshl_b32 {s(S_T1)}, {s(S_COL)}, 3")
    e(f"s_add_u32 {s(S_T0)}, {s(S_T0)}, {s(S_T1)}")
    e(f"s_add_u32 {s(S_T0)}, {s(S_T0)}, {s(S_WV)}")
    e(f"s_lshl_b32 {s(S_T1)}, {s(S_T0)}, 10")
    e(f"s_lshl_b32 {s(S_GOFF)}, {s(S_T0)}, 2")
    e(f"s_add_u32 {s(S_GOFF)}, {s(S_GOFF)}, {WS_G}")
    e(f"v_add_u32 {v(PP + 3)}, {s(S_T1)}, {v(V_ST)}")
    own0 = 0 if half == 0 else 2
    e(f"s_add_u32 {s(S_PUB)}, {s(S_ST0)}, {s(S_W)}")
    e(f"s_lshl_b32 {s(S_PUB)}, {s(S_PUB)}, 13")
    e(f"s_add_u32 {s(S_PUB)}, {s(S_PUB)}, {WS_AGG + own0 * 8192}")
    e(f"s_lshl_b32 {s(S_T0)}, {s(S_I)}, 8")
    e(f"s_add_u32 {s(S_PUB)}, {s(S_PUB)}, {s(S_T0)}")
    if half == 0:
        e(f"s_cmp_eq_u32 {s(S_W)}, 0")
        e(f"s_cselect_b32 {s(S_T1)}, 4, 0")
        e(f"v_mul_u32_u24 {v(G + 8)}, {s(S_T1)}, {v(T + 3)}")
        e(f"s_add_u32 {s(S_T0)}, {s(S_ST0)}, {s(S_W)}")
        e(f"v_add_u32 {v(G + 8)}, {s(S_T0)}, {v(G + 8)}")
        e(f"v_min_u32 {v(G + 8)}, 31, {v(G + 8)}")
        e(f"v_and_b32 {v(G + 9)}, 30, v0")
        e(f"v_lshl_add_u32 {v(G + 8)}, {v(G + 8)}, 5, {v(G + 9)}")
    e(f"s_mul_i32 {s(S_T0)}, {s(S_W)}, {16 * 3584}")
    e(f"s_lshl_b32 {s(S_T1)}, {s(S_UB)}, 7")
    e(f"s_add_u32 {s(S_T0)}, {s(S_T0)}, {s(S_T1)}")
    e(f"v_add_u32 {v(V_DB)}, {s(S_T0)}, {v(T + 5)}")
    e(f"v_add_u32 {v(V_DB + 1)}, {8 * 3584 - 1024}, {v(V_DB)}")
    e(f"v_xor_b32 {v(V_DB + 2)}, 64, {v(V_DB)}")
    e(f"v_xor_b32 {v(V_DB + 3)}, 64, {v(V_DB + 1)}")
    e(f"v_bfe_u32 {v(T + 6)}, v0, 1, 3")
    e(f"v_xor_b32 {v(T + 6)}, {v(T + 6)}, {v(T + 3)}")
    e(f"v_lshlrev_b32 {v(T + 6)}, 4, {v(T + 6)}")
    e(f"v_lshl_add_u32 {v(T + 6)}, {v(T + 4)}, 7, {v(T + 6)}")
    e(f"s_lshl_b32 {s(S_T0)}, {s(S_W)}, 14")
    e(f"v_add_u32 {v(V_XA)}, {s(S_T0)}, {v(T + 6)}")
    for u in range(1, 4):
        e(f"v_xor_b32 {v(V_XA + u)}, {32 * u}, {v(V_XA)}")
    e(f"v_bfe_u32 {v(T + 7)}, v0, 2, 2")
    e(f"v_lshl_add_u32 {v(T + 8)}, {v(T + 3)}, 3, {v(T + 7)}")
    e(f"v_lshlrev_b32 {v(T + 8)}, 7, {v(T + 8)}")
    e(f"v_and_b32 {v(T + 11)}, 3, v0")
    e(f"v_lshl_add_u32 {v(T + 8)}, {v(T + 11)}, 3, {v(T + 8)}")
    e(f"v_and_b32 {v(T + 9)}, 1, {v(T + 2)}")
    e(f"v_lshrrev_b32 {v(T + 10)}, 1, {v(T + 7)}")
    e(f"v_lshl_add_u32 {v(T + 10)}, {v(T + 9)}, 1, {v(T + 10)}")
    e(f"v_lshl_add_u32 {v(T + 8)}, {v(T + 10)}, 5, {v(T + 8)}")
    e(f"v_lshl_add_u32 {v(T + 10)}, {v(T + 9)}, 16, {v(T + 8)}")
    e(f"v_xor_b32 {v(V_TB)}, {64 * half}, {v(T + 10)}")
    e(f"v_xor_b32 {v(V_TB + 1)}, 32, {v(V_TB)}")
    if typ == 'X':
        tilesA = [('S', 0), ('F', 0)] if half == 0 else [('F', 1), ('F', 2), ('F', 3)]
    else:
        tilesA = [('S', 0), ('S', 1)] if half == 0 else [('S', 2), ('S', 3), ('S', 4)]
    stiles = [m for k, m in tilesA if k == 'S']
    ft = [m for k, m in tilesA if k == 'F']
    if ft:
        e(f"v_lshl_add_u32 {v(T + 10)}, {v(T + 9)}, 15, {v(T + 8)}")
        e(f"v_add_u32 {v(T + 10)}, {4 * REG}, {v(T + 10)}")
        for idx, t in enumerate(ft):
            e(f"v_xor_b32 {v(V_TA + idx)}, {32 * t}, {v(T + 10)}")
    if stiles:
        e(f"v_and_b32 {v(T + 12)}, 1, v0")
        e(f"v_lshrrev_b32 {v(T + 13)}, 1, {v(T + 4)}")
        e(f"v_lshl_add_u32 {v(T + 13)}, {v(T + 12)}, 4, {v(T + 13)}")
        e(f"v_bfe_u32 {v(T + 14)}, {v(T + 13)}, 1, 2")
        e(f"v_lshl_add_u32 {v(T + 14)}, {v(T + 12)}, 2, {v(T + 14)}")
        e(f"v_xor_b32 {v(T + 14)}, {v(T + 14)}, {v(T + 3)}")
        e(f"v_lshlrev_b32 {v(T + 14)}, 4, {v(T + 14)}")
        e(f"v_lshl_add_u32 {v(T + 14)}, {v(T + 13)}, 7, {v(T + 14)}")
        base = (8 * REG) if typ == 'X' else (4 + stiles[0]) * REG
        e(f"v_add_u32 {v(V_SA)}, {base}, {v(T + 14)}")
        for u in range(1, 4):
            e(f"v_xor_b32 {v(V_SA + u)}, {32 * u}, {v(V_SA)}")
    e(f"s_lshr_b32 {s(S_LB2)}, {s(S_WV)}, 1")
    e(f"s_lshl_b32 {s(S_LB2)}, {s(S_LB2)}, 14")
    e(f"s_and_b32 {s(S_T0)}, {s(S_WV)}, 1")
    e(f"s_lshl_b32 {s(S_T0)}, {s(S_T0)}, 11")
    e(f"s_add_u32 {s(S_LB2)}, {s(S_LB2)}, {s(S_T0)}")
    e(f"s_lshl_b32 {s(S_LBS)}, {s(S_WV)}, 14")
    e(f"s_lshl_b32 {s(S_T0)}, {s(S_I)}, 2")
    e(f"s_add_u32 {s(S_T0)}, {s(S_T0)}, {s(S_W)}")
    e(f"s_mul_i32 {s(S_T0)}, {s(S_T0)}, {KS * 1024}")
    e(f"s_lshl_b32 {s(S_T1)}, {s(S_UA)}, 12")
    e(f"s_add_u32 {s(S_A2A)}, {s(S_T0)}, {s(S_T1)}")
    e(f"s_lshl_b32 {s(S_T1)}, {s(S_UB)}, 12")
    e(f"s_add_u32 {s(S_A2B)}, {s(S_T0)}, {s(S_T1)}")
    e(f"s_lshl_b32 {s(S_T1)}, {s(S_ST0)}, 11")
    e(f"s_add_u32 {s(S_A2S)}, {s(S_T0)}, {s(S_T1)}")
    e(f"s_add_u32 {s(S_A2S)}, {s(S_A2S)}, {112 * 1024}")
    e(f"s_mul_i32 {s(S_A0)}, {s(S_MT)}, {2 * KS * 1024}")
    if half == 0:
        e(f"s_lshl_b32 {s(S_T0)}, {s(S_W)}, 14")
        e(f"s_add_u32 {s(S_A0)}, {s(S_A0)}, {s(S_T0)}")
        e(f"s_add_u32 {s(S_A0)}, {s(S_A0)}, {112 * 1024}")
        e(f"s_lshl_b32 {s(S_B0)}, {s(S_NT)}, 16")
        e(f"s_lshl_b32 {s(S_T0)}, {s(S_W)}, 8")
        e(f"s_add_u32 {s(S_B0)}, {s(S_B0)}, {s(S_T0)}")
    else:
        e(f"s_mul_i32 {s(S_T0)}, {s(S_W)}, {28 * 1024}")
        e(f"s_add_u32 {s(S_A0)}, {s(S_A0)}, {s(S_T0)}")
        e(f"s_mul_i32 {s(S_B0)}, {s(S_W)}, {448 * 1024}")
        e(f"s_lshl_b32 {s(S_T0)}, {s(S_NT)}, 7")
        e(f"s_add_u32 {s(S_B0)}, {s(S_B0)}, {s(S_T0)}")
        srd(e, SRD_B, P_WD, 1792 * 1024)
    stamp(e, SV, 2)

    def small_gen():
        if half == 0:
            e.vm(f"global_load_ushort {v(G + 9)}, {v(G + 8)}, {s(P_LRE, 2)}")
            e.vm(f"global_load_ushort {v(G + 10)}, {v(G + 8)}, {s(P_LIM, 2)}")
            tok['par'] = e.vm(f"global_load_ushort {v(G + 11)}, {v(G + 8)}, {s(P_LDT, 2)}"); yield
        e.vm(f"buffer_load_dwordx4 {v(G, 4)}, {v(PP + 3)}, {s(SRD_X, 4)}, 0 offen"); yield
        tok['gw'] = e.vm(f"global_load_dwordx4 {v(G + 4, 4)}, {v(V_ST)}, {s(P_GW, 2)}"); yield

    def job_gate():
        TT = 96
        e.wait(vm=tok['gw'])
        for j in range(4):
            e(f"v_lshlrev_b32 {v(TT + 2 * j)}, 16, {v(G + j)}"); yield
            e(f"v_and_b32 {v(TT + 2 * j + 1)}, 0xffff0000, {v(G + j)}"); yield
            e(f"v_lshlrev_b32 {v(TT + 8 + 2 * j)}, 16, {v(G + 4 + j)}"); yield
            e(f"v_and_b32 {v(TT + 8 + 2 * j + 1)}, 0xffff0000, {v(G + 4 + j)}"); yield
        tok['xfree1'] = True
        for j in range(8):
            e(f"v_mul_f32 {v(TT + j)}, {v(TT + j)}, {v(TT + 8 + j)}"); yield
        for j in range(4):
            e(f"v_cvt_pk_bf16_f32 {v(TT + 8 + j)}, {v(TT + 2 * j)}, {v(TT + 2 * j + 1)}"); yield
        for j in range(4):
            e(f"v_lshlrev_b32 {v(TT + 2 * j)}, 16, {v(TT + 8 + j)}"); yield
            e(f"v_and_b32 {v(TT + 2 * j + 1)}, 0xffff0000, {v(TT + 8 + j)}"); yield
        for j in range(4):
            e(f"v_add_f32 {v(TT + j)}, {v(TT + j)}, {v(TT + 4 + j)}"); yield
        e(f"v_add_f32 {v(TT)}, {v(TT)}, {v(TT + 2)}"); yield
        e(f"v_add_f32 {v(TT + 1)}, {v(TT + 1)}, {v(TT + 3)}"); yield
        e(f"v_add_f32 {v(TT)}, {v(TT)}, {v(TT + 1)}"); yield
        a, b = TT, TT + 1
        for d in (DPP_X1, DPP_X2, "row_half_mirror row_mask:0xf bank_mask:0xf", "row_mirror row_mask:0xf bank_mask:0xf"):
            e.nop(2)
            e(f"v_add_f32_dpp {v(b)}, {v(a)}, {v(a)} {d}"); yield
            a, b = b, a
        e.nop(1)
        e(f"v_readlane_b32 {s(S_T0)}, {v(a)}, 16")
        e(f"v_readlane_b32 {s(S_T1)}, {v(a)}, 32")
        e(f"v_readlane_b32 {s(S_T2)}, {v(a)}, 48")
        e.nop(2)
        e(f"v_add_f32 {v(a)}, {s(S_T0)}, {v(a)}")
        e(f"v_mov_b32 {v(b)}, {s(S_T1)}")
        e(f"v_add_f32 {v(b)}, {s(S_T2)}, {v(b)}"); yield
        e(f"v_add_f32 {v(a)}, {v(a)}, {v(b)}"); yield
        e(f"v_cvt_pk_bf16_f32 {v(a)}, {v(a)}, {v(a)}"); yield
        e(f"v_lshlrev_b32 {v(a)}, 16, {v(a)}"); yield
        e(f"v_mul_f32 {v(a)}, {s(S_NL2E)}, {v(a)}"); yield
        e(f"v_exp_f32 {v(a)}, {v(a)}"); yield
        e(f"s_lshl_b32 {s(S_T0)}, {s(S_WV)}, 2")
        e(f"s_add_u32 {s(S_T0)}, {s(S_T0)}, {L_MISC + 64}")
        e(f"v_mov_b32 {v(b)}, {s(S_T0)}"); yield
        e(f"v_add_f32 {v(a)}, 1.0, {v(a)}"); yield
        e(f"v_rcp_f32 {v(a)}, {v(a)}"); yield
        e.nop(1)
        e(f"v_cvt_pk_bf16_f32 {v(a)}, {v(a)}, {v(a)}"); yield
        e(f"v_lshlrev_b32 {v(a)}, 16, {v(a)}"); yield
        e("s_mov_b64 exec, 1")
        e.lds(f"ds_write_b32 {v(b)}, {v(a)}")
        e("s_mov_b64 exec, -1"); yield

    def job_params():
        TT = 80
        P = 112
        LRE, LIM, LD = TT + 10, TT + 11, TT + 12
        e.wait(vm=tok['par'])
        e(f"v_lshlrev_b32 {v(LRE)}, 16, {v(G + 9)}"); yield
        e(f"v_lshlrev_b32 {v(LIM)}, 16, {v(G + 10)}"); yield
        e(f"v_lshlrev_b32 {v(LD)}, 16, {v(G + 11)}"); yield
        e(f"v_mul_f32 {v(LD)}, {LOG2E:#x}, {v(LD)}"); yield
        e(f"v_exp_f32 {v(LD)}, {v(LD)}"); yield
        e(f"v_mul_f32 {v(TT + 5)}, {v(LRE)}, {v(LRE)}"); yield
        e(f"v_cvt_pk_bf16_f32 {v(LD)}, {v(LD)}, {v(LD)}"); yield
        e(f"v_lshlrev_b32 {v(LD)}, 16, {v(LD)}"); yield
        e(f"v_mul_f32 {v(TT)}, {v(LD)}, {v(LRE)}"); yield
        e(f"v_mul_f32 {v(TT + 1)}, {v(LD)}, {v(LIM)}"); yield
        e(f"v_mul_f32 {v(TT)}, {LOG2E:#x}, {v(TT)}"); yield
        e(f"v_exp_f32 {v(TT)}, {v(TT)}"); yield
        e(f"v_mul_f32 {v(TT + 1)}, {INV2PI:#x}, {v(TT + 1)}"); yield
        e(f"v_rndne_f32 {v(TT + 2)}, {v(TT + 1)}"); yield
        e(f"v_sub_f32 {v(TT + 1)}, {v(TT + 1)}, {v(TT + 2)}"); yield
        e(f"v_cos_f32 {v(TT + 2)}, {v(TT + 1)}"); yield
        e(f"v_sin_f32 {v(TT + 3)}, {v(TT + 1)}"); yield
        e(f"v_fmac_f32 {v(TT + 5)}, {v(LIM)}, {v(LIM)}"); yield
        e(f"v_mul_f32 {v(TT + 2)}, {v(TT)}, {v(TT + 2)}"); yield
        e(f"v_mul_f32 {v(TT + 3)}, {v(TT)}, {v(TT + 3)}"); yield
        e(f"v_rcp_f32 {v(TT + 5)}, {v(TT + 5)}"); yield
        e(f"v_add_f32 {v(TT + 4)}, -1.0, {v(TT + 2)}"); yield
        e(f"v_mul_f32 {v(TT + 6)}, {v(TT + 4)}, {v(LRE)}"); yield
        e(f"v_fmac_f32 {v(TT + 6)}, {v(TT + 3)}, {v(LIM)}"); yield
        e(f"v_mul_f32 {v(TT + 7)}, {v(TT + 3)}, {v(LRE)}"); yield
        e(f"v_fma_f32 {v(TT + 7)}, -{v(TT + 4)}, {v(LIM)}, {v(TT + 7)}"); yield
        e(f"v_add_f32 {v(TT + 5)}, {v(TT + 5)}, {v(TT + 5)}"); yield
        e(f"v_mul_f32 {v(TT + 6)}, {v(TT + 6)}, {v(TT + 5)}"); yield
        e(f"v_mul_f32 {v(TT + 7)}, {v(TT + 7)}, {v(TT + 5)}"); yield
        e(f"v_and_b32 {v(TT + 8)}, 1, v0"); yield
        e(f"v_lshlrev_b32 {v(TT + 8)}, 31, {v(TT + 8)}"); yield
        e(f"v_xor_b32 {v(TT + 9)}, 0x80000000, {v(TT + 8)}"); yield
        e(f"v_xor_b32 {v(P + 8)}, {v(TT + 8)}, {v(TT + 6)}"); yield
        e(f"v_xor_b32 {v(P + 9)}, 0x80000000, {v(TT + 7)}"); yield
        e(f"v_mov_b32 {v(P)}, {v(TT + 2)}"); yield
        e(f"v_xor_b32 {v(P + 1)}, {v(TT + 9)}, {v(TT + 3)}"); yield

        def square():
            e(f"v_mul_f32 {v(TT + 4)}, {v(TT + 3)}, {v(TT + 3)}"); yield
            e(f"v_mul_f32 {v(TT + 5)}, {v(TT + 2)}, {v(TT + 3)}"); yield
            e(f"v_fma_f32 {v(TT + 2)}, {v(TT + 2)}, {v(TT + 2)}, -{v(TT + 4)}"); yield
            e(f"v_add_f32 {v(TT + 3)}, {v(TT + 5)}, {v(TT + 5)}"); yield
        for k_, nsq in ((2, 4), (4, 3), (6, 1)):
            for _ in range(nsq):
                yield from square()
            e(f"v_mov_b32 {v(P + k_)}, {v(TT + 2)}"); yield
            e(f"v_xor_b32 {v(P + k_ + 1)}, {v(TT + 9)}, {v(TT + 3)}"); yield
        e(f"s_cmp_eq_u32 {s(S_W)}, 0")
        e(f"s_cselect_b32 {s(S_T1)}, {4 * PARS}, 0")
        e(f"v_lshrrev_b32 {v(TT)}, 5, v0")
        e(f"v_mul_u32_u24 {v(TT)}, {s(S_T1)}, {v(TT)}"); yield
        e(f"v_and_b32 {v(TT + 1)}, 31, v0"); yield
        e(f"v_mul_u32_u24 {v(TT + 1)}, 48, {v(TT + 1)}"); yield
        e(f"s_mul_i32 {s(S_T0)}, {s(S_W)}, {PARS}")
        e(f"s_add_u32 {s(S_T0)}, {s(S_T0)}, {L_PAR}")
        e(f"v_add3_u32 {v(TT)}, {v(TT)}, {v(TT + 1)}, {s(S_T0)}"); yield
        e.lds(f"ds_write_b128 {v(TT)}, {v(P, 4)}"); yield
        e.lds(f"ds_write_b128 {v(TT)}, {v(P + 4, 4)} offset:16"); yield
        e.lds(f"ds_write_b64 {v(TT)}, {v(P + 8, 2)} offset:32"); yield

    side = Sched()
    dq = Sched()
    dtags = []
    ucomplete = {0, 1, 2} if half == 1 else {0, 1}

    def dadd(gen, tag):
        dq.add(gen)
        dtags.append(tag)

    def dpump():
        while dq.q:
            try:
                next(dq.q[0])
                return
            except StopIteration:
                dq.q.pop(0)
                ucomplete.add(dtags.pop(0))

    def need_unit(u):
        while u not in ucomplete:
            for _ in dq.q[0]:
                pass
            dq.q.pop(0)
            ucomplete.add(dtags.pop(0))

    if half == 0:
        run(unit_gen(e, typ, half, 1, utok))
        dadd(unit_gen(e, typ, half, 2, utok), 2)
    else:
        run(unit_gen(e, typ, half, 2, utok))
    dadd(unit_gen(e, typ, half, 3, utok), 3)
    e.wait(vm=utok[0])
    stamp(e, SV, 3)
    e("s_barrier")
    stamp(e, SV, 4)

    ftok = {}

    def readA(S, idx):
        st, u = S // 4, S % 4
        slot = st % 4
        buf = V_FR + 12 * (S % 2)
        if idx == 0:
            e.lds(f"ds_read_b128 {v(V_X + 4 * S, 4)}, {v(V_XA + u)} offset:{slot * 4096}")
        k, m = tilesA[idx]
        d = buf + 4 * idx
        if k == 'S':
            rel = 0 if typ == 'X' else (m - stiles[0]) * REG
            lt = e.lds(f"ds_read_b128 {v(d, 4)}, {v(V_SA + u)} offset:{rel + slot * 4096}")
        else:
            fi = ft.index(m)
            for rd in range(2):
                off = (u >> 1) * REG + slot * 4096 + (16 * (u & 1) + 4 * rd) * 128
                lt = e.lds(f"ds_read_b64_tr_b16 {v(d + 2 * rd, 2)}, {v(V_TA + fi)} offset:{off}")
        ftok[('A', S, idx)] = lt

    def readB(S, idx):
        c, u = S // 8, S % 8
        buf = V_FR + 8 * (S % 2)
        for rd in range(2):
            off = (u >> 1) * REG + c * 4096 + (16 * (u & 1) + 4 * rd) * 128
            lt = e.lds(f"ds_read_b64_tr_b16 {v(buf + 4 * idx + 2 * rd, 2)}, {v(V_TB + idx)} offset:{off}")
        ftok[('B', S, idx)] = lt

    def btouch(TB_):
        if half == 0:
            srd(e, SRD_B, P_CRE, 512 * 1024)
            srd(e, SRD_S, P_CIM, 512 * 1024)
        e(f"s_and_b32 {s(S_T3)}, {s(S_MT)}, 7")
        e(f"s_lshl_b32 {s(S_T3)}, {s(S_T3)}, 10")
        e(f"s_add_u32 {s(S_T3)}, {s(S_T3)}, {s(S_B0)}")
        if half == 1:
            e(f"v_min_u32 {v(TB_)}, 55, v0")
            e(f"v_lshlrev_b32 {v(TB_)}, 13, {v(TB_)}")
            tok['bt'] = e.vm(f"buffer_load_dword {v(TB_ + 1)}, {v(TB_)}, {s(SRD_B, 4)}, {s(S_T3)} offen")
        else:
            e(f"v_and_b32 {v(TB_)}, 7, v0")
            e(f"v_lshlrev_b32 {v(TB_)}, 13, {v(TB_)}")
            e(f"v_bfe_u32 {v(TB_ + 1)}, v0, 3, 1")
            e(f"v_lshl_add_u32 {v(TB_)}, {v(TB_ + 1)}, 7, {v(TB_)}")
            e.vm(f"buffer_load_dword {v(TB_ + 1)}, {v(TB_)}, {s(SRD_B, 4)}, {s(S_T3)} offen")
            tok['bt'] = e.vm(f"buffer_load_dword {v(TB_ + 2)}, {v(TB_)}, {s(SRD_S, 4)}, {s(S_T3)} offen")

    for idx in range(len(tilesA)):
        readA(0, idx)
    for S in range(32):
        st, u = S // 4, S % 4
        if S == S_JOBS:
            need_unit('small')
            if half == 0:
                side.add(job_params())
            side.add(job_gate())
        if u == 3:
            need_unit(st + 1)
            if st == 5:
                while 'xfree1' not in tok:
                    side.pump(1)
            if st == 7:
                side.drain()
            e.wait(vm=utok[st + 1], lg=e.lg_seq - 1)
            if not FINE:
                stamp(e, SV, 6 + 2 * st)
            e("s_barrier")
            if not FINE or st == 7:
                stamp(e, SV, 7 + 2 * st if not FINE else 5)
            dadd(unit_gen(e, typ, half, st + 4, utok), st + 4)
            if st == 0:
                dadd(small_gen(), 'small')
        buf = V_FR + 12 * (S % 2)
        for idx, (k, m) in enumerate(tilesA):
            e.wait(lg=ftok[('A', S, idx)])
            if k == 'S':
                mfma(e, ACC[idx], V_X + 4 * S, buf + 4 * idx, S == 0)
            else:
                mfma(e, ACC[idx], buf + 4 * idx, V_X + 4 * S, S == 0)
            if S < 31:
                readA(S + 1, idx)
            elif idx < 2:
                readB(0, idx)
            if idx == 0 or len(dq.q) > 1 or (half == 0 and u == 3):
                dpump()
            if half == 0 and len(dq.q) > 1:
                dpump()
            side.pump(JR0 if half == 0 else JR1)
        if S == S_BTA:
            need_unit(7)
            btouch(1)
        if S == 8 and half == 0:
            lab = e.newlabel("epl_skip")
            e(f"s_cmp_lg_u32 {s(S_W)}, 0")
            e(f"s_cbranch_scc1 {lab}")
            e(f"global_load_dword {v(PP + 2)}, {v(PP + 1)}, {s(P_DBG, 2)} sc1")
            e.label(lab)
            tok['ep_seq'] = e.vm_seq
        if S == 18 and half == 0:
            lab = e.newlabel("ep_skip")
            lp = e.newlabel("ep_poll")
            lo = e.newlabel("ep_ok")
            e(f"s_cmp_lg_u32 {s(S_W)}, 0")
            e(f"s_cbranch_scc1 {lab}")
            e(f"s_mov_b32 {s(S_SPIN)}, 0")
            e(f"s_waitcnt vmcnt({min(63, e.vm_seq - tok['ep_seq'])})")
            e.label(lp)
            e(f"v_cmp_ne_u32 vcc, 0, {v(PP + 2)}")
            e(f"s_cbranch_vccnz {lo}")
            e("s_sleep 2")
            e(f"global_load_dword {v(PP + 2)}, {v(PP + 1)}, {s(P_DBG, 2)} sc1")
            e("s_waitcnt vmcnt(0)")
            spin_tail(e, lp)
            e.label(lo)
            e(f"v_mov_b32 {v(PP)}, {L_MISC}")
            e(f"ds_write_b32 {v(PP)}, {v(PP + 2)}")
            e("s_waitcnt lgkmcnt(0)")
            e.label(lab)
        if S == 20:
            e(f"v_mov_b32 {v(PP + 4)}, {L_MISC}")
            tok['epl'] = e.lds(f"ds_read_b32 {v(PP + 4)}, {v(PP + 4)}")
        if S == 21:
            e.wait(lg=tok['epl'])
            e(f"v_readfirstlane_b32 {s(S_EPOCH)}, {v(PP + 4)}")

    TMP = 40
    TS = 1
    SC = 10
    pa = 20
    ns = len(stiles)
    if half == 0:
        GR = ACC[2] if not STAMPS else V_X + 64
        GC = TMP
        FT = V_X + 64
        resv = set(range(16, 24))
    else:
        GR = V_X + 48
        GC = V_X + 64
        FT = V_X + 48
        resv = set(range(12, 24))
    if not stiles:
        resv = set()

    def job_pass1():
        e(f"v_and_b32 {v(pa)}, 31, v0"); yield
        e(f"v_mul_u32_u24 {v(pa)}, 48, {v(pa)}"); yield
        e(f"v_add_u32 {v(pa)}, {L_PAR}, {v(pa)}"); yield
        for j, m in enumerate(stiles):
            lt = e.lds(f"ds_read_b64 {v(TMP + 2 * j, 2)}, {v(pa)} offset:{m * PARS}"); yield
        e(f"v_lshlrev_b32 {v(TS)}, 2, v0"); yield
        e(f"s_lshl_b32 {s(S_T0)}, {s(S_W)}, 8")
        e(f"s_add_u32 {s(S_T0)}, {s(S_T0)}, {L_SEX}")
        e(f"v_add_u32 {v(TS)}, {s(S_T0)}, {v(TS)}"); yield
        e(f"v_mov_b32 {v(TS + 1)}, 0"); yield
        for j, m in enumerate(stiles):
            e.lds(f"ds_write_b32 {v(TS)}, {v(TS + 1)} offset:{m * 2048}"); yield
        e.nop(4)
        e.wait(lg=lt)
        for u in range(1, 16):
            dst = u % 2
            for j in range(ns):
                src_ = ACC[j] if u == 1 else SC + 2 * j + (u + 1) % 2
                e(f"v_fma_f32 {v(SC + 2 * j + dst)}, {v(TMP + 2 * j)}, {v(src_)}, {v(ACC[j] + u)}"); yield
            if ns == 1:
                e.nop(1)
            for j in range(ns):
                src_ = ACC[j] if u == 1 else SC + 2 * j + (u + 1) % 2
                e(f"v_fmac_f32_dpp {v(SC + 2 * j + dst)}, {v(src_)}, {v(TMP + 2 * j + 1)} {DPP_X1}"); yield
        for j, m in enumerate(stiles):
            e.lds(f"ds_write_b32 {v(TS)}, {v(SC + 2 * j + 1)} offset:{m * 2048 + 1024}"); yield
        e(f"s_add_u32 {s(S_T0)}, {s(S_W)}, {stiles[0]}")
        e(f"s_mul_i32 {s(S_T1)}, {s(S_T0)}, {PARS}")
        e(f"v_add_u32 {v(TS + 2)}, {s(S_T1)}, {v(pa)}")
        e(f"s_lshl_b32 {s(S_T1)}, {s(S_T0)}, 11")
        e(f"s_add_u32 {s(S_T1)}, {s(S_T1)}, {L_SEX}")
        e(f"v_and_b32 {v(TS + 1)}, 31, v0")
        e(f"v_lshlrev_b32 {v(TS + 3)}, 3, {v(TS + 1)}")
        e(f"v_lshl_add_u32 {v(TS + 1)}, {v(TS + 1)}, 2, {s(S_T1)}"); yield

    def blk_publish():
        lab = e.newlabel("pub_skip")
        e(f"s_cmp_ge_u32 {s(S_W)}, {ns}")
        e(f"s_cbranch_scc1 {lab}")
        e(f"ds_read_b64 {v(SC, 2)}, {v(TS + 2)} offset:8")
        for q in range(8):
            e(f"ds_read_b32 {v(SC + 2 + q)}, {v(TS + 1)} offset:{1024 + q * 128}")
        e(f"s_add_u32 {s(S_T0)}, {s(S_PUB)}, 4096")
        e("s_waitcnt lgkmcnt(0)")
        for q in range(1, 8):
            e(f"v_fmac_f32 {v(SC + 2 + q)}, {v(SC)}, {v(SC + 1 + q)}")
            e.nop(1)
            e(f"v_fmac_f32_dpp {v(SC + 2 + q)}, {v(SC + 1 + q)}, {v(SC + 1)} {DPP_X1}")
        e(f"v_mov_b32 {v(SC + 1)}, {s(S_EPOCH)}")
        e(f"v_mov_b32 {v(SC)}, {v(SC + 9)}")
        e("s_mov_b32 exec_hi, 0")
        e(f"buffer_store_dwordx2 {v(SC, 2)}, {v(TS + 3)}, {s(SRD_WS, 4)}, {s(S_T0)} offen sc1")
        e("s_mov_b64 exec, -1")
        e.label(lab)
        e(f"v_lshrrev_b32 {v(SC + 2)}, 5, v0")
        e(f"v_sub_u32 {v(SC + 2)}, 1, {v(SC + 2)}")
        e(f"v_lshl_add_u32 {v(TS + 3)}, {v(SC + 2)}, 8, {v(TS + 3)}")

    def gr_issue(lend):
        for t in range(8):
            e(f"buffer_load_dwordx2 {v(GR + 2 * t, 2)}, {v(TS + 3)}, {s(SRD_WS, 4)}, {s(S_PUB)} offen offset:{3584 - 512 * t} sc1")
            if t < 7:
                e(f"s_cmp_eq_u32 {s(S_T1)}, {t + 1}")
                e(f"s_cbranch_scc1 {lend}")

    def blk_grload():
        lab = e.newlabel("grl_skip")
        e(f"s_cmp_ge_u32 {s(S_W)}, {ns}")
        e(f"s_cbranch_scc1 {lab}")
        e(f"s_cmp_eq_u32 {s(S_I)}, 0")
        e(f"s_cbranch_scc1 {lab}")
        e(f"s_add_u32 {s(S_T1)}, {s(S_I)}, 1")
        e(f"s_lshr_b32 {s(S_T1)}, {s(S_T1)}, 1")
        gr_issue(lab)
        e.label(lab)
        tok['gr_seq'] = e.vm_seq

    def blk_carry():
        lab = e.newlabel("car_skip")
        e(f"s_cmp_ge_u32 {s(S_W)}, {ns}")
        e(f"s_cbranch_scc1 {lab}")
        e(f"s_cmp_eq_u32 {s(S_I)}, 0")
        e(f"s_cbranch_scc1 {lab}")
        e(f"ds_read_b128 {v(GC, 4)}, {v(TS + 2)} offset:16")
        e(f"s_add_u32 {s(S_T1)}, {s(S_I)}, 1")
        e(f"s_lshr_b32 {s(S_T1)}, {s(S_T1)}, 1")
        e(f"s_bitcmp1_b32 {s(S_I)}, 0")
        e(f"s_cselect_b32 {s(S_M0 + 1)}, 0, -1")
        e(f"s_mov_b32 {s(S_M0)}, -1")
        e(f"s_mov_b32 {s(S_SPIN)}, 0")
        e(f"s_waitcnt vmcnt({min(63, e.vm_seq - tok['gr_seq'])})")
        lp, lchk, lok, lre = (e.newlabel(x) for x in ("car_poll", "car_chk", "car_ok", "car_re"))
        e.label(lp)
        e(f"s_mov_b64 {s(S_M1, 2)}, 0")
        for t in range(8):
            e(f"v_cmp_ne_u32 vcc, {s(S_EPOCH)}, {v(GR + 2 * t + 1)}")
            if t < 7:
                e(f"s_cmp_eq_u32 {s(S_T1)}, {t + 1}")
                e(f"s_cbranch_scc1 {lchk}")
                e(f"s_or_b64 {s(S_M1, 2)}, {s(S_M1, 2)}, vcc")
        e.label(lchk)
        e(f"s_and_b64 vcc, vcc, {s(S_M0, 2)}")
        e(f"s_or_b64 {s(S_M1, 2)}, {s(S_M1, 2)}, vcc")
        e(f"s_cbranch_scc0 {lok}")
        e(f"s_add_u32 {s(S_SPIN)}, {s(S_SPIN)}, 1")
        e(f"s_cmp_ge_u32 {s(S_SPIN)}, 0x4000")
        e(f"s_cbranch_scc1 {lok}")
        e("s_sleep 1")
        gr_issue(lre)
        e.label(lre)
        e("s_waitcnt vmcnt(0)")
        e(f"s_branch {lp}")
        e.label(lok)
        e("s_waitcnt lgkmcnt(0)")
        ACCU = GC + 4
        e(f"v_mov_b32 {v(ACCU)}, 0")
        for t in range(7, -1, -1):
            ls = e.newlabel("hs")
            e(f"s_cmp_le_u32 {s(S_T1)}, {t}")
            e(f"s_cbranch_scc1 {ls}")
            e(f"s_cmp_eq_u32 {s(S_T1)}, {t + 1}")
            e(f"s_cselect_b64 vcc, {s(S_M0, 2)}, -1")
            e(f"v_cndmask_b32 {v(GR + 2 * t)}, 0, {v(GR + 2 * t)}, vcc")
            e(f"v_fmac_f32 {v(GR + 2 * t)}, {v(GC + 2)}, {v(ACCU)}")
            e(f"v_fmac_f32_dpp {v(GR + 2 * t)}, {v(ACCU)}, {v(GC + 3)} {DPP_X1}")
            e(f"v_mov_b32 {v(ACCU)}, {v(GR + 2 * t)}")
            e.label(ls)
        e.nop(1)
        e(f"v_mul_f32 {v(ACCU + 1)}, {v(GC)}, {v(ACCU)}")
        e(f"v_fmac_f32_dpp {v(ACCU + 1)}, {v(ACCU)}, {v(GC + 1)} {DPP_X1}")
        e(f"v_mov_b32 {v(ACCU + 2)}, 0")
        e.nop(1)
        e(f"v_permlane32_swap_b32 {v(ACCU + 1)}, {v(ACCU + 2)}")
        e.nop(1)
        e(f"v_add_f32 {v(ACCU)}, {v(ACCU)}, {v(ACCU + 2)}")
        e("s_mov_b32 exec_hi, 0")
        e(f"ds_write_b32 {v(TS + 1)}, {v(ACCU)} offset:{7 * 128}")
        e("s_mov_b64 exec, -1")
        e("s_waitcnt lgkmcnt(0)")
        e.label(lab)

    def job_final():
        PR = FT
        EV = FT + 4 * ns
        CC = SC + 2
        OT = FT + 12 * ns
        for j, m in enumerate(stiles):
            e.lds(f"ds_read_b128 {v(PR + 4 * j, 4)}, {v(pa)} offset:{m * PARS}"); yield
            for q in range(8):
                lt = e.lds(f"ds_read_b32 {v(EV + 8 * j + q)}, {v(TS)} offset:{m * 2048 + q * 128}")
                if q % 2:
                    yield
        e(f"s_mul_i32 {s(S_LB0)}, {s(S_W)}, 1280")
        e(f"s_add_u32 {s(S_LB0)}, {s(S_LB0)}, {141312 if half == 0 else 155136}")
        e(f"v_and_b32 {v(SC)}, 15, v0"); yield
        e(f"v_mul_u32_u24 {v(SC)}, 80, {v(SC)}"); yield
        e(f"v_lshrrev_b32 {v(SC + 1)}, 5, v0"); yield
        e(f"v_lshl_add_u32 {v(SC)}, {v(SC + 1)}, 5, {v(SC)}"); yield
        e(f"v_add_u32 {v(SC)}, {s(S_LB0)}, {v(SC)}"); yield
        e(f"v_bfe_u32 {v(SC + 2)}, v0, 2, 2"); yield
        e(f"v_lshl_add_u32 {v(SC + 1)}, {v(SC + 2)}, 1, {v(SC + 1)}"); yield
        e(f"v_mul_u32_u24 {v(SC + 1)}, 80, {v(SC + 1)}"); yield
        e(f"v_and_b32 {v(SC + 2)}, 1, v0"); yield
        e(f"v_lshl_add_u32 {v(SC + 1)}, {v(SC + 2)}, 5, {v(SC + 1)}"); yield
        e(f"v_bfe_u32 {v(SC + 2)}, v0, 4, 1"); yield
        e(f"v_lshl_add_u32 {v(SC + 1)}, {v(SC + 2)}, 4, {v(SC + 1)}"); yield
        e(f"v_bfe_u32 {v(SC + 2)}, v0, 1, 1"); yield
        e(f"v_lshl_add_u32 {v(SC + 1)}, {v(SC + 2)}, 3, {v(SC + 1)}"); yield
        e(f"v_add_u32 {v(SC + 1)}, {s(S_LB0)}, {v(SC + 1)}"); yield
        for j, m in enumerate(stiles):
            lc = e.lds(f"ds_read_b64 {v(CC + 2 * j, 2)}, {v(pa)} offset:{m * PARS + 32}"); yield
        e.wait(lg=lt)
        for q in range(1, 8):
            for j in range(ns):
                e(f"v_fmac_f32 {v(EV + 8 * j + q)}, {v(PR + 4 * j + 2)}, {v(EV + 8 * j + q - 1)}"); yield
            if ns == 1:
                e.nop(1)
            for j in range(ns):
                e(f"v_fmac_f32_dpp {v(EV + 8 * j + q)}, {v(EV + 8 * j + q - 1)}, {v(PR + 4 * j + 3)} {DPP_X1}"); yield
        e.wait(lg=lc)
        O = EV

        def post(j, u):
            t_ = OT + 2 * j + (u & 1)
            e(f"v_mul_f32 {v(t_)}, {v(CC + 2 * j)}, {v(ACC[j] + u)}")
            e(f"v_fmac_f32_dpp {v(t_)}, {v(ACC[j] + u)}, {v(CC + 2 * j + 1)} {DPP_X1}")
            if u & 1:
                e(f"v_cvt_pk_bf16_f32 {v(O + 8 * j + u // 2)}, {v(OT + 2 * j)}, {v(OT + 2 * j + 1)}")
        for u in range(16):
            for j in range(ns):
                prev = EV + 8 * j + 7 if u == 0 else ACC[j] + u - 1
                e(f"v_fmac_f32 {v(ACC[j] + u)}, {v(PR + 4 * j)}, {v(prev)}"); yield
            if u >= 2:
                for j in range(ns):
                    post(j, u - 2); yield
            elif ns == 1:
                e.nop(1)
            for j in range(ns):
                prev = EV + 8 * j + 7 if u == 0 else ACC[j] + u - 1
                e(f"v_fmac_f32_dpp {v(ACC[j] + u)}, {v(prev)}, {v(PR + 4 * j + 1)} {DPP_X1}"); yield
        for u in (14, 15):
            for j in range(ns):
                post(j, u); yield
        for j, m in enumerate(stiles):
            R = ACC[j]
            for kap in range(2):
                msk = "0x0000ffff" if kap == 0 else "0xffff0000"
                e(f"s_mov_b32 exec_lo, {msk}")
                e(f"s_mov_b32 exec_hi, {msk}")
                e.lds(f"ds_write_b128 {v(SC)}, {v(O + 8 * j, 4)}")
                e.lds(f"ds_write_b128 {v(SC)}, {v(O + 8 * j + 4, 4)} offset:16")
                e("s_mov_b64 exec, -1"); yield
                for rd in range(2):
                    lt = e.lds(f"ds_read_b64_tr_b16 {v(R + 4 * kap + 2 * rd, 2)}, {v(SC + 1)} offset:{8 * rd * 80}"); yield
            tok[('tr', j)] = lt
            if j > 0:
                yield from tr_store(j - 1)
        yield from tr_store(ns - 1)
        tok['final_done'] = True

    def tr_store(j):
        m = stiles[j]
        R = ACC[j]
        e.wait(lg=tok[('tr', j)])
        e(f"s_add_u32 {s(S_T0)}, {s(S_A2S)}, {m * 2048}")
        e.vm(f"buffer_store_dwordx4 {v(R, 4)}, {v(V_ST)}, {s(SRD_WS, 4)}, {s(S_T0)} offen sc1")
        e.last_store = e.vm(f"buffer_store_dwordx4 {v(R + 4, 4)}, {v(V_ST)}, {s(SRD_WS, 4)}, {s(S_T0)} offen offset:1024 sc1"); yield

    VD0, VD1, VR0, VR1 = 6, 7, 8, 9
    st_ = dict(cp=0, S=-1, avail=set(), next=0, inflight=[], freed={}, setup=False, lim=24)
    if half == 1:
        ntask = 28
        slot_tag = {0: 'p0', 1: 'p0', 2: 'p1', 3: 'p1', 4: 'p2', 5: 'p2', 6: 'done', 7: 'done',
                    8: 'done', 9: 'done', 10: 'done', 11: 'done'}
    else:
        ntask = 4
        slot_tag = {1: 'p1', 2: 'done'}
    slot_busy = {}

    def stage_setup():
        st_['setup'] = True
        e(f"v_lshrrev_b32 {v(VD0)}, 3, v0")
        if half == 1:
            e(f"v_bfe_u32 {v(VD1)}, v0, 4, 1")
            e(f"v_lshlrev_b32 {v(VD1)}, 2, {v(VD1)}")
            e(f"v_and_b32 {v(VR0)}, 7, v0")
            e(f"v_xor_b32 {v(VD1)}, {v(VD1)}, {v(VR0)}")
            e(f"v_lshlrev_b32 {v(VD1)}, 4, {v(VD1)}")
            e(f"v_lshl_add_u32 {v(VD0)}, {v(VD0)}, 10, {v(VD1)}")
            e(f"v_add_u32 {v(VD1)}, {8192 - 1024}, {v(VD0)}")
            e(f"v_bfe_u32 {v(VR1)}, v0, 2, 2")
            e(f"v_lshrrev_b32 {v(VR0)}, 5, v0")
            e(f"v_lshl_add_u32 {v(VR0)}, {v(VR0)}, 2, {v(VR1)}")
            e(f"v_lshlrev_b32 {v(VR0)}, 7, {v(VR0)}")
            e(f"v_lshrrev_b32 {v(VR1)}, 1, {v(VR1)}")
            e(f"v_lshl_add_u32 {v(VR0)}, {v(VR1)}, 6, {v(VR0)}")
            e(f"v_bfe_u32 {v(VR1)}, v0, 4, 1")
            e(f"v_lshl_add_u32 {v(VR0)}, {v(VR1)}, 5, {v(VR0)}")
            e(f"v_and_b32 {v(VR1)}, 3, v0")
            e(f"v_lshl_add_u32 {v(VR0)}, {v(VR1)}, 3, {v(VR0)}")
            e(f"v_add_u32 {v(VR0)}, {s(S_LBS)}, {v(VR0)}")
            e(f"v_xor_b32 {v(VR1)}, 64, {v(VR0)}")
        else:
            e(f"v_lshrrev_b32 {v(VD1)}, 4, v0")
            e(f"v_and_b32 {v(VR0)}, 7, v0")
            e(f"v_xor_b32 {v(VD1)}, {v(VD1)}, {v(VR0)}")
            e(f"v_lshlrev_b32 {v(VD1)}, 4, {v(VD1)}")
            e(f"v_lshl_add_u32 {v(VD0)}, {v(VD0)}, 10, {v(VD1)}")
            e(f"v_xor_b32 {v(VD1)}, 64, {v(VD0)}")
            e(f"v_add_u32 {v(VD1)}, {8192 - 1024}, {v(VD1)}")
            e(f"v_and_b32 {v(VR0)}, 31, v0")
            e(f"v_lshlrev_b32 {v(VR0)}, 7, {v(VR0)}")
            e(f"v_bfe_u32 {v(VR1)}, v0, 1, 3")
            e(f"v_lshl_add_u32 {v(VR0)}, {v(VR1)}, 4, {v(VR0)}")
            e(f"v_lshrrev_b32 {v(VR1)}, 5, v0")
            e(f"v_lshl_add_u32 {v(VR0)}, {v(VR1)}, 12, {v(VR0)}")
            e(f"v_add_u32 {v(VR0)}, {s(S_LBS)}, {v(VR0)}")

    def slot_off(sl):
        if half == 1:
            return sl * 2048
        return {0: 4096, 1: 0, 2: 8192}[sl]

    def stage_dma(task, sl):
        if sl in st_['freed']:
            e.wait(lg=st_['freed'].pop(sl))
        if half == 1:
            if sl < 8:
                e(f"s_add_u32 m0, {s(S_LBS)}, {sl * 2048}")
            else:
                e(f"s_lshl_b32 {s(S_T3)}, {s(S_W)}, 13")
                e(f"s_add_u32 m0, {s(S_T3)}, {L_TOP + (sl - 8) * 2048}")
            e(f"s_add_u32 {s(S_T3)}, {s(S_B0)}, {task * 16384}")
            dma(e, VD0, SRD_B, S_T3)
            t = dma(e, VD1, SRD_B, S_T3, 1024)
        else:
            u_, nu = task // 2, task % 2
            for mat, sr in ((0, SRD_B), (1, SRD_S)):
                e(f"s_add_u32 m0, {s(S_LBS)}, {slot_off(sl) + mat * 4096}")
                e(f"s_add_u32 {s(S_T3)}, {s(S_B0)}, {nu * 32768 + u_ * 128}")
                dma(e, VD0, sr, S_T3)
                dma(e, VD1, sr, S_T3, 1024)
                e(f"s_add_u32 {s(S_T3)}, {s(S_T3)}, {16384 - 2048}")
                dma(e, VD0, sr, S_T3, 2048)
                t = dma(e, VD1, sr, S_T3, 3072)
        slot_busy[sl] = task
        st_['inflight'].append((task, sl, t, st_['cp']))

    def task_regs(task):
        if half == 1:
            return [2 * task, 2 * task + 1]
        u_, nu = task // 2, task % 2
        return [2 * (8 * u_ + k) + nu for k in range(8)]

    def regs_free(task):
        for x in task_regs(task):
            if x > st_['S'] or (x in resv and 'final_done' not in tok):
                return False
        return True

    def stage_xfer(task, sl, t):
        e.wait(vm=t)
        if half == 1:
            for h2 in range(2):
                for rd in range(2):
                    lt = e.lds(f"ds_read_b64_tr_b16 {v(V_X + 8 * task + 4 * h2 + 2 * rd, 2)}, {v(VR0 + h2)} offset:{sl * 2048 + rd * 1024}")
        else:
            u_, nu = task // 2, task % 2
            for k in range(8):
                if k:
                    e(f"v_xor_b32 {v(VR1)}, {16 * k}, {v(VR0)}")
                lt = e.lds(f"ds_read_b128 {v(V_X + 8 * (8 * u_ + k) + 4 * nu, 4)}, {v(VR1 if k else VR0)} offset:{slot_off(sl)}")
        st_['freed'][sl] = lt
        del slot_busy[sl]

    def checkpoint(force=False, maxdma=1):
        st_['cp'] += 1
        if not st_['setup']:
            return
        for it in list(st_['inflight']):
            task, sl, t, cp = it
            resident = half == 1 and task >= 16
            if resident:
                st_['inflight'].remove(it)
                continue
            if (force or st_['cp'] - cp >= BLAT) and regs_free(task):
                stage_xfer(task, sl, t)
                st_['inflight'].remove(it)
                if not force:
                    break
        n = 0
        while st_['next'] < min(ntask, st_.get('lim', 99)) and n < maxdma:
            task = st_['next']
            if half == 1 and task >= 16:
                cand = [task - 16]
            elif half == 1:
                cand = list(range(8))
            else:
                cand = list(slot_tag.keys())
            cand = [c_ for c_ in cand if c_ not in slot_busy and slot_tag[c_] in st_['avail']]
            if not cand:
                break
            stage_dma(task, cand[0])
            st_['next'] += 1
            n += 1

    fidx = [(idx, m) for idx, (k, m) in enumerate(tilesA) if k == 'F']
    deferred = []
    if typ == 'X':
        e(f"s_setprio {1 - half}")
    for S in range(32):
        c, u = S // 8, S % 8
        if S == 1 and stiles:
            if S_BTA >= 0:
                e.wait(vm=tok['bt'])
            side.add(job_pass1())
        if S == 2 and not stiles:
            for idx, m in fidx:
                side.add(ffn_epilogue(e, ACC[idx], TMP, S_A2A, m, deferred))
        if S == 5:
            if stiles:
                side.drain()
            e.wait(lg=e.lg_seq - 1)
            e("s_barrier")
            if stiles:
                blk_publish()
                for idx, m in fidx:
                    side.add(ffn_epilogue(e, ACC[idx], TMP, S_A2A, m, deferred))
        if u == 7 and c < 3:
            need_unit(11 if c == 0 else 9 + c)
            if c == 2 and stiles:
                side.drain()
                stamp(e, SV, 40)
                blk_carry()
                stamp(e, SV, 41)
            e.wait(vm=utok[9 + c], lg=e.lg_seq - 1)
            stamp(e, SV, 30 + 2 * c)
            e("s_barrier")
            stamp(e, SV, 31 + 2 * c)
            if EARLYB:
                st_['avail'].add(f"p{c}")
        if S == 24 and stiles:
            side.add(job_final())
        buf = V_FR + 8 * (S % 2)
        for idx in range(2):
            e.wait(lg=ftok[('B', S, idx)])
            mfma(e, ACC[3 + idx], buf + 4 * idx, V_X + 4 * S, S == 0)
            if S < 31:
                readB(S + 1, idx)
            if idx == 0:
                dpump()
            side.pump(4 if S < 24 else 6)
        st_['S'] = S
        if S == S_BT:
            need_unit(11)
            stage_setup()
            if S_BTA < 0:
                btouch(V_X)
        if S >= S_QUIET and deferred:
            e.vm(deferred.pop(0))
        if S >= S_BS:
            checkpoint()
        if S == max(9, S_QUIET) and half == 0:
            lab = e.newlabel("g_skip")
            e(f"v_lshlrev_b32 {v(SC + 6)}, 2, v0")
            e(f"v_add_u32 {v(SC + 7)}, {L_MISC + 64}, {v(SC + 6)}")
            e(f"s_cmp_lg_u32 {s(S_W)}, 0")
            e(f"s_cbranch_scc1 {lab}")
            e("s_mov_b64 exec, 0xff")
            e(f"ds_read_b32 {v(SC + 7)}, {v(SC + 7)}")
            e("s_waitcnt lgkmcnt(0)")
            e(f"buffer_store_dword {v(SC + 7)}, {v(SC + 6)}, {s(SRD_WS, 4)}, {s(S_GOFF)} offen sc1")
            e("s_mov_b64 exec, -1")
            e.label(lab)
        if S == S_GR and stiles:
            blk_grload()
        if FINE and S % 2 == 1:
            stamp(e, SV, 6 + S // 2)

    stamp(e, SV, 36)
    e.nop(8)
    if not stiles:
        side.drain()
    while deferred:
        e.vm(deferred.pop(0))
    ep = Sched()
    ep.add(ffn_epilogue(e, ACC[3], TMP, S_A2B, 2 * half))
    ep.add(ffn_epilogue(e, ACC[4], TMP, S_A2B, 2 * half + 1))
    side.pump(4)
    e.nop(4)
    cnt = 0
    while not (side.empty() and ep.empty()):
        side.pump(1)
        ep.pump(1)
        cnt += 1
        if cnt % TAILCP == 0 and not ep.empty():
            checkpoint()
    stamp(e, SV, 42)
    e.wait(vm=e.vm_seq - 1, lg=e.lg_seq - 1)
    stamp(e, SV, 43)
    e("s_setprio 0")
    e("s_barrier")
    if half == 0:
        lab = e.newlabel("done_skip")
        e(f"v_mov_b32 v1, {s(S_EPOCH)}")
        e("v_mov_b32 v2, 0")
        e(f"s_cmp_lg_u32 {s(S_W)}, 0")
        e(f"s_cbranch_scc1 {lab}")
        e(f"s_lshl_b32 {s(S_T0)}, {s(S_I)}, 11")
        e(f"s_lshl_b32 {s(S_T1)}, {s(S_COL)}, 7")
        e(f"s_add_u32 {s(S_T0)}, {s(S_T0)}, {s(S_T1)}")
        e(f"s_add_u32 {s(S_T0)}, {s(S_T0)}, {WS_DONE}")
        e("s_mov_b64 exec, 1")
        e(f"buffer_store_dword v1, v2, {s(SRD_WS, 4)}, {s(S_T0)} offen sc1")
        e("s_mov_b64 exec, -1")
        e.label(lab)
    else:
        e.nop(12)
    st_['avail'] |= {'p0', 'p1', 'p2', 'done'}
    if half == 1:
        checkpoint(force=False, maxdma=12)
        for task in range(24, 28):
            stage_dma(task, task - 16)
        ntask = 24
        st_['lim'] = 24
    guard = 0
    while st_['next'] < ntask or st_['inflight']:
        checkpoint(force=False, maxdma=12)
        if st_['inflight']:
            task, sl, t, cp = st_['inflight'][0]
            if not (half == 1 and task >= 16):
                stage_xfer(task, sl, t)
            st_['inflight'].pop(0)
        guard += 1
        assert guard < 200
    stamp(e, SV, 44)
    if STAMPS:
        e(f"v_mov_b32 v15, {v(SV)}")
    e(f"s_branch L_P2_{half}")


def phase2(e, half):
    SV = 15
    e.label(f"L_P2_{half}")
    e.vm_done = e.vm_seq = 0
    e.lg_done = e.lg_seq = 0
    NS = 16 if half == 0 else 28
    YSTART = 6 if half == 0 else 24
    SO = SRD_U
    SRD2 = SRD_G
    srd(e, SO, P_OUT, 2048 * 2048)
    e(f"s_add_u32 {s(SRD2)}, {s(P_WS)}, {KS * 1024}")
    e(f"s_addc_u32 {s(SRD2 + 1)}, {s(P_WS + 1)}, 0")
    e(f"s_and_b32 {s(SRD2 + 1)}, {s(SRD2 + 1)}, 0xffff")
    e(f"s_mov_b32 {s(SRD2 + 2)}, {WS_END - KS * 1024}")
    e(f"s_mov_b32 {s(SRD2 + 3)}, 0x00020000")
    VL = 12
    e(f"v_mov_b32 {v(VL)}, {v(V_ST)}")
    e(f"s_lshr_b32 {s(S_K0)}, {s(S_MT)}, 1")
    e(f"s_lshl_b32 {s(S_K0)}, {s(S_K0)}, 11")
    e(f"s_add_u32 {s(S_K0)}, {s(S_K0)}, {WS_DONE}")
    e("v_and_b32 v1, 15, v0")
    e("v_lshlrev_b32 v1, 7, v1")
    if half == 1:
        e(f"s_lshl_b32 {s(S_T0)}, {s(S_W)}, 13")
        e(f"s_add_u32 {s(S_T0)}, {s(S_T0)}, {L_TOP}")
        e(f"s_sub_u32 {s(S_T0)}, {s(S_T0)}, {s(S_LBS)}")
        e(f"v_add_u32 v10, {s(S_T0)}, v8")
        e(f"v_add_u32 v11, {s(S_T0)}, v9")

    def poll(mask_expr_lo):
        lp, lo = e.newlabel("pd"), e.newlabel("pd_ok")
        e(f"s_mov_b32 {s(S_SPIN)}, 0")
        e.label(lp)
        e(f"buffer_load_dword v2, v1, {s(SRD_WS, 4)}, {s(S_K0)} offen sc1")
        e("s_waitcnt vmcnt(0)")
        e(f"v_cmp_ne_u32 vcc, {s(S_EPOCH)}, v2")
        e(f"s_and_b32 {s(S_T0)}, vcc_lo, {s(S_M0)}")
        e(f"s_cbranch_scc0 {lo}")
        e("s_sleep 1")
        spin_tail(e, lp)
        e.label(lo)
        e.vm_done = e.vm_seq
    e(f"s_lshl_b32 {s(S_T1)}, {s(S_W)}, 2")
    e(f"s_lshl_b32 {s(S_M0)}, 7, {s(S_T1)}")
    e("s_mov_b64 exec, 0xffff")
    poll(None)
    e("s_mov_b64 exec, -1")
    e("s_waitcnt lgkmcnt(0)")
    stamp(e, SV, 45)
    AC = 64
    free = [24 + 8 * k for k in range(5)]
    aslot, atok = {}, {}
    pending = list(range(NS))
    state = dict(y=False)

    def ld2(dst, j):
        hi, lo_ = (j // 4) * 4096, (j % 4) * 1024
        b = S_A0
        if hi:
            e(f"s_add_u32 {s(S_T0)}, {s(S_A0)}, {hi}")
            b = S_T0
        o = f" offset:{lo_}" if lo_ else ""
        e.vm(f"buffer_load_dwordx4 {v(dst, 4)}, {v(VL)}, {s(SRD_WS, 4)}, {s(b)} offen{o} sc1")
        return e.vm(f"buffer_load_dwordx4 {v(dst + 4, 4)}, {v(VL)}, {s(SRD2, 4)}, {s(b)} offen{o} sc1")

    def issue_next():
        while pending and free:
            j = pending[0]
            if j >= YSTART and not state['y']:
                return
            pending.pop(0)
            r = free.pop(0)
            aslot[j] = r
            atok[j] = ld2(r, j)

    def ycheck_issue():
        e("s_mov_b64 exec, 0xffff")
        state['ytok'] = e.vm(f"buffer_load_dword v2, v1, {s(SRD_WS, 4)}, {s(S_K0)} offen sc1")
        e("s_mov_b64 exec, -1")

    def ycheck():
        lp, lo = e.newlabel("py"), e.newlabel("py_ok")
        e.wait(vm=state['ytok'])
        e(f"s_mov_b32 {s(S_SPIN)}, 0")
        e("s_mov_b64 exec, 0xffff")
        e.label(lp)
        e(f"v_cmp_ne_u32 vcc, {s(S_EPOCH)}, v2")
        e(f"s_cbranch_vccz {lo}")
        e("s_sleep 1")
        e(f"buffer_load_dword v2, v1, {s(SRD_WS, 4)}, {s(S_K0)} offen sc1")
        e("s_waitcnt vmcnt(0)")
        spin_tail(e, lp)
        e.label(lo)
        e("s_mov_b64 exec, -1")
        state['y'] = True

    issue_next()
    e(f"s_lshl_b32 {s(S_T0)}, {s(S_W)}, 2")
    e(f"s_add_u32 {s(S_T0)}, {s(S_T0)}, {32 * half}")
    e("v_lshrrev_b32 v3, 4, v0")
    e(f"v_add_u32 v3, {s(S_T0)}, v3")
    e("v_and_b32 v4, 15, v0")
    e(f"s_lshl_b32 {s(S_T1)}, {s(S_NT)}, 6")
    e(f"v_lshl_add_u32 v4, v4, 2, {s(S_T1)}")
    e("v_lshlrev_b32 v4, 1, v4")
    e(f"s_lshl_b32 {s(S_T1)}, {s(S_MT)}, 6")
    e(f"v_add_u32 v5, {s(S_T1)}, v3")
    e("v_lshl_add_u32 v5, v5, 10, v4")
    e("v_lshlrev_b32 v3, 2, v3")
    e(f"s_lshl_b32 {s(S_GOFF)}, {s(S_MT)}, 8")
    e(f"s_add_u32 {s(S_GOFF)}, {s(S_GOFF)}, {WS_G}")
    YI = 2 if half == 0 else 12
    YC = 5 if half == 0 else 15
    btok = {}

    def bread(j):
        r = j - 16
        for h2 in range(2):
            for rd in range(2):
                areg = (8 + h2) if r < 8 else (10 + h2)
                off = (r % 8) * 2048 + rd * 1024
                btok[j] = e.lds(f"ds_read_b64_tr_b16 {v(bbuf[j] + 4 * h2 + 2 * rd, 2)}, {v(areg)} offset:{off}")
    bbuf = {}
    for j in range(NS):
        if j == YI:
            ycheck_issue()
        if j == YC:
            ycheck()
            issue_next()
        if j == NS - 4:
            e.vm(f"buffer_load_dword v13, v3, {s(SRD_WS, 4)}, {s(S_GOFF)} offen sc1")
            e.vm(f"buffer_load_dword v14, v3, {s(SRD_WS, 4)}, {s(S_GOFF)} offen offset:64 sc1")
            e.vm(f"global_load_dwordx2 v[6:7], v4, {s(P_DSK, 2)}")
            e.vm(f"buffer_load_dwordx2 v[16:17], v5, {s(SRD_X, 4)}, 0 offen")
            e(f"s_mov_b32 {s(S_T0)}, {16 * 1024}")
            e.vm(f"buffer_load_dwordx2 v[18:19], v5, {s(SRD_X, 4)}, {s(S_T0)} offen")
        if half == 1 and j + 1 >= 16 and j + 1 < NS:
            bbuf[j + 1] = V_X + 8 * ((j + 1) % 2)
            bread(j + 1)
        a = aslot[j]
        b = V_X + 8 * j if j < 16 else bbuf[j]
        e.wait(vm=atok[j] - 1, lg=btok.get(j))
        mfma(e, AC, b, a, j == 0)
        mfma(e, AC + 16, b + 4, a, j == 0)
        e.wait(vm=atok[j])
        mfma(e, AC + 32, b, a + 4, j == 0)
        mfma(e, AC + 48, b + 4, a + 4, j == 0)
        free.append(a)
        if 2 <= j < 16:
            free.append(b)
        issue_next()
    stamp(e, SV, 46)
    e("v_and_b32 v1, 31, v0")
    e("v_lshrrev_b32 v2, 5, v0")
    e("v_and_b32 v8, 7, v0")
    e("v_xor_b32 v2, v2, v8")
    e("v_lshlrev_b32 v2, 4, v2")
    e("v_lshl_add_u32 v1, v1, 8, v2")
    e(f"v_add_u32 v8, {s(S_LBS)}, v1")
    for a in range(1, 4):
        e(f"v_xor_b32 {v(8 + a)}, {32 * a}, v8")
    e.nop(4)
    for mi in range(2):
        for ni in range(2):
            A = AC + 32 * mi + 16 * ni
            for a in range(4):
                e.lds(f"ds_write_b128 {v(8 + a)}, {v(A + 4 * a, 4)} offset:{mi * 8192 + ni * 128}")
    e("v_lshrrev_b32 v1, 4, v0")
    e("v_and_b32 v2, 15, v0")
    e("v_xor_b32 v2, v2, v1")
    e("v_lshlrev_b32 v2, 4, v2")
    e("v_lshl_add_u32 v1, v1, 8, v2")
    e(f"s_lshl_b32 {s(S_T0)}, {s(S_WV)}, 11")
    e(f"v_add_u32 v1, {s(S_T0)}, v1")
    e("v_xor_b32 v2, 64, v1")
    e("v_add_u32 v2, 1024, v2")
    e(f"v_add_u32 v3, {4 * REG}, v1")
    e(f"v_add_u32 v4, {4 * REG}, v2")
    e("v_lshlrev_b32 v5, 1, v5")
    e("s_waitcnt vmcnt(0)")
    SK, DS, FS = 24, 32, 40
    for k in range(2):
        e(f"v_lshlrev_b32 {v(DS + 2 * k)}, 16, {v(6 + k)}")
        e(f"v_and_b32 {v(DS + 2 * k + 1)}, 0xffff0000, {v(6 + k)}")
    for p in range(2):
        for k in range(2):
            e(f"v_lshlrev_b32 {v(SK + 4 * p + 2 * k)}, 16, {v(16 + 2 * p + k)}")
            e(f"v_and_b32 {v(SK + 4 * p + 2 * k + 1)}, 0xffff0000, {v(16 + 2 * p + k)}")
        for k in range(4):
            e(f"v_mul_f32 {v(SK + 4 * p + k)}, {v(SK + 4 * p + k)}, {v(DS + k)}")
        for k in range(2):
            e(f"v_cvt_pk_bf16_f32 v36, {v(SK + 4 * p + 2 * k)}, {v(SK + 4 * p + 2 * k + 1)}")
            e(f"v_lshlrev_b32 {v(SK + 4 * p + 2 * k)}, 16, v36")
            e(f"v_and_b32 {v(SK + 4 * p + 2 * k + 1)}, 0xffff0000, v36")
        e(f"v_sub_f32 {v(20 + p)}, 1.0, {v(13 + p)}")
        e(f"v_cvt_pk_bf16_f32 {v(20 + p)}, {v(20 + p)}, {v(20 + p)}")
        e(f"v_lshlrev_b32 {v(20 + p)}, 16, {v(20 + p)}")
    e.wait_all_lg()
    stamp(e, SV, 47)
    e("s_barrier")
    stamp(e, SV, 48)
    toks = []
    for q in range(8):
        for p in range(2):
            ar = (1 + p) if q < 4 else (3 + p)
            toks.append(e.lds(f"ds_read_b128 {v(AC + 8 * q + 4 * p, 4)}, {v(ar)} offset:{(q % 4) * REG}"))
    for q in range(4):
        e.wait(lg=toks[2 * q + 1])
        for k in range(8):
            e(f"v_add_f32 {v(SK + k)}, {v(SK + k)}, {v(AC + 8 * q + k)}")
    for k in range(8):
        e(f"v_mul_f32 {v(SK + k)}, {v(13 + k // 4)}, {v(SK + k)}")
    e.wait(lg=toks[11])
    for k in range(8):
        e(f"v_add_f32 {v(FS + k)}, {v(AC + 32 + k)}, {v(AC + 40 + k)}")
    e.wait(lg=toks[15])
    for k in range(8):
        e(f"v_add_f32 {v(AC + 48 + k)}, {v(AC + 48 + k)}, {v(AC + 56 + k)}")
    for k in range(8):
        e(f"v_add_f32 {v(FS + k)}, {v(FS + k)}, {v(AC + 48 + k)}")
    for k in range(8):
        e(f"v_fmac_f32 {v(SK + k)}, {v(20 + k // 4)}, {v(FS + k)}")
    e.vm(f"buffer_store_dwordx4 {v(SK, 4)}, v5, {s(SO, 4)}, 0 offen{OUTP}")
    e(f"s_mov_b32 {s(S_T0)}, {16 * 2048}")
    e.vm(f"buffer_store_dwordx4 {v(SK + 4, 4)}, v5, {s(SO, 4)}, {s(S_T0)} offen{OUTP}")
    if STAMPS:
        stamp(e, SV, 49)
        e("s_waitcnt vmcnt(0)")
        stamp(e, SV, 50)
        stamp(e, SV, 61, True)
        e("s_lshl_b32 s96, s2, 3")
        e(f"s_add_u32 s96, s96, {s(S_WV)}")
        e("s_lshl_b32 s96, s96, 8")
        e(f"s_add_u32 s96, s96, {WS_STAMP}")
        e("v_lshl_add_u32 v1, v0, 2, s96")
        e(f"global_store_dword v1, {v(SV)}, {s(P_WS, 2)}")
        if STMAP:
            lab = e.newlabel("dbgw")
            e(f"s_cmp_lg_u32 s2, {DBGWG}")
            e(f"s_cbranch_scc1 {lab}")
            e(f"s_cmp_lg_u32 {s(S_WV)}, {DBGWV}")
            e(f"s_cbranch_scc1 {lab}")
            e("v_lshlrev_b32 v1, 2, v0")
            e(f"v_subrev_u32 {v(SV)}, s98, {v(SV)}")
            e(f"global_store_dword v1, {v(SV)}, {s(P_DBG, 2)}")
            e.label(lab)
    if DBGT and half == 1:
        lab = e.newlabel("dbgt")
        e(f"s_cmp_lg_u32 {s(S_W)}, 0")
        e(f"s_cbranch_scc1 {lab}")
        e("s_waitcnt vmcnt(0)")
        e("s_memrealtime s[96:97]")
        e("s_memtime s[12:13]")
        e("s_waitcnt lgkmcnt(0)")
        e("s_not_b32 s100, s100")
        e("s_sub_u32 s12, s12, s98")
        e("v_mov_b32 v1, 8")
        e("v_mov_b32 v2, s100")
        e("v_mov_b32 v3, s96")
        e("v_mov_b32 v4, s12")
        e("s_mov_b64 exec, 1")
        e(f"global_atomic_umax v1, v2, {s(P_DBG, 2)} sc1")
        e(f"global_atomic_umax v1, v3, {s(P_DBG, 2)} offset:4 sc1")
        e(f"global_atomic_umax v1, v4, {s(P_DBG, 2)} offset:8 sc1")
        e.label(lab)
    e("s_endpgm")


def gen():
    e = Path()
    prologue_common(e)
    out = [e]
    for typ, half, lab in (('X', 0, None), ('X', 1, 'L_X1'), ('Y', 0, 'L_Y0'), ('Y', 1, 'L_Y1')):
        p = e.fork()
        if lab:
            p.label(lab)
        path(p, typ, half)
        out.append(p)
    for half in range(2):
        z = Path()
        phase2(z, half)
        out.append(z)
    z = Path()
    z.label("L_exit")
    z("s_endpgm")
    z.label("L_code_end")
    out.append(z)
    return "".join(x.text() for x in out)


HERE = os.path.dirname(os.path.abspath(__file__))
HEADER = open(os.path.join(HERE, "..", "cdna_kernels", NAME + ".s.ref")).read()


def main():
    hdr = []
    for line in HEADER.splitlines():
        if line.startswith(";") and "@launch" not in line:
            hdr.append(line)
        elif not line.startswith(";"):
            break
    out = "\n".join(hdr) + "\n"
    out += f"; @launch grid=(256,1,1) block=(512,1,1) lds={LDS_BYTES}\n"
    out += '.amdgcn_target "amdgcn-amd-amdhsa--gfx950"\n.text\n'
    name = NAME + "_kernel"
    out += f".globl {name}\n.p2align 8\n.type {name},@function\n{name}:\n" + gen()
    out += '.section .rodata,"a"\n'
    out += f""".p2align 6
.amdhsa_kernel {name}
  .amdhsa_next_free_vgpr 256
  .amdhsa_next_free_sgpr 102
  .amdhsa_accum_offset 256
  .amdhsa_group_segment_fixed_size 0
  .amdhsa_kernarg_size 136
  .amdhsa_user_sgpr_count 2
  .amdhsa_user_sgpr_kernarg_segment_ptr 1
  .amdhsa_system_sgpr_workgroup_id_x 1
  .amdhsa_float_denorm_mode_32 3
  .amdhsa_float_denorm_mode_16_64 3
.end_amdhsa_kernel
"""
    dst = sys.argv[1] if len(sys.argv) > 1 else os.path.join(HERE, "..", "cdna_kernels", NAME + ".s")
    open(dst, "w").write(out)
    print("wrote", dst, len(out), "bytes")


if __name__ == "__main__":
    main()
```

```python
import sys, os
sys.path.insert(0, os.path.dirname(os.path.abspath(__file__)))
from asmlib import Emit, v, s

NAME = "gated_mix__ssm_conv_s5__swiglu_ffn__prompt"


def env(name, default):
    return int(os.environ.get(name, str(default)))


STAMPS = env("STAMPS", 0)
DBGT = env("DBGT", 0)
OUTP = os.environ.get("OUTP", " sc1")
FINE = env("FINE", 0)
ROTMASK = env("ROTMASK", 7)
CODEPF = env("CODEPF", 1)
JR0, JR1 = env("JR0", 3), env("JR1", 2)
S_JOBS = env("S_JOBS", 10)
PRIOX, PRIOY = env("PRIOX", 1), env("PRIOY", 1)
MAP2 = env("MAP2", 0)
P2PRIO = env("P2PRIO", 1)
STPRIO = env("STPRIO", 0)
STBAR = env("STBAR", 1)
NOGATE = env("NOGATE", 1)
ACAP = env("ACAP", 4)
S_EX = env("S_EX", 5)
C_CAR = env("C_CAR", 1)
S_GR = env("S_GR", 8 * C_CAR + 3)
PUMPB, PUMPF = env("PUMPB", 6), env("PUMPF", 8)
EARLYB = env("EARLYB", 0)
S_QUIET = env("S_QUIET", 0)
S_BTA = env("S_BTA", -1)
S_BT = env("S_BT", 16)
S_BS = env("S_BS", 18)
BLAT = env("BLAT", 6)
TAILCP = env("TAILCP", 10)

KS = 176
WS_A2 = 0
A2_BYTES = 64 * KS * 1024
WS_G = A2_BYTES + 16 * KS * 1024
WS_AGG = WS_G + 8192
AGG_BYTES = 32 * 8192
WS_DONE = WS_AGG + AGG_BYTES
WS_END = WS_DONE + 32768
WS_STAMP = 24 << 20

REG = 16384
L_SEX = 131072
L_PAR = 147456
PARS = 1536
L_MISC = 161792
L_TOP = 131072
LDS_BYTES = 163840

LOG2E = 0x3FB8AA3B
NLOG2E = 0xBFB8AA3B
INV2PI = 0x3E22F983

S_ROT = 1
S_WV, S_W, S_HALF, S_I, S_CQ, S_JJ, S_UA, S_UB, S_ST0 = 3, 4, 5, 6, 7, 8, 9, 10, 11
S_T0, S_T1, S_T2, S_T3 = 12, 13, 14, 15
P_X, P_LRE, P_LIM, P_BRE, P_BIM, P_CRE, P_CIM, P_LDT = 16, 18, 20, 22, 24, 26, 28, 30
P_DSK, P_BX, P_WG, P_WU, P_WD, P_GW, P_OUT, P_DBG = 32, 34, 36, 38, 40, 42, 44, 46
P_WS = 48
S_MT, S_NT = 50, 51
SRD_X, SRD_S, SRD_G, SRD_U, SRD_WS, SRD_B = 52, 56, 60, 64, 68, 72
S_K0, S_K1 = 76, 77
S_LB0, S_LB1, S_LB2 = 78, 79, 80
S_NL2E = 81
S_A2A, S_A2B, S_A2S = 82, 83, 84
S_COL = 85
S_SPIN = 86
S_GOFF = 87
S_M0, S_M1 = 88, 90
S_PUB = 93
S_LBS = 94
S_B0 = 95
S_A0 = 35
S_EPOCH = 34

V_DA = 1
V_DB = 6
V_XA = 10
V_SA = 14
V_TA = 18
V_TB = 21
V_ST = 23
V_FR = 24
ACC = [48, 64, 80, 96, 112]
V_X = 128

DPP_X1 = "quad_perm:[1,0,3,2] row_mask:0xf bank_mask:0xf"
DPP_X2 = "quad_perm:[2,3,0,1] row_mask:0xf bank_mask:0xf"


class Path(Emit):
    cnt = 0

    def newlabel(self, base):
        Path.cnt += 1
        return f"L_{base}_{Path.cnt}"

    def fork(self):
        e = Path()
        e.vm_seq, e.vm_done, e.lg_seq, e.lg_done = self.vm_seq, self.vm_done, self.lg_seq, self.lg_done
        return e


class Sched:
    def __init__(self):
        self.q = []

    def add(self, gen):
        self.q.append(gen)

    def pump(self, n):
        while n > 0 and self.q:
            try:
                next(self.q[0])
                n -= 1
            except StopIteration:
                self.q.pop(0)

    def drain(self):
        self.pump(1 << 30)

    def empty(self):
        return not self.q


def run(gen):
    for _ in gen:
        pass


def srd(e, d, ptr, nbytes):
    e(f"s_mov_b32 {s(d)}, {s(ptr)}")
    e(f"s_and_b32 {s(d + 1)}, {s(ptr + 1)}, 0xffff")
    e(f"s_mov_b32 {s(d + 2)}, {nbytes}")
    e(f"s_mov_b32 {s(d + 3)}, 0x00020000")


STMAP = [int(x) for x in os.environ.get("STMAP", "").split(",") if x]
DBGWG = env("DBGWG", 200)
DBGWV = env("DBGWV", 0)


def stamp(e, vr, idx, real=False):
    if not STAMPS:
        return
    if STMAP:
        if idx not in STMAP:
            return
        idx = 1 + STMAP.index(idx)
    e(f"{'s_memrealtime' if real else 's_memtime'} s[96:97]")
    e("s_waitcnt lgkmcnt(0)")
    e(f"v_writelane_b32 {v(vr)}, s96, {idx}")


def mfma(e, d, a, b, first):
    c = "0" if first else v(d, 16)
    e(f"v_mfma_f32_32x32x16_bf16 {v(d, 16)}, {v(a, 4)}, {v(b, 4)}, {c}")


def dma(e, voff, srd_, soff, off=0):
    o = f" offset:{off}" if off else ""
    return e.vm(f"buffer_load_dwordx4 {v(voff)}, {s(srd_, 4)}, {s(soff)} offen{o} lds")


def spin_tail(e, lp, sleep=1):
    e(f"s_add_u32 {s(S_SPIN)}, {s(S_SPIN)}, 1")
    e(f"s_cmp_lt_u32 {s(S_SPIN)}, 0x4000")
    e(f"s_cbranch_scc1 {lp}")


def prologue_common(e):
    e("s_cmp_ge_u32 s2, 256")
    e("s_cbranch_scc1 L_exit")
    if STAMPS or DBGT:
        e("s_memtime s[98:99]")
        e("s_memrealtime s[100:101]")
    e(f"s_load_dwordx16 {s(16, 16)}, s[0:1], 0")
    e(f"s_load_dwordx16 {s(32, 16)}, s[0:1], 64")
    e(f"s_load_dwordx2 {s(48, 2)}, s[0:1], 128")
    if CODEPF:
        e("s_getpc_b64 s[4:5]")
        e.label("L_pc")
        e("s_lshr_b32 s6, s2, 3")
        e("s_lshl_b32 s6, s6, 4")
        e("v_and_b32 v2, 15, v0")
        e("v_add_u32 v2, s6, v2")
        e("v_lshlrev_b32 v2, 7, v2")
        e("v_min_u32 v2, L_code_end-L_pc-4, v2")
        e("v_cmp_gt_u32 vcc, 16, v0")
        e("s_and_saveexec_b64 s[8:9], vcc")
        e("s_cbranch_execz L_nopf")
        e("global_load_dword v223, v2, s[4:5]")
        e.label("L_nopf")
        e("s_mov_b64 exec, s[8:9]")
    e("v_lshrrev_b32 v1, 6, v0")
    e("v_and_b32 v0, 63, v0")
    e(f"v_readfirstlane_b32 {s(S_WV)}, v1")
    e(f"s_and_b32 {s(S_T0)}, s2, 7")
    e(f"s_lshr_b32 {s(S_T1)}, s2, 3")
    e(f"s_lshr_b32 {s(S_CQ)}, {s(S_T0)}, 1")
    e(f"s_and_b32 {s(S_T2)}, {s(S_T0)}, 1")
    e(f"s_lshl_b32 {s(S_T3)}, {s(S_T2)}, 3")
    e(f"s_and_b32 {s(S_I)}, {s(S_T1)}, 7")
    e(f"s_add_u32 {s(S_I)}, {s(S_I)}, {s(S_T3)}")
    e(f"s_lshr_b32 {s(S_JJ)}, {s(S_T1)}, 3")
    e(f"s_and_b32 {s(S_W)}, {s(S_WV)}, 3")
    e(f"s_lshr_b32 {s(S_HALF)}, {s(S_WV)}, 2")
    e(f"s_lshl_b32 {s(S_MT)}, {s(S_CQ)}, 3")
    e(f"s_and_b32 {s(S_T3)}, {s(S_T1)}, 7")
    e(f"s_add_u32 {s(S_MT)}, {s(S_MT)}, {s(S_T3)}")
    e(f"s_lshl_b32 {s(S_NT)}, {s(S_T2)}, 2")
    e(f"s_add_u32 {s(S_NT)}, {s(S_NT)}, {s(S_JJ)}")
    if MAP2:
        e(f"s_lshl_b32 {s(S_MT)}, {s(S_T0)}, 2")
        e(f"s_and_b32 {s(S_T3)}, {s(S_T1)}, 3")
        e(f"s_add_u32 {s(S_MT)}, {s(S_MT)}, {s(S_T3)}")
        e(f"s_lshr_b32 {s(S_NT)}, {s(S_T1)}, 2")
    e(f"s_mul_i32 {s(S_UA)}, {s(S_CQ)}, 7")
    e(f"s_lshl_b32 {s(S_T2)}, {s(S_JJ)}, 1")
    e(f"s_add_u32 {s(S_UA)}, {s(S_UA)}, {s(S_T2)}")
    e(f"s_add_u32 {s(S_UB)}, {s(S_UA)}, 1")
    e(f"s_cmp_eq_u32 {s(S_JJ)}, 3")
    e(f"s_cselect_b32 {s(S_UB)}, {s(S_UA)}, {s(S_UB)}")
    e(f"s_lshl_b32 {s(S_ST0)}, {s(S_CQ)}, 3")
    e(f"s_add_u32 {s(S_ST0)}, {s(S_ST0)}, {s(S_JJ)}")
    e(f"s_lshl_b32 {s(S_COL)}, {s(S_CQ)}, 2")
    e(f"s_add_u32 {s(S_COL)}, {s(S_COL)}, {s(S_JJ)}")
    e(f"s_cmp_eq_u32 {s(S_JJ)}, 3")
    e(f"s_cselect_b32 {s(S_T0)}, 2, 0")
    e(f"s_add_u32 {s(S_T0)}, {s(S_T0)}, {s(S_HALF)}")
    e(f"s_cmp_eq_u32 {s(S_T0)}, 1")
    e("s_cbranch_scc1 L_X1")
    e(f"s_cmp_eq_u32 {s(S_T0)}, 2")
    e("s_cbranch_scc1 L_Y0")
    e(f"s_cmp_eq_u32 {s(S_T0)}, 3")
    e("s_cbranch_scc1 L_Y1")


def krot(e, dst, add, mul):
    e(f"s_add_u32 {s(dst)}, {s(S_ROT)}, {add}")
    e(f"s_and_b32 {s(dst)}, {s(dst)}, 7")
    e(f"s_mul_i32 {s(dst)}, {s(dst)}, {mul}")


def unit_gen(e, typ, half, unit, utok):
    slot = unit % 4
    if unit >= 8:
        c = unit - 8
        e(f"s_add_u32 m0, {s(S_LB2)}, {slot * 4096}")
        krot(e, S_K1, 2 * c + half, 64 * 3584)
        dma(e, V_DB, SRD_G, S_K1); yield
        dma(e, V_DB + 1, SRD_G, S_K1, 1024); yield
        e(f"s_add_u32 m0, {s(S_LB2)}, {4 * REG + slot * 4096}")
        e("s_nop 0")
        dma(e, V_DB + 2, SRD_U, S_K1); yield
        utok[unit] = dma(e, V_DB + 3, SRD_U, S_K1, 1024); yield
        return
    if half == 1:
        e(f"s_add_u32 m0, {s(S_LB0)}, {slot * 4096}")
        krot(e, S_K0, unit, 128)
        for q in range(4):
            utok[unit] = dma(e, V_DA + q, SRD_X, S_K0, 1024 * q); yield
        return
    if typ == 'X':
        e(f"s_add_u32 m0, {s(S_LB0)}, {8 * REG + slot * 4096}")
        krot(e, S_K0, unit, 128)
        dma(e, V_DA, SRD_S, S_K0); yield
        e(f"s_add_u32 m0, {s(S_LB1)}, {4 * REG + slot * 4096}")
        e(f"s_mul_i32 {s(S_K1)}, {s(S_K0)}, {64 * 3584 // 128}")
        dma(e, V_DA + 1, SRD_G, S_K1); yield
        dma(e, V_DA + 2, SRD_G, S_K1, 1024); yield
        e(f"s_add_u32 m0, {s(S_LB1)}, {6 * REG + slot * 4096}")
        e("s_nop 0")
        dma(e, V_DA + 3, SRD_U, S_K1); yield
        utok[unit] = dma(e, V_DA + 4, SRD_U, S_K1, 1024); yield
        return
    for m in range(5):
        e(f"s_add_u32 m0, {s(S_LB0)}, {(4 + m) * REG + slot * 4096}")
        if m == 0:
            krot(e, S_K0, unit, 128)
        else:
            e(f"s_add_u32 {s(S_K0)}, {s(S_K0)}, 16384")
        utok[unit] = dma(e, V_DA, SRD_S, S_K0); yield


def ffn_epilogue(e, A, T, sbase, t, defer=None):
    G, U = A, A + 8
    for k in range(8):
        e(f"v_mul_f32 {v(T + k)}, {s(S_NL2E)}, {v(G + k)}"); yield
    for k in range(8):
        e(f"v_exp_f32 {v(T + k)}, {v(T + k)}"); yield
        e(f"v_mul_f32 {v(U + k)}, {v(G + k)}, {v(U + k)}"); yield
    for k in range(8):
        e(f"v_add_f32 {v(T + k)}, 1.0, {v(T + k)}"); yield
    for k in range(8):
        e(f"v_rcp_f32 {v(T + k)}, {v(T + k)}"); yield
        if k >= 2:
            e(f"v_mul_f32 {v(U + k - 2)}, {v(U + k - 2)}, {v(T + k - 2)}"); yield
    e(f"v_mul_f32 {v(U + 6)}, {v(U + 6)}, {v(T + 6)}"); yield
    e(f"v_mul_f32 {v(U + 7)}, {v(U + 7)}, {v(T + 7)}"); yield
    for p in range(4):
        e(f"v_cvt_pk_bf16_f32 {v(G + p)}, {v(U + 2 * p)}, {v(U + 2 * p + 1)}"); yield
    o = f" offset:{1024 * t}" if t else ""
    txt = f"buffer_store_dwordx4 {v(G, 4)}, {v(V_ST)}, {s(SRD_WS, 4)}, {s(sbase)} offen{o} sc1"
    if defer is not None:
        defer.append(txt)
    else:
        e.last_store = e.vm(txt); yield


def path(e, typ, half):
    T = 96
    SV = 95 if half == 0 else 5
    tok = {}
    utok = {}
    if STAMPS:
        e(f"v_mov_b32 {v(SV)}, 0")
    if half == 1:
        e("s_setprio 1")
    e(f"v_lshrrev_b32 {v(T)}, 3, v0")
    e(f"v_and_b32 {v(T + 1)}, 7, v0")
    e(f"v_lshrrev_b32 {v(T + 2)}, 4, v0")
    e(f"v_lshrrev_b32 {v(T + 3)}, 5, v0")
    e(f"v_and_b32 {v(T + 4)}, 31, v0")
    e(f"v_and_b32 {v(T + 5)}, 1, {v(T + 2)}")
    e(f"v_lshlrev_b32 {v(T + 5)}, 1, {v(T + 5)}")
    e(f"v_xor_b32 {v(T + 5)}, {v(T + 5)}, {v(T + 1)}")
    e(f"v_lshlrev_b32 {v(T + 5)}, 4, {v(T + 5)}")
    e(f"v_mul_u32_u24 {v(T + 6)}, 3584, {v(T)}")
    e(f"v_add_u32 {v(T + 5)}, {v(T + 5)}, {v(T + 6)}")
    e(f"v_lshlrev_b32 {v(V_ST)}, 4, v0")
    if half == 1:
        e(f"v_bfe_u32 {v(T + 14)}, v0, 3, 2")
        e(f"v_lshl_add_u32 {v(T + 14)}, {v(T + 3)}, 4, {v(T + 14)}")
        e(f"v_xor_b32 {v(T + 15)}, {v(T + 1)}, {v(T + 2)}")
        e(f"v_lshlrev_b32 {v(T + 15)}, 4, {v(T + 15)}")
        e(f"v_lshl_add_u32 {v(T + 14)}, {v(T + 14)}, 10, {v(T + 15)}")
        e(f"s_lshl_b32 {s(S_T0)}, {s(S_I)}, 17")
        e(f"s_lshl_b32 {s(S_T1)}, {s(S_W)}, 15")
        e(f"s_add_u32 {s(S_T0)}, {s(S_T0)}, {s(S_T1)}")
        e(f"v_add_u32 {v(V_DA)}, {s(S_T0)}, {v(T + 14)}")
        e(f"v_xor_b32 {v(T + 14)}, 64, {v(V_DA)}")
        e(f"v_add_u32 {v(V_DA + 1)}, {4096 - 1024}, {v(T + 14)}")
        e(f"v_add_u32 {v(V_DA + 2)}, {2 * (4096 - 1024)}, {v(V_DA)}")
        e(f"v_add_u32 {v(V_DA + 3)}, {3 * (4096 - 1024)}, {v(T + 14)}")
        e(f"s_lshl_b32 {s(S_LB0)}, {s(S_W)}, 14")
        e("s_waitcnt lgkmcnt(0)")
        srd(e, SRD_X, P_X, 2048 * 1024)
    else:
        e(f"s_lshr_b32 {s(S_T0)}, {s(S_W)}, 1")
        e(f"s_lshl_b32 {s(S_T0)}, {s(S_T0)}, 2")
        e(f"v_xor_b32 {v(T + 14)}, {v(T + 1)}, {v(T + 2)}")
        e(f"v_xor_b32 {v(T + 14)}, {s(S_T0)}, {v(T + 14)}")
        e(f"v_lshlrev_b32 {v(T + 14)}, 4, {v(T + 14)}")
        e(f"v_lshl_add_u32 {v(T + 14)}, {v(T)}, 10, {v(T + 14)}")
        e(f"s_lshl_b32 {s(S_T0)}, {s(S_ST0)}, 14")
        e(f"s_and_b32 {s(S_T1)}, {s(S_W)}, 1")
        e(f"s_lshl_b32 {s(S_T1)}, {s(S_T1)}, 13")
        e(f"s_add_u32 {s(S_T0)}, {s(S_T0)}, {s(S_T1)}")
        e(f"v_add_u32 {v(V_DA)}, {s(S_T0)}, {v(T + 14)}")
        e(f"s_lshl_b32 {s(S_LB0)}, {s(S_W)}, 10")
        if typ == 'X':
            e(f"s_mul_i32 {s(S_T0)}, {s(S_W)}, {16 * 3584}")
            e(f"s_lshl_b32 {s(S_T1)}, {s(S_UA)}, 7")
            e(f"s_add_u32 {s(S_T0)}, {s(S_T0)}, {s(S_T1)}")
            e(f"v_add_u32 {v(V_DA + 1)}, {s(S_T0)}, {v(T + 5)}")
            e(f"v_add_u32 {v(V_DA + 2)}, {8 * 3584 - 1024}, {v(V_DA + 1)}")
            e(f"v_xor_b32 {v(V_DA + 3)}, 64, {v(V_DA + 1)}")
            e(f"v_xor_b32 {v(V_DA + 4)}, 64, {v(V_DA + 2)}")
            e(f"s_lshr_b32 {s(S_LB1)}, {s(S_W)}, 1")
            e(f"s_lshl_b32 {s(S_LB1)}, {s(S_LB1)}, 14")
            e(f"s_and_b32 {s(S_T0)}, {s(S_W)}, 1")
            e(f"s_lshl_b32 {s(S_T0)}, {s(S_T0)}, 11")
            e(f"s_add_u32 {s(S_LB1)}, {s(S_LB1)}, {s(S_T0)}")
        e("s_waitcnt lgkmcnt(0)")
        e(f"s_cmp_lt_u32 {s(S_W)}, 2")
        e(f"s_cselect_b32 {s(SRD_S)}, {s(P_BRE)}, {s(P_BIM)}")
        e(f"s_cselect_b32 {s(SRD_S + 1)}, {s(P_BRE + 1)}, {s(P_BIM + 1)}")
        e(f"s_and_b32 {s(SRD_S + 1)}, {s(SRD_S + 1)}, 0xffff")
        e(f"s_mov_b32 {s(SRD_S + 2)}, {512 * 1024}")
        e(f"s_mov_b32 {s(SRD_S + 3)}, 0x00020000")
        if typ == 'X':
            srd(e, SRD_G, P_WG, 512 * 3584)
            srd(e, SRD_U, P_WU, 512 * 3584)
    if STAMPS:
        e(f"v_writelane_b32 {v(SV)}, s98, 0")
        e(f"v_writelane_b32 {v(SV)}, s100, 60")
    stamp(e, SV, 1)
    e(f"s_lshl_b32 {s(S_ROT)}, {s(S_JJ)}, 1")
    e(f"s_add_u32 {s(S_ROT)}, {s(S_ROT)}, {s(S_I)}")
    e(f"s_and_b32 {s(S_ROT)}, {s(S_ROT)}, {ROTMASK}")
    run(unit_gen(e, typ, half, 0, utok))
    stamp(e, SV, 51)
    G = 224
    PP = 236
    if half == 0:
        lab = e.newlabel("ep_skip")
        e(f"v_mov_b32 {v(PP + 1)}, 0")
        e(f"s_lshl_b32 {s(S_T0)}, {s(S_W)}, 3")
        e(f"s_or_b32 {s(S_T0)}, {s(S_T0)}, s2")
        e(f"s_cmp_ge_u32 {s(S_T0)}, 8")
        e(f"s_cbranch_scc1 {lab}")
        e(f"s_memrealtime {s(S_M0, 2)}")
        e("s_waitcnt lgkmcnt(0)")
        e(f"s_or_b32 {s(S_T0)}, {s(S_M0)}, 1")
        e(f"v_mov_b32 {v(PP)}, {s(S_T0)}")
        e("s_mov_b64 exec, 1")
        e(f"global_atomic_cmpswap {v(PP + 1)}, {v(PP, 2)}, {s(P_DBG, 2)} sc1")
        e("s_mov_b64 exec, -1")
        e.label(lab)
        srd(e, SRD_X, P_X, 2048 * 1024)
    if not (half == 0 and typ == 'X'):
        srd(e, SRD_G, P_WG, 512 * 3584)
        srd(e, SRD_U, P_WU, 512 * 3584)
    srd(e, SRD_WS, P_WS, WS_END)
    e(f"s_mov_b32 {s(S_NL2E)}, {NLOG2E:#x}")
    e("s_barrier")
    if half == 1:
        run(unit_gen(e, typ, half, 1, utok))
    stamp(e, SV, 52)
    e(f"s_lshl_b32 {s(S_T0)}, {s(S_I)}, 7")
    e(f"s_lshl_b32 {s(S_T1)}, {s(S_COL)}, 3")
    e(f"s_add_u32 {s(S_T0)}, {s(S_T0)}, {s(S_T1)}")
    e(f"s_add_u32 {s(S_T0)}, {s(S_T0)}, {s(S_WV)}")
    e(f"s_lshl_b32 {s(S_T1)}, {s(S_T0)}, 10")
    e(f"s_lshl_b32 {s(S_GOFF)}, {s(S_T0)}, 2")
    e(f"s_add_u32 {s(S_GOFF)}, {s(S_GOFF)}, {WS_G}")
    e(f"v_add_u32 {v(PP + 3)}, {s(S_T1)}, {v(V_ST)}")
    own0 = 0 if half == 0 else 2
    e(f"s_add_u32 {s(S_PUB)}, {s(S_ST0)}, {s(S_W)}")
    e(f"s_lshl_b32 {s(S_PUB)}, {s(S_PUB)}, 13")
    e(f"s_add_u32 {s(S_PUB)}, {s(S_PUB)}, {WS_AGG + own0 * 8192}")
    e(f"s_lshl_b32 {s(S_T0)}, {s(S_I)}, 8")
    e(f"s_add_u32 {s(S_PUB)}, {s(S_PUB)}, {s(S_T0)}")
    if half == 0:
        e(f"s_cmp_eq_u32 {s(S_W)}, 0")
        e(f"s_cselect_b32 {s(S_T1)}, 4, 0")
        e(f"v_mul_u32_u24 {v(G + 8)}, {s(S_T1)}, {v(T + 3)}")
        e(f"s_add_u32 {s(S_T0)}, {s(S_ST0)}, {s(S_W)}")
        e(f"v_add_u32 {v(G + 8)}, {s(S_T0)}, {v(G + 8)}")
        e(f"v_min_u32 {v(G + 8)}, 31, {v(G + 8)}")
        e(f"v_and_b32 {v(G + 9)}, 30, v0")
        e(f"v_lshl_add_u32 {v(G + 8)}, {v(G + 8)}, 5, {v(G + 9)}")
    e(f"s_mul_i32 {s(S_T0)}, {s(S_W)}, {16 * 3584}")
    e(f"s_lshl_b32 {s(S_T1)}, {s(S_UB)}, 7")
    e(f"s_add_u32 {s(S_T0)}, {s(S_T0)}, {s(S_T1)}")
    e(f"v_add_u32 {v(V_DB)}, {s(S_T0)}, {v(T + 5)}")
    e(f"v_add_u32 {v(V_DB + 1)}, {8 * 3584 - 1024}, {v(V_DB)}")
    e(f"v_xor_b32 {v(V_DB + 2)}, 64, {v(V_DB)}")
    e(f"v_xor_b32 {v(V_DB + 3)}, 64, {v(V_DB + 1)}")
    e(f"v_bfe_u32 {v(T + 6)}, v0, 1, 3")
    e(f"v_xor_b32 {v(T + 6)}, {v(T + 6)}, {v(T + 3)}")
    e(f"v_lshlrev_b32 {v(T + 6)}, 4, {v(T + 6)}")
    e(f"v_lshl_add_u32 {v(T + 6)}, {v(T + 4)}, 7, {v(T + 6)}")
    e(f"s_lshl_b32 {s(S_T0)}, {s(S_W)}, 14")
    e(f"v_add_u32 {v(V_XA)}, {s(S_T0)}, {v(T + 6)}")
    for u in range(1, 4):
        e(f"v_xor_b32 {v(V_XA + u)}, {32 * u}, {v(V_XA)}")
    e(f"v_bfe_u32 {v(T + 7)}, v0, 2, 2")
    e(f"v_lshl_add_u32 {v(T + 8)}, {v(T + 3)}, 3, {v(T + 7)}")
    e(f"v_lshlrev_b32 {v(T + 8)}, 7, {v(T + 8)}")
    e(f"v_and_b32 {v(T + 11)}, 3, v0")
    e(f"v_lshl_add_u32 {v(T + 8)}, {v(T + 11)}, 3, {v(T + 8)}")
    e(f"v_and_b32 {v(T + 9)}, 1, {v(T + 2)}")
    e(f"v_lshrrev_b32 {v(T + 10)}, 1, {v(T + 7)}")
    e(f"v_lshl_add_u32 {v(T + 10)}, {v(T + 9)}, 1, {v(T + 10)}")
    e(f"v_lshl_add_u32 {v(T + 8)}, {v(T + 10)}, 5, {v(T + 8)}")
    e(f"v_lshl_add_u32 {v(T + 10)}, {v(T + 9)}, 16, {v(T + 8)}")
    e(f"v_xor_b32 {v(V_TB)}, {64 * half}, {v(T + 10)}")
    e(f"v_xor_b32 {v(V_TB + 1)}, 32, {v(V_TB)}")
    if typ == 'X':
        tilesA = [('S', 0), ('F', 0)] if half == 0 else [('F', 1), ('F', 2), ('F', 3)]
    else:
        tilesA = [('S', 0), ('S', 1)] if half == 0 else [('S', 2), ('S', 3), ('S', 4)]
    stiles = [m for k, m in tilesA if k == 'S']
    ft = [m for k, m in tilesA if k == 'F']
    if ft:
        e(f"v_lshl_add_u32 {v(T + 10)}, {v(T + 9)}, 15, {v(T + 8)}")
        e(f"v_add_u32 {v(T + 10)}, {4 * REG}, {v(T + 10)}")
        for idx, t in enumerate(ft):
            e(f"v_xor_b32 {v(V_TA + idx)}, {32 * t}, {v(T + 10)}")
    if stiles:
        e(f"v_and_b32 {v(T + 12)}, 1, v0")
        e(f"v_lshrrev_b32 {v(T + 13)}, 1, {v(T + 4)}")
        e(f"v_lshl_add_u32 {v(T + 13)}, {v(T + 12)}, 4, {v(T + 13)}")
        e(f"v_bfe_u32 {v(T + 14)}, {v(T + 13)}, 1, 2")
        e(f"v_lshl_add_u32 {v(T + 14)}, {v(T + 12)}, 2, {v(T + 14)}")
        e(f"v_xor_b32 {v(T + 14)}, {v(T + 14)}, {v(T + 3)}")
        e(f"v_lshlrev_b32 {v(T + 14)}, 4, {v(T + 14)}")
        e(f"v_lshl_add_u32 {v(T + 14)}, {v(T + 13)}, 7, {v(T + 14)}")
        base = (8 * REG) if typ == 'X' else (4 + stiles[0]) * REG
        e(f"v_add_u32 {v(V_SA)}, {base}, {v(T + 14)}")
        for u in range(1, 4):
            e(f"v_xor_b32 {v(V_SA + u)}, {32 * u}, {v(V_SA)}")
    e(f"s_lshr_b32 {s(S_LB2)}, {s(S_WV)}, 1")
    e(f"s_lshl_b32 {s(S_LB2)}, {s(S_LB2)}, 14")
    e(f"s_and_b32 {s(S_T0)}, {s(S_WV)}, 1")
    e(f"s_lshl_b32 {s(S_T0)}, {s(S_T0)}, 11")
    e(f"s_add_u32 {s(S_LB2)}, {s(S_LB2)}, {s(S_T0)}")
    e(f"s_lshl_b32 {s(S_LBS)}, {s(S_WV)}, 14")
    e(f"s_lshl_b32 {s(S_T0)}, {s(S_I)}, 2")
    e(f"s_add_u32 {s(S_T0)}, {s(S_T0)}, {s(S_W)}")
    e(f"s_mul_i32 {s(S_T0)}, {s(S_T0)}, {KS * 1024}")
    e(f"s_lshl_b32 {s(S_T1)}, {s(S_UA)}, 12")
    e(f"s_add_u32 {s(S_A2A)}, {s(S_T0)}, {s(S_T1)}")
    e(f"s_lshl_b32 {s(S_T1)}, {s(S_UB)}, 12")
    e(f"s_add_u32 {s(S_A2B)}, {s(S_T0)}, {s(S_T1)}")
    e(f"s_lshl_b32 {s(S_T1)}, {s(S_ST0)}, 11")
    e(f"s_add_u32 {s(S_A2S)}, {s(S_T0)}, {s(S_T1)}")
    e(f"s_add_u32 {s(S_A2S)}, {s(S_A2S)}, {112 * 1024}")
    e(f"s_mul_i32 {s(S_A0)}, {s(S_MT)}, {2 * KS * 1024}")
    if half == 0:
        e(f"s_lshl_b32 {s(S_T0)}, {s(S_W)}, 14")
        e(f"s_add_u32 {s(S_A0)}, {s(S_A0)}, {s(S_T0)}")
        e(f"s_add_u32 {s(S_A0)}, {s(S_A0)}, {112 * 1024}")
        e(f"s_lshl_b32 {s(S_B0)}, {s(S_NT)}, 16")
        e(f"s_lshl_b32 {s(S_T0)}, {s(S_W)}, 8")
        e(f"s_add_u32 {s(S_B0)}, {s(S_B0)}, {s(S_T0)}")
    else:
        e(f"s_mul_i32 {s(S_T0)}, {s(S_W)}, {28 * 1024}")
        e(f"s_add_u32 {s(S_A0)}, {s(S_A0)}, {s(S_T0)}")
        e(f"s_mul_i32 {s(S_B0)}, {s(S_W)}, {448 * 1024}")
        e(f"s_lshl_b32 {s(S_T0)}, {s(S_NT)}, 7")
        e(f"s_add_u32 {s(S_B0)}, {s(S_B0)}, {s(S_T0)}")
        srd(e, SRD_B, P_WD, 1792 * 1024)
    stamp(e, SV, 2)

    def small_gen():
        if half == 0:
            e.vm(f"global_load_ushort {v(G + 9)}, {v(G + 8)}, {s(P_LRE, 2)}")
            e.vm(f"global_load_ushort {v(G + 10)}, {v(G + 8)}, {s(P_LIM, 2)}")
            tok['par'] = e.vm(f"global_load_ushort {v(G + 11)}, {v(G + 8)}, {s(P_LDT, 2)}"); yield
        e.vm(f"buffer_load_dwordx4 {v(G, 4)}, {v(PP + 3)}, {s(SRD_X, 4)}, 0 offen"); yield
        tok['gw'] = e.vm(f"global_load_dwordx4 {v(G + 4, 4)}, {v(V_ST)}, {s(P_GW, 2)}"); yield

    def job_gate():
        TT = 96
        e.wait(vm=tok['gw'])
        for j in range(4):
            e(f"v_lshlrev_b32 {v(TT + 2 * j)}, 16, {v(G + j)}"); yield
            e(f"v_and_b32 {v(TT + 2 * j + 1)}, 0xffff0000, {v(G + j)}"); yield
            e(f"v_lshlrev_b32 {v(TT + 8 + 2 * j)}, 16, {v(G + 4 + j)}"); yield
            e(f"v_and_b32 {v(TT + 8 + 2 * j + 1)}, 0xffff0000, {v(G + 4 + j)}"); yield
        tok['xfree1'] = True
        for j in range(8):
            e(f"v_mul_f32 {v(TT + j)}, {v(TT + j)}, {v(TT + 8 + j)}"); yield
        for j in range(4):
            e(f"v_cvt_pk_bf16_f32 {v(TT + 8 + j)}, {v(TT + 2 * j)}, {v(TT + 2 * j + 1)}"); yield
        for j in range(4):
            e(f"v_lshlrev_b32 {v(TT + 2 * j)}, 16, {v(TT + 8 + j)}"); yield
            e(f"v_and_b32 {v(TT + 2 * j + 1)}, 0xffff0000, {v(TT + 8 + j)}"); yield
        for j in range(4):
            e(f"v_add_f32 {v(TT + j)}, {v(TT + j)}, {v(TT + 4 + j)}"); yield
        e(f"v_add_f32 {v(TT)}, {v(TT)}, {v(TT + 2)}"); yield
        e(f"v_add_f32 {v(TT + 1)}, {v(TT + 1)}, {v(TT + 3)}"); yield
        e(f"v_add_f32 {v(TT)}, {v(TT)}, {v(TT + 1)}"); yield
        a, b = TT, TT + 1
        for d in (DPP_X1, DPP_X2, "row_half_mirror row_mask:0xf bank_mask:0xf", "row_mirror row_mask:0xf bank_mask:0xf"):
            e.nop(2)
            e(f"v_add_f32_dpp {v(b)}, {v(a)}, {v(a)} {d}"); yield
            a, b = b, a
        e.nop(1)
        e(f"v_readlane_b32 {s(S_T0)}, {v(a)}, 16")
        e(f"v_readlane_b32 {s(S_T1)}, {v(a)}, 32")
        e(f"v_readlane_b32 {s(S_T2)}, {v(a)}, 48")
        e.nop(2)
        e(f"v_add_f32 {v(a)}, {s(S_T0)}, {v(a)}")
        e(f"v_mov_b32 {v(b)}, {s(S_T1)}")
        e(f"v_add_f32 {v(b)}, {s(S_T2)}, {v(b)}"); yield
        e(f"v_add_f32 {v(a)}, {v(a)}, {v(b)}"); yield
        e(f"v_cvt_pk_bf16_f32 {v(a)}, {v(a)}, {v(a)}"); yield
        e(f"v_lshlrev_b32 {v(a)}, 16, {v(a)}"); yield
        e(f"v_mul_f32 {v(a)}, {s(S_NL2E)}, {v(a)}"); yield
        e(f"v_exp_f32 {v(a)}, {v(a)}"); yield
        e(f"s_lshl_b32 {s(S_T0)}, {s(S_WV)}, 2")
        e(f"s_add_u32 {s(S_T0)}, {s(S_T0)}, {L_MISC + 64}")
        e(f"v_mov_b32 {v(b)}, {s(S_T0)}"); yield
        e(f"v_add_f32 {v(a)}, 1.0, {v(a)}"); yield
        e(f"v_rcp_f32 {v(a)}, {v(a)}"); yield
        e.nop(1)
        e(f"v_cvt_pk_bf16_f32 {v(a)}, {v(a)}, {v(a)}"); yield
        e(f"v_lshlrev_b32 {v(a)}, 16, {v(a)}"); yield
        e("s_mov_b64 exec, 1")
        e.lds(f"ds_write_b32 {v(b)}, {v(a)}")
        e("s_mov_b64 exec, -1"); yield

    def job_params():
        TT = 80
        P = 112
        LRE, LIM, LD = TT + 10, TT + 11, TT + 12
        e.wait(vm=tok['par'])
        e(f"v_lshlrev_b32 {v(LRE)}, 16, {v(G + 9)}"); yield
        e(f"v_lshlrev_b32 {v(LIM)}, 16, {v(G + 10)}"); yield
        e(f"v_lshlrev_b32 {v(LD)}, 16, {v(G + 11)}"); yield
        e(f"v_mul_f32 {v(LD)}, {LOG2E:#x}, {v(LD)}"); yield
        e(f"v_exp_f32 {v(LD)}, {v(LD)}"); yield
        e(f"v_mul_f32 {v(TT + 5)}, {v(LRE)}, {v(LRE)}"); yield
        e(f"v_cvt_pk_bf16_f32 {v(LD)}, {v(LD)}, {v(LD)}"); yield
        e(f"v_lshlrev_b32 {v(LD)}, 16, {v(LD)}"); yield
        e(f"v_mul_f32 {v(TT)}, {v(LD)}, {v(LRE)}"); yield
        e(f"v_mul_f32 {v(TT + 1)}, {v(LD)}, {v(LIM)}"); yield
        e(f"v_mul_f32 {v(TT)}, {LOG2E:#x}, {v(TT)}"); yield
        e(f"v_exp_f32 {v(TT)}, {v(TT)}"); yield
        e(f"v_mul_f32 {v(TT + 1)}, {INV2PI:#x}, {v(TT + 1)}"); yield
        e(f"v_rndne_f32 {v(TT + 2)}, {v(TT + 1)}"); yield
        e(f"v_sub_f32 {v(TT + 1)}, {v(TT + 1)}, {v(TT + 2)}"); yield
        e(f"v_cos_f32 {v(TT + 2)}, {v(TT + 1)}"); yield
        e(f"v_sin_f32 {v(TT + 3)}, {v(TT + 1)}"); yield
        e(f"v_fmac_f32 {v(TT + 5)}, {v(LIM)}, {v(LIM)}"); yield
        e(f"v_mul_f32 {v(TT + 2)}, {v(TT)}, {v(TT + 2)}"); yield
        e(f"v_mul_f32 {v(TT + 3)}, {v(TT)}, {v(TT + 3)}"); yield
        e(f"v_rcp_f32 {v(TT + 5)}, {v(TT + 5)}"); yield
        e(f"v_add_f32 {v(TT + 4)}, -1.0, {v(TT + 2)}"); yield
        e(f"v_mul_f32 {v(TT + 6)}, {v(TT + 4)}, {v(LRE)}"); yield
        e(f"v_fmac_f32 {v(TT + 6)}, {v(TT + 3)}, {v(LIM)}"); yield
        e(f"v_mul_f32 {v(TT + 7)}, {v(TT + 3)}, {v(LRE)}"); yield
        e(f"v_fma_f32 {v(TT + 7)}, -{v(TT + 4)}, {v(LIM)}, {v(TT + 7)}"); yield
        e(f"v_add_f32 {v(TT + 5)}, {v(TT + 5)}, {v(TT + 5)}"); yield
        e(f"v_mul_f32 {v(TT + 6)}, {v(TT + 6)}, {v(TT + 5)}"); yield
        e(f"v_mul_f32 {v(TT + 7)}, {v(TT + 7)}, {v(TT + 5)}"); yield
        e(f"v_and_b32 {v(TT + 8)}, 1, v0"); yield
        e(f"v_lshlrev_b32 {v(TT + 8)}, 31, {v(TT + 8)}"); yield
        e(f"v_xor_b32 {v(TT + 9)}, 0x80000000, {v(TT + 8)}"); yield
        e(f"v_xor_b32 {v(P + 8)}, {v(TT + 8)}, {v(TT + 6)}"); yield
        e(f"v_xor_b32 {v(P + 9)}, 0x80000000, {v(TT + 7)}"); yield
        e(f"v_mov_b32 {v(P)}, {v(TT + 2)}"); yield
        e(f"v_xor_b32 {v(P + 1)}, {v(TT + 9)}, {v(TT + 3)}"); yield

        def square():
            e(f"v_mul_f32 {v(TT + 4)}, {v(TT + 3)}, {v(TT + 3)}"); yield
            e(f"v_mul_f32 {v(TT + 5)}, {v(TT + 2)}, {v(TT + 3)}"); yield
            e(f"v_fma_f32 {v(TT + 2)}, {v(TT + 2)}, {v(TT + 2)}, -{v(TT + 4)}"); yield
            e(f"v_add_f32 {v(TT + 3)}, {v(TT + 5)}, {v(TT + 5)}"); yield
        for k_, nsq in ((2, 4), (4, 3), (6, 1)):
            for _ in range(nsq):
                yield from square()
            e(f"v_mov_b32 {v(P + k_)}, {v(TT + 2)}"); yield
            e(f"v_xor_b32 {v(P + k_ + 1)}, {v(TT + 9)}, {v(TT + 3)}"); yield
        e(f"s_cmp_eq_u32 {s(S_W)}, 0")
        e(f"s_cselect_b32 {s(S_T1)}, {4 * PARS}, 0")
        e(f"v_lshrrev_b32 {v(TT)}, 5, v0")
        e(f"v_mul_u32_u24 {v(TT)}, {s(S_T1)}, {v(TT)}"); yield
        e(f"v_and_b32 {v(TT + 1)}, 31, v0"); yield
        e(f"v_mul_u32_u24 {v(TT + 1)}, 48, {v(TT + 1)}"); yield
        e(f"s_mul_i32 {s(S_T0)}, {s(S_W)}, {PARS}")
        e(f"s_add_u32 {s(S_T0)}, {s(S_T0)}, {L_PAR}")
        e(f"v_add3_u32 {v(TT)}, {v(TT)}, {v(TT + 1)}, {s(S_T0)}"); yield
        e.lds(f"ds_write_b128 {v(TT)}, {v(P, 4)}"); yield
        e.lds(f"ds_write_b128 {v(TT)}, {v(P + 4, 4)} offset:16"); yield
        e.lds(f"ds_write_b64 {v(TT)}, {v(P + 8, 2)} offset:32"); yield

    side = Sched()
    dq = Sched()
    dtags = []
    ucomplete = {0, 1, 2} if half == 1 else {0, 1}

    def dadd(gen, tag):
        dq.add(gen)
        dtags.append(tag)

    def dpump():
        while dq.q:
            try:
                next(dq.q[0])
                return
            except StopIteration:
                dq.q.pop(0)
                ucomplete.add(dtags.pop(0))

    def need_unit(u):
        while u not in ucomplete:
            for _ in dq.q[0]:
                pass
            dq.q.pop(0)
            ucomplete.add(dtags.pop(0))

    if half == 0:
        run(unit_gen(e, typ, half, 1, utok))
        dadd(unit_gen(e, typ, half, 2, utok), 2)
    else:
        run(unit_gen(e, typ, half, 2, utok))
    dadd(unit_gen(e, typ, half, 3, utok), 3)
    e.wait(vm=utok[0])
    stamp(e, SV, 3)
    e("s_barrier")
    stamp(e, SV, 4)

    ftok = {}

    def readA(S, idx):
        st, u = S // 4, S % 4
        slot = st % 4
        buf = V_FR + 12 * (S % 2)
        if idx == 0:
            e.lds(f"ds_read_b128 {v(V_X + 4 * S, 4)}, {v(V_XA + u)} offset:{slot * 4096}")
        k, m = tilesA[idx]
        d = buf + 4 * idx
        if k == 'S':
            rel = 0 if typ == 'X' else (m - stiles[0]) * REG
            lt = e.lds(f"ds_read_b128 {v(d, 4)}, {v(V_SA + u)} offset:{rel + slot * 4096}")
        else:
            fi = ft.index(m)
            for rd in range(2):
                off = (u >> 1) * REG + slot * 4096 + (16 * (u & 1) + 4 * rd) * 128
                lt = e.lds(f"ds_read_b64_tr_b16 {v(d + 2 * rd, 2)}, {v(V_TA + fi)} offset:{off}")
        ftok[('A', S, idx)] = lt

    def readB(S, idx):
        c, u = S // 8, S % 8
        buf = V_FR + 8 * (S % 2)
        for rd in range(2):
            off = (u >> 1) * REG + c * 4096 + (16 * (u & 1) + 4 * rd) * 128
            lt = e.lds(f"ds_read_b64_tr_b16 {v(buf + 4 * idx + 2 * rd, 2)}, {v(V_TB + idx)} offset:{off}")
        ftok[('B', S, idx)] = lt

    def btouch(TB_):
        if half == 0:
            srd(e, SRD_B, P_CRE, 512 * 1024)
            srd(e, SRD_S, P_CIM, 512 * 1024)
        e(f"s_and_b32 {s(S_T3)}, {s(S_MT)}, {3 if MAP2 else 7}")
        e(f"s_lshl_b32 {s(S_T3)}, {s(S_T3)}, 10")
        e(f"s_add_u32 {s(S_T3)}, {s(S_T3)}, {s(S_B0)}")
        for rep_ in range(2 if MAP2 else 1):
            if rep_:
                e(f"s_add_u32 {s(S_T3)}, {s(S_T3)}, 4096")
            if half == 1:
                e(f"v_min_u32 {v(TB_)}, 55, v0")
                e(f"v_lshlrev_b32 {v(TB_)}, 13, {v(TB_)}")
                tok['bt'] = e.vm(f"buffer_load_dword {v(TB_ + 1)}, {v(TB_)}, {s(SRD_B, 4)}, {s(S_T3)} offen")
            else:
                e(f"v_and_b32 {v(TB_)}, 7, v0")
                e(f"v_lshlrev_b32 {v(TB_)}, 13, {v(TB_)}")
                e(f"v_bfe_u32 {v(TB_ + 3)}, v0, 3, 1")
                e(f"v_lshl_add_u32 {v(TB_)}, {v(TB_ + 3)}, 7, {v(TB_)}")
                e.vm(f"buffer_load_dword {v(TB_ + 1)}, {v(TB_)}, {s(SRD_B, 4)}, {s(S_T3)} offen")
                tok['bt'] = e.vm(f"buffer_load_dword {v(TB_ + 2)}, {v(TB_)}, {s(SRD_S, 4)}, {s(S_T3)} offen")

    for idx in range(len(tilesA)):
        readA(0, idx)
    for S in range(32):
        st, u = S // 4, S % 4
        if S == S_JOBS:
            need_unit('small')
            if half == 0:
                side.add(job_params())
            side.add(job_gate())
        if u == 3:
            need_unit(st + 1)
            if st == 5:
                while 'xfree1' not in tok:
                    side.pump(1)
            if st == 7:
                side.drain()
            e.wait(vm=utok[st + 1], lg=e.lg_seq - 1)
            if not FINE:
                stamp(e, SV, 6 + 2 * st)
            e("s_barrier")
            if not FINE or st == 7:
                stamp(e, SV, 7 + 2 * st if not FINE else 5)
            dadd(unit_gen(e, typ, half, st + 4, utok), st + 4)
            if st == 0:
                dadd(small_gen(), 'small')
        buf = V_FR + 12 * (S % 2)
        for idx, (k, m) in enumerate(tilesA):
            e.wait(lg=ftok[('A', S, idx)])
            if k == 'S':
                mfma(e, ACC[idx], V_X + 4 * S, buf + 4 * idx, S == 0)
            else:
                mfma(e, ACC[idx], buf + 4 * idx, V_X + 4 * S, S == 0)
            if S < 31:
                readA(S + 1, idx)
            elif idx < 2:
                readB(0, idx)
            if idx == 0 or len(dq.q) > 1 or (half == 0 and u == 3):
                dpump()
            if half == 0 and len(dq.q) > 1:
                dpump()
            side.pump(JR0 if half == 0 else JR1)
        if S == S_BTA:
            need_unit(7)
            btouch(1)
        if S == 8 and half == 0:
            lab = e.newlabel("epl_skip")
            e(f"s_cmp_lg_u32 {s(S_W)}, 0")
            e(f"s_cbranch_scc1 {lab}")
            e(f"global_load_dword {v(PP + 2)}, {v(PP + 1)}, {s(P_DBG, 2)} sc1")
            e.label(lab)
            tok['ep_seq'] = e.vm_seq
        if S == 18 and half == 0:
            lab = e.newlabel("ep_skip")
            lp = e.newlabel("ep_poll")
            lo = e.newlabel("ep_ok")
            e(f"s_cmp_lg_u32 {s(S_W)}, 0")
            e(f"s_cbranch_scc1 {lab}")
            e(f"s_mov_b32 {s(S_SPIN)}, 0")
            e(f"s_waitcnt vmcnt({min(63, e.vm_seq - tok['ep_seq'])})")
            e.label(lp)
            e(f"v_cmp_ne_u32 vcc, 0, {v(PP + 2)}")
            e(f"s_cbranch_vccnz {lo}")
            e("s_sleep 2")
            e(f"global_load_dword {v(PP + 2)}, {v(PP + 1)}, {s(P_DBG, 2)} sc1")
            e("s_waitcnt vmcnt(0)")
            spin_tail(e, lp)
            e.label(lo)
            e(f"v_mov_b32 {v(PP)}, {L_MISC}")
            e(f"ds_write_b32 {v(PP)}, {v(PP + 2)}")
            e("s_waitcnt lgkmcnt(0)")
            e.label(lab)
        if S == 20:
            e(f"v_mov_b32 {v(PP + 4)}, {L_MISC}")
            tok['epl'] = e.lds(f"ds_read_b32 {v(PP + 4)}, {v(PP + 4)}")
        if S == 21:
            e.wait(lg=tok['epl'])
            e(f"v_readfirstlane_b32 {s(S_EPOCH)}, {v(PP + 4)}")

    TMP = 40
    TS = 1
    SC = 10
    pa = 20
    ns = len(stiles)
    GR = V_X + 8
    GC = V_X + 24
    FT = V_X + 8
    resv = set(range(2, 14))
    if not stiles:
        resv = set()

    def job_pass1():
        e(f"v_and_b32 {v(pa)}, 31, v0"); yield
        e(f"v_mul_u32_u24 {v(pa)}, 48, {v(pa)}"); yield
        e(f"v_add_u32 {v(pa)}, {L_PAR}, {v(pa)}"); yield
        for j, m in enumerate(stiles):
            lt = e.lds(f"ds_read_b64 {v(TMP + 2 * j, 2)}, {v(pa)} offset:{m * PARS}"); yield
        e(f"v_lshlrev_b32 {v(TS)}, 2, v0"); yield
        e(f"s_lshl_b32 {s(S_T0)}, {s(S_W)}, 8")
        e(f"s_add_u32 {s(S_T0)}, {s(S_T0)}, {L_SEX}")
        e(f"v_add_u32 {v(TS)}, {s(S_T0)}, {v(TS)}"); yield
        e(f"v_mov_b32 {v(TS + 1)}, 0"); yield
        for j, m in enumerate(stiles):
            e.lds(f"ds_write_b32 {v(TS)}, {v(TS + 1)} offset:{m * 2048}"); yield
        e.nop(4)
        e.wait(lg=lt)
        for u in range(1, 16):
            dst = u % 2
            for j in range(ns):
                src_ = ACC[j] if u == 1 else SC + 2 * j + (u + 1) % 2
                e(f"v_fma_f32 {v(SC + 2 * j + dst)}, {v(TMP + 2 * j)}, {v(src_)}, {v(ACC[j] + u)}"); yield
            if ns == 1:
                e.nop(1)
            for j in range(ns):
                src_ = ACC[j] if u == 1 else SC + 2 * j + (u + 1) % 2
                e(f"v_fmac_f32_dpp {v(SC + 2 * j + dst)}, {v(src_)}, {v(TMP + 2 * j + 1)} {DPP_X1}"); yield
        for j, m in enumerate(stiles):
            e.lds(f"ds_write_b32 {v(TS)}, {v(SC + 2 * j + 1)} offset:{m * 2048 + 1024}"); yield
        e(f"s_add_u32 {s(S_T0)}, {s(S_W)}, {stiles[0]}")
        e(f"s_mul_i32 {s(S_T1)}, {s(S_T0)}, {PARS}")
        e(f"v_add_u32 {v(TS + 2)}, {s(S_T1)}, {v(pa)}")
        e(f"s_lshl_b32 {s(S_T1)}, {s(S_T0)}, 11")
        e(f"s_add_u32 {s(S_T1)}, {s(S_T1)}, {L_SEX}")
        e(f"v_and_b32 {v(TS + 1)}, 31, v0")
        e(f"v_lshlrev_b32 {v(TS + 3)}, 3, {v(TS + 1)}")
        e(f"v_lshl_add_u32 {v(TS + 1)}, {v(TS + 1)}, 2, {s(S_T1)}"); yield

    def blk_publish():
        lab = e.newlabel("pub_skip")
        e(f"s_cmp_ge_u32 {s(S_W)}, {ns}")
        e(f"s_cbranch_scc1 {lab}")
        e(f"ds_read_b64 {v(SC, 2)}, {v(TS + 2)} offset:8")
        for q in range(8):
            e(f"ds_read_b32 {v(SC + 2 + q)}, {v(TS + 1)} offset:{1024 + q * 128}")
        e(f"s_add_u32 {s(S_T0)}, {s(S_PUB)}, 4096")
        e("s_waitcnt lgkmcnt(0)")
        for q in range(1, 8):
            e(f"v_fmac_f32 {v(SC + 2 + q)}, {v(SC)}, {v(SC + 1 + q)}")
            e.nop(1)
            e(f"v_fmac_f32_dpp {v(SC + 2 + q)}, {v(SC + 1 + q)}, {v(SC + 1)} {DPP_X1}")
        e(f"v_mov_b32 {v(SC + 1)}, {s(S_EPOCH)}")
        e(f"v_mov_b32 {v(SC)}, {v(SC + 9)}")
        e("s_mov_b32 exec_hi, 0")
        e(f"buffer_store_dwordx2 {v(SC, 2)}, {v(TS + 3)}, {s(SRD_WS, 4)}, {s(S_T0)} offen sc1")
        e("s_mov_b64 exec, -1")
        e.label(lab)
        e(f"v_lshrrev_b32 {v(SC + 2)}, 5, v0")
        e(f"v_sub_u32 {v(SC + 2)}, 1, {v(SC + 2)}")
        e(f"v_lshl_add_u32 {v(TS + 3)}, {v(SC + 2)}, 8, {v(TS + 3)}")

    def gr_issue(lend):
        for t in range(8):
            e(f"buffer_load_dwordx2 {v(GR + 2 * t, 2)}, {v(TS + 3)}, {s(SRD_WS, 4)}, {s(S_PUB)} offen offset:{3584 - 512 * t} sc1")
            if t < 7:
                e(f"s_cmp_eq_u32 {s(S_T1)}, {t + 1}")
                e(f"s_cbranch_scc1 {lend}")

    def blk_grload():
        lab = e.newlabel("grl_skip")
        e(f"s_cmp_ge_u32 {s(S_W)}, {ns}")
        e(f"s_cbranch_scc1 {lab}")
        e(f"s_cmp_eq_u32 {s(S_I)}, 0")
        e(f"s_cbranch_scc1 {lab}")
        e(f"s_add_u32 {s(S_T1)}, {s(S_I)}, 1")
        e(f"s_lshr_b32 {s(S_T1)}, {s(S_T1)}, 1")
        gr_issue(lab)
        e.label(lab)
        tok['gr_seq'] = e.vm_seq

    def blk_carry():
        lab = e.newlabel("car_skip")
        e(f"s_cmp_ge_u32 {s(S_W)}, {ns}")
        e(f"s_cbranch_scc1 {lab}")
        e(f"s_cmp_eq_u32 {s(S_I)}, 0")
        e(f"s_cbranch_scc1 {lab}")
        e(f"ds_read_b128 {v(GC, 4)}, {v(TS + 2)} offset:16")
        e(f"s_add_u32 {s(S_T1)}, {s(S_I)}, 1")
        e(f"s_lshr_b32 {s(S_T1)}, {s(S_T1)}, 1")
        e(f"s_bitcmp1_b32 {s(S_I)}, 0")
        e(f"s_cselect_b32 {s(S_M0 + 1)}, 0, -1")
        e(f"s_mov_b32 {s(S_M0)}, -1")
        e(f"s_mov_b32 {s(S_SPIN)}, 0")
        e(f"s_waitcnt vmcnt({min(63, e.vm_seq - tok['gr_seq'])})")
        lp, lchk, lok, lre = (e.newlabel(x) for x in ("car_poll", "car_chk", "car_ok", "car_re"))
        e.label(lp)
        e(f"s_mov_b64 {s(S_M1, 2)}, 0")
        for t in range(8):
            e(f"v_cmp_ne_u32 vcc, {s(S_EPOCH)}, {v(GR + 2 * t + 1)}")
            if t < 7:
                e(f"s_cmp_eq_u32 {s(S_T1)}, {t + 1}")
                e(f"s_cbranch_scc1 {lchk}")
                e(f"s_or_b64 {s(S_M1, 2)}, {s(S_M1, 2)}, vcc")
        e.label(lchk)
        e(f"s_and_b64 vcc, vcc, {s(S_M0, 2)}")
        e(f"s_or_b64 {s(S_M1, 2)}, {s(S_M1, 2)}, vcc")
        e(f"s_cbranch_scc0 {lok}")
        e(f"s_add_u32 {s(S_SPIN)}, {s(S_SPIN)}, 1")
        e(f"s_cmp_ge_u32 {s(S_SPIN)}, 0x4000")
        e(f"s_cbranch_scc1 {lok}")
        e("s_sleep 1")
        gr_issue(lre)
        e.label(lre)
        e("s_waitcnt vmcnt(0)")
        e(f"s_branch {lp}")
        e.label(lok)
        e("s_waitcnt lgkmcnt(0)")
        ACCU = GC + 4
        e(f"v_mov_b32 {v(ACCU)}, 0")
        for t in range(7, -1, -1):
            ls = e.newlabel("hs")
            e(f"s_cmp_le_u32 {s(S_T1)}, {t}")
            e(f"s_cbranch_scc1 {ls}")
            e(f"s_cmp_eq_u32 {s(S_T1)}, {t + 1}")
            e(f"s_cselect_b64 vcc, {s(S_M0, 2)}, -1")
            e(f"v_cndmask_b32 {v(GR + 2 * t)}, 0, {v(GR + 2 * t)}, vcc")
            e(f"v_fmac_f32 {v(GR + 2 * t)}, {v(GC + 2)}, {v(ACCU)}")
            e(f"v_fmac_f32_dpp {v(GR + 2 * t)}, {v(ACCU)}, {v(GC + 3)} {DPP_X1}")
            e(f"v_mov_b32 {v(ACCU)}, {v(GR + 2 * t)}")
            e.label(ls)
        e.nop(1)
        e(f"v_mul_f32 {v(ACCU + 1)}, {v(GC)}, {v(ACCU)}")
        e(f"v_fmac_f32_dpp {v(ACCU + 1)}, {v(ACCU)}, {v(GC + 1)} {DPP_X1}")
        e(f"v_mov_b32 {v(ACCU + 2)}, 0")
        e.nop(1)
        e(f"v_permlane32_swap_b32 {v(ACCU + 1)}, {v(ACCU + 2)}")
        e.nop(1)
        e(f"v_add_f32 {v(ACCU)}, {v(ACCU)}, {v(ACCU + 2)}")
        e("s_mov_b32 exec_hi, 0")
        e(f"ds_write_b32 {v(TS + 1)}, {v(ACCU)} offset:{7 * 128}")
        e("s_mov_b64 exec, -1")
        e("s_waitcnt lgkmcnt(0)")
        e.label(lab)

    def job_final():
        PR = FT
        EV = FT + 4 * ns
        CC = SC + 2
        OT = FT + 12 * ns
        for j, m in enumerate(stiles):
            e.lds(f"ds_read_b128 {v(PR + 4 * j, 4)}, {v(pa)} offset:{m * PARS}"); yield
            for q in range(8):
                lt = e.lds(f"ds_read_b32 {v(EV + 8 * j + q)}, {v(TS)} offset:{m * 2048 + q * 128}")
                if q % 2:
                    yield
        e(f"s_mul_i32 {s(S_LB0)}, {s(S_W)}, 1280")
        e(f"s_add_u32 {s(S_LB0)}, {s(S_LB0)}, {141312 if half == 0 else 155136}")
        e(f"v_and_b32 {v(SC)}, 15, v0"); yield
        e(f"v_mul_u32_u24 {v(SC)}, 80, {v(SC)}"); yield
        e(f"v_lshrrev_b32 {v(SC + 1)}, 5, v0"); yield
        e(f"v_lshl_add_u32 {v(SC)}, {v(SC + 1)}, 5, {v(SC)}"); yield
        e(f"v_add_u32 {v(SC)}, {s(S_LB0)}, {v(SC)}"); yield
        e(f"v_bfe_u32 {v(SC + 2)}, v0, 2, 2"); yield
        e(f"v_lshl_add_u32 {v(SC + 1)}, {v(SC + 2)}, 1, {v(SC + 1)}"); yield
        e(f"v_mul_u32_u24 {v(SC + 1)}, 80, {v(SC + 1)}"); yield
        e(f"v_and_b32 {v(SC + 2)}, 1, v0"); yield
        e(f"v_lshl_add_u32 {v(SC + 1)}, {v(SC + 2)}, 5, {v(SC + 1)}"); yield
        e(f"v_bfe_u32 {v(SC + 2)}, v0, 4, 1"); yield
        e(f"v_lshl_add_u32 {v(SC + 1)}, {v(SC + 2)}, 4, {v(SC + 1)}"); yield
        e(f"v_bfe_u32 {v(SC + 2)}, v0, 1, 1"); yield
        e(f"v_lshl_add_u32 {v(SC + 1)}, {v(SC + 2)}, 3, {v(SC + 1)}"); yield
        e(f"v_add_u32 {v(SC + 1)}, {s(S_LB0)}, {v(SC + 1)}"); yield
        for j, m in enumerate(stiles):
            lc = e.lds(f"ds_read_b64 {v(CC + 2 * j, 2)}, {v(pa)} offset:{m * PARS + 32}"); yield
        e.wait(lg=lt)
        for q in range(1, 8):
            for j in range(ns):
                e(f"v_fmac_f32 {v(EV + 8 * j + q)}, {v(PR + 4 * j + 2)}, {v(EV + 8 * j + q - 1)}"); yield
            if ns == 1:
                e.nop(1)
            for j in range(ns):
                e(f"v_fmac_f32_dpp {v(EV + 8 * j + q)}, {v(EV + 8 * j + q - 1)}, {v(PR + 4 * j + 3)} {DPP_X1}"); yield
        e.wait(lg=lc)
        O = EV

        def post(j, u):
            t_ = OT + 2 * j + (u & 1)
            e(f"v_mul_f32 {v(t_)}, {v(CC + 2 * j)}, {v(ACC[j] + u)}")
            e(f"v_fmac_f32_dpp {v(t_)}, {v(ACC[j] + u)}, {v(CC + 2 * j + 1)} {DPP_X1}")
            if u & 1:
                e(f"v_cvt_pk_bf16_f32 {v(O + 8 * j + u // 2)}, {v(OT + 2 * j)}, {v(OT + 2 * j + 1)}")
        for u in range(16):
            for j in range(ns):
                prev = EV + 8 * j + 7 if u == 0 else ACC[j] + u - 1
                e(f"v_fmac_f32 {v(ACC[j] + u)}, {v(PR + 4 * j)}, {v(prev)}"); yield
            if u >= 2:
                for j in range(ns):
                    post(j, u - 2); yield
            elif ns == 1:
                e.nop(1)
            for j in range(ns):
                prev = EV + 8 * j + 7 if u == 0 else ACC[j] + u - 1
                e(f"v_fmac_f32_dpp {v(ACC[j] + u)}, {v(prev)}, {v(PR + 4 * j + 1)} {DPP_X1}"); yield
        for u in (14, 15):
            for j in range(ns):
                post(j, u); yield
        for j, m in enumerate(stiles):
            R = ACC[j]
            for kap in range(2):
                msk = "0x0000ffff" if kap == 0 else "0xffff0000"
                e(f"s_mov_b32 exec_lo, {msk}")
                e(f"s_mov_b32 exec_hi, {msk}")
                e.lds(f"ds_write_b128 {v(SC)}, {v(O + 8 * j, 4)}")
                e.lds(f"ds_write_b128 {v(SC)}, {v(O + 8 * j + 4, 4)} offset:16")
                e("s_mov_b64 exec, -1"); yield
                for rd in range(2):
                    lt = e.lds(f"ds_read_b64_tr_b16 {v(R + 4 * kap + 2 * rd, 2)}, {v(SC + 1)} offset:{8 * rd * 80}"); yield
            tok[('tr', j)] = lt
            if j > 0:
                yield from tr_store(j - 1)
        yield from tr_store(ns - 1)
        tok['final_done'] = True

    def tr_store(j):
        m = stiles[j]
        R = ACC[j]
        e.wait(lg=tok[('tr', j)])
        e(f"s_add_u32 {s(S_T0)}, {s(S_A2S)}, {m * 2048}")
        e.vm(f"buffer_store_dwordx4 {v(R, 4)}, {v(V_ST)}, {s(SRD_WS, 4)}, {s(S_T0)} offen sc1")
        e.last_store = e.vm(f"buffer_store_dwordx4 {v(R + 4, 4)}, {v(V_ST)}, {s(SRD_WS, 4)}, {s(S_T0)} offen offset:1024 sc1"); yield

    VD0, VD1, VR0, VR1 = 6, 7, 8, 9
    st_ = dict(cp=0, S=-1, avail=set(), next=0, inflight=[], freed={}, setup=False, lim=24)
    if half == 1:
        ntask = 28
        slot_tag = {0: 'p0', 1: 'p0', 2: 'p1', 3: 'p1', 4: 'p2', 5: 'p2', 6: 'done', 7: 'done',
                    8: 'done', 9: 'done', 10: 'done', 11: 'done'}
    else:
        ntask = 4
        slot_tag = {1: 'p1', 2: 'done'}
    slot_busy = {}

    def stage_setup():
        st_['setup'] = True
        e(f"v_lshrrev_b32 {v(VD0)}, 3, v0")
        if half == 1:
            e(f"v_bfe_u32 {v(VD1)}, v0, 4, 1")
            e(f"v_lshlrev_b32 {v(VD1)}, 2, {v(VD1)}")
            e(f"v_and_b32 {v(VR0)}, 7, v0")
            e(f"v_xor_b32 {v(VD1)}, {v(VD1)}, {v(VR0)}")
            e(f"v_lshlrev_b32 {v(VD1)}, 4, {v(VD1)}")
            e(f"v_lshl_add_u32 {v(VD0)}, {v(VD0)}, 10, {v(VD1)}")
            e(f"v_add_u32 {v(VD1)}, {8192 - 1024}, {v(VD0)}")
            e(f"v_bfe_u32 {v(VR1)}, v0, 2, 2")
            e(f"v_lshrrev_b32 {v(VR0)}, 5, v0")
            e(f"v_lshl_add_u32 {v(VR0)}, {v(VR0)}, 2, {v(VR1)}")
            e(f"v_lshlrev_b32 {v(VR0)}, 7, {v(VR0)}")
            e(f"v_lshrrev_b32 {v(VR1)}, 1, {v(VR1)}")
            e(f"v_lshl_add_u32 {v(VR0)}, {v(VR1)}, 6, {v(VR0)}")
            e(f"v_bfe_u32 {v(VR1)}, v0, 4, 1")
            e(f"v_lshl_add_u32 {v(VR0)}, {v(VR1)}, 5, {v(VR0)}")
            e(f"v_and_b32 {v(VR1)}, 3, v0")
            e(f"v_lshl_add_u32 {v(VR0)}, {v(VR1)}, 3, {v(VR0)}")
            e(f"v_add_u32 {v(VR0)}, {s(S_LBS)}, {v(VR0)}")
            e(f"v_xor_b32 {v(VR1)}, 64, {v(VR0)}")
        else:
            e(f"v_lshrrev_b32 {v(VD1)}, 4, v0")
            e(f"v_and_b32 {v(VR0)}, 7, v0")
            e(f"v_xor_b32 {v(VD1)}, {v(VD1)}, {v(VR0)}")
            e(f"v_lshlrev_b32 {v(VD1)}, 4, {v(VD1)}")
            e(f"v_lshl_add_u32 {v(VD0)}, {v(VD0)}, 10, {v(VD1)}")
            e(f"v_xor_b32 {v(VD1)}, 64, {v(VD0)}")
            e(f"v_add_u32 {v(VD1)}, {8192 - 1024}, {v(VD1)}")
            e(f"v_and_b32 {v(VR0)}, 31, v0")
            e(f"v_lshlrev_b32 {v(VR0)}, 7, {v(VR0)}")
            e(f"v_bfe_u32 {v(VR1)}, v0, 1, 3")
            e(f"v_lshl_add_u32 {v(VR0)}, {v(VR1)}, 4, {v(VR0)}")
            e(f"v_lshrrev_b32 {v(VR1)}, 5, v0")
            e(f"v_lshl_add_u32 {v(VR0)}, {v(VR1)}, 12, {v(VR0)}")
            e(f"v_add_u32 {v(VR0)}, {s(S_LBS)}, {v(VR0)}")

    def slot_off(sl):
        if half == 1:
            return sl * 2048
        return {0: 4096, 1: 0, 2: 8192}[sl]

    def stage_dma(task, sl):
        if sl in st_['freed']:
            e.wait(lg=st_['freed'].pop(sl))
        if half == 1:
            if sl < 8:
                e(f"s_add_u32 m0, {s(S_LBS)}, {sl * 2048}")
            else:
                e(f"s_lshl_b32 {s(S_T3)}, {s(S_W)}, 13")
                e(f"s_add_u32 m0, {s(S_T3)}, {L_TOP + (sl - 8) * 2048}")
            e(f"s_add_u32 {s(S_T3)}, {s(S_B0)}, {task * 16384}")
            dma(e, VD0, SRD_B, S_T3)
            t = dma(e, VD1, SRD_B, S_T3, 1024)
        else:
            u_, nu = task // 2, task % 2
            for mat, sr in ((0, SRD_B), (1, SRD_S)):
                e(f"s_add_u32 m0, {s(S_LBS)}, {slot_off(sl) + mat * 4096}")
                e(f"s_add_u32 {s(S_T3)}, {s(S_B0)}, {nu * 32768 + u_ * 128}")
                dma(e, VD0, sr, S_T3)
                dma(e, VD1, sr, S_T3, 1024)
                e(f"s_add_u32 {s(S_T3)}, {s(S_T3)}, {16384 - 2048}")
                dma(e, VD0, sr, S_T3, 2048)
                t = dma(e, VD1, sr, S_T3, 3072)
        slot_busy[sl] = task
        st_['inflight'].append((task, sl, t, st_['cp']))

    def task_regs(task):
        if half == 1:
            return [2 * task, 2 * task + 1]
        u_, nu = task // 2, task % 2
        return [2 * (8 * u_ + k) + nu for k in range(8)]

    def regs_free(task):
        for x in task_regs(task):
            if x > st_['S'] or (x in resv and 'final_done' not in tok):
                return False
        return True

    def stage_xfer(task, sl, t):
        e.wait(vm=t)
        if half == 1:
            for h2 in range(2):
                for rd in range(2):
                    lt = e.lds(f"ds_read_b64_tr_b16 {v(V_X + 8 * task + 4 * h2 + 2 * rd, 2)}, {v(VR0 + h2)} offset:{sl * 2048 + rd * 1024}")
        else:
            u_, nu = task // 2, task % 2
            for k in range(8):
                if k:
                    e(f"v_xor_b32 {v(VR1)}, {16 * k}, {v(VR0)}")
                lt = e.lds(f"ds_read_b128 {v(V_X + 8 * (8 * u_ + k) + 4 * nu, 4)}, {v(VR1 if k else VR0)} offset:{slot_off(sl)}")
        st_['freed'][sl] = lt
        del slot_busy[sl]

    def checkpoint(force=False, maxdma=1):
        st_['cp'] += 1
        if not st_['setup']:
            return
        for it in list(st_['inflight']):
            task, sl, t, cp = it
            resident = half == 1 and task >= 16
            if resident:
                st_['inflight'].remove(it)
                continue
            if (force or st_['cp'] - cp >= BLAT) and regs_free(task):
                stage_xfer(task, sl, t)
                st_['inflight'].remove(it)
                if not force:
                    break
        n = 0
        while st_['next'] < min(ntask, st_.get('lim', 99)) and n < maxdma:
            task = st_['next']
            if half == 1 and task >= 16:
                cand = [task - 16]
            elif half == 1:
                cand = list(range(8))
            else:
                cand = list(slot_tag.keys())
            cand = [c_ for c_ in cand if c_ not in slot_busy and slot_tag[c_] in st_['avail']]
            if not cand:
                break
            stage_dma(task, cand[0])
            st_['next'] += 1
            n += 1

    fidx = [(idx, m) for idx, (k, m) in enumerate(tilesA) if k == 'F']
    deferred = []
    if typ == 'X':
        e(f"s_setprio {(1 - half) if PRIOX else 0}")
    elif not PRIOY:
        e("s_setprio 0")
    for S in range(32):
        c, u = S // 8, S % 8
        if S == 1 and stiles:
            if S_BTA >= 0:
                e.wait(vm=tok['bt'])
            side.add(job_pass1())
        if S == 2 and not stiles:
            for idx, m in fidx:
                side.add(ffn_epilogue(e, ACC[idx], TMP, S_A2A, m, deferred))
        if S == 7 and S_EX == 7 and stiles:
            side.drain()
        if S == S_EX + (1 if S_EX == 7 else 0):
            if S_EX != 7:
                if stiles:
                    side.drain()
                e.wait(lg=e.lg_seq - 1)
                e("s_barrier")
            if stiles:
                blk_publish()
                for idx, m in fidx:
                    side.add(ffn_epilogue(e, ACC[idx], TMP, S_A2A, m, deferred))
        if u == 7 and c < 3:
            need_unit(11 if c == 0 else 9 + c)
            if c == C_CAR and stiles:
                stamp(e, SV, 40)
                blk_carry()
                stamp(e, SV, 41)
            e.wait(vm=utok[9 + c], lg=e.lg_seq - 1)
            stamp(e, SV, 30 + 2 * c)
            e("s_barrier")
            stamp(e, SV, 31 + 2 * c)
            if EARLYB:
                st_['avail'].add(f"p{c}")
        if S == 8 * C_CAR + 8 and stiles:
            side.add(job_final())
        buf = V_FR + 8 * (S % 2)
        for idx in range(2):
            e.wait(lg=ftok[('B', S, idx)])
            mfma(e, ACC[3 + idx], buf + 4 * idx, V_X + 4 * S, S == 0)
            if S < 31:
                readB(S + 1, idx)
            if idx == 0:
                dpump()
            side.pump(PUMPB if S < 8 * C_CAR + 8 else PUMPF)
        st_['S'] = S
        if S == S_BT:
            need_unit(11)
            stage_setup()
            if S_BTA < 0:
                btouch(V_X)
        if S >= S_QUIET and deferred:
            e.vm(deferred.pop(0))
        if S >= S_BS:
            checkpoint()
        if S == max(9, S_QUIET) and half == 0:
            lab = e.newlabel("g_skip")
            e(f"v_lshlrev_b32 {v(SC + 6)}, 2, v0")
            e(f"v_add_u32 {v(SC + 7)}, {L_MISC + 64}, {v(SC + 6)}")
            e(f"s_cmp_lg_u32 {s(S_W)}, 0")
            e(f"s_cbranch_scc1 {lab}")
            e("s_mov_b64 exec, 0xff")
            e(f"ds_read_b32 {v(SC + 7)}, {v(SC + 7)}")
            e("s_waitcnt lgkmcnt(0)")
            e(f"buffer_store_dword {v(SC + 7)}, {v(SC + 6)}, {s(SRD_WS, 4)}, {s(S_GOFF)} offen sc1")
            e("s_mov_b64 exec, -1")
            e.label(lab)
        if S == S_GR and stiles:
            blk_grload()
        if FINE and S % 2 == 1:
            stamp(e, SV, 6 + S // 2)

    stamp(e, SV, 36)
    e.nop(8)
    if not stiles:
        side.drain()
    while deferred:
        e.vm(deferred.pop(0))
    ep = Sched()
    ep.add(ffn_epilogue(e, ACC[3], TMP, S_A2B, 2 * half))
    ep.add(ffn_epilogue(e, ACC[4], TMP, S_A2B, 2 * half + 1))
    side.pump(4)
    e.nop(4)
    cnt = 0
    while not (side.empty() and ep.empty()):
        side.pump(1)
        ep.pump(1)
        cnt += 1
        if cnt % TAILCP == 0 and not ep.empty():
            checkpoint()
    stamp(e, SV, 42)
    e.wait(vm=e.vm_seq - 1, lg=e.lg_seq - 1)
    stamp(e, SV, 43)
    e(f"s_setprio {STPRIO if half == 1 else 0}")
    e("s_barrier")
    if half == 0:
        lab = e.newlabel("done_skip")
        e(f"v_mov_b32 v1, {s(S_EPOCH)}")
        e("v_mov_b32 v2, 0")
        e(f"s_cmp_lg_u32 {s(S_W)}, 0")
        e(f"s_cbranch_scc1 {lab}")
        e(f"s_lshl_b32 {s(S_T0)}, {s(S_I)}, 11")
        e(f"s_lshl_b32 {s(S_T1)}, {s(S_COL)}, 7")
        e(f"s_add_u32 {s(S_T0)}, {s(S_T0)}, {s(S_T1)}")
        e(f"s_add_u32 {s(S_T0)}, {s(S_T0)}, {WS_DONE}")
        e("s_mov_b64 exec, 1")
        e(f"buffer_store_dword v1, v2, {s(SRD_WS, 4)}, {s(S_T0)} offen sc1")
        e("s_mov_b64 exec, -1")
        e.label(lab)
    else:
        e.nop(12)
    st_['avail'] |= {'p0', 'p1', 'p2', 'done'}
    if half == 1:
        checkpoint(force=False, maxdma=12)
        for task in range(24, 28):
            stage_dma(task, task - 16)
        ntask = 24
        st_['lim'] = 24
    guard = 0
    while st_['next'] < ntask or st_['inflight']:
        checkpoint(force=False, maxdma=12)
        if st_['inflight']:
            task, sl, t, cp = st_['inflight'][0]
            if not (half == 1 and task >= 16):
                stage_xfer(task, sl, t)
            st_['inflight'].pop(0)
        guard += 1
        assert guard < 200
    stamp(e, SV, 44)
    if STAMPS:
        e(f"v_mov_b32 v15, {v(SV)}")
    e(f"s_branch L_P2_{half}")


def phase2(e, half):
    SV = 15
    e.label(f"L_P2_{half}")
    e.vm_done = e.vm_seq = 0
    e.lg_done = e.lg_seq = 0
    NS = 16 if half == 0 else 28
    YSTART = 6 if half == 0 else 24
    SO = SRD_U
    SRD2 = SRD_G
    srd(e, SO, P_OUT, 2048 * 2048)
    e(f"s_add_u32 {s(SRD2)}, {s(P_WS)}, {KS * 1024}")
    e(f"s_addc_u32 {s(SRD2 + 1)}, {s(P_WS + 1)}, 0")
    e(f"s_and_b32 {s(SRD2 + 1)}, {s(SRD2 + 1)}, 0xffff")
    e(f"s_mov_b32 {s(SRD2 + 2)}, {WS_END - KS * 1024}")
    e(f"s_mov_b32 {s(SRD2 + 3)}, 0x00020000")
    VL = 12
    e(f"v_mov_b32 {v(VL)}, {v(V_ST)}")
    e(f"s_lshr_b32 {s(S_K0)}, {s(S_MT)}, 1")
    e(f"s_lshl_b32 {s(S_K0)}, {s(S_K0)}, 11")
    e(f"s_add_u32 {s(S_K0)}, {s(S_K0)}, {WS_DONE}")
    e("v_and_b32 v1, 15, v0")
    e("v_lshlrev_b32 v1, 7, v1")
    if half == 1:
        e(f"s_lshl_b32 {s(S_T0)}, {s(S_W)}, 13")
        e(f"s_add_u32 {s(S_T0)}, {s(S_T0)}, {L_TOP}")
        e(f"s_sub_u32 {s(S_T0)}, {s(S_T0)}, {s(S_LBS)}")
        e(f"v_add_u32 v10, {s(S_T0)}, v8")
        e(f"v_add_u32 v11, {s(S_T0)}, v9")

    def poll(mask_expr_lo):
        lp, lo = e.newlabel("pd"), e.newlabel("pd_ok")
        e(f"s_mov_b32 {s(S_SPIN)}, 0")
        e.label(lp)
        e(f"buffer_load_dword v2, v1, {s(SRD_WS, 4)}, {s(S_K0)} offen sc1")
        e("s_waitcnt vmcnt(0)")
        e(f"v_cmp_ne_u32 vcc, {s(S_EPOCH)}, v2")
        e(f"s_and_b32 {s(S_T0)}, vcc_lo, {s(S_M0)}")
        e(f"s_cbranch_scc0 {lo}")
        e("s_sleep 1")
        spin_tail(e, lp)
        e.label(lo)
        e.vm_done = e.vm_seq
    if NOGATE:
        if half == 0:
            lab = e.newlabel("nopoll")
            e(f"s_cmp_lg_u32 {s(S_W)}, 0")
            e(f"s_cbranch_scc1 {lab}")
            e(f"s_mov_b32 {s(S_M0)}, 0xffff")
            e("s_mov_b64 exec, 0xffff")
            poll(None)
            e("s_mov_b64 exec, -1")
            e.label(lab)
        e("s_waitcnt vmcnt(0)")
    else:
        e(f"s_lshl_b32 {s(S_T1)}, {s(S_W)}, 2")
        e(f"s_lshl_b32 {s(S_M0)}, 7, {s(S_T1)}")
        e("s_mov_b64 exec, 0xffff")
        poll(None)
        e("s_mov_b64 exec, -1")
    e("s_waitcnt lgkmcnt(0)")
    if STBAR:
        e("s_barrier")
    e(f"s_setprio {P2PRIO if half == 1 else 0}")
    stamp(e, SV, 45)
    AC = 64
    free = [24 + 8 * k for k in range(5)]
    aslot, atok = {}, {}
    pending = list(range(NS))
    state = dict(y=bool(NOGATE))

    def ld2(dst, j):
        hi, lo_ = (j // 4) * 4096, (j % 4) * 1024
        b = S_A0
        if hi:
            e(f"s_add_u32 {s(S_T0)}, {s(S_A0)}, {hi}")
            b = S_T0
        o = f" offset:{lo_}" if lo_ else ""
        e.vm(f"buffer_load_dwordx4 {v(dst, 4)}, {v(VL)}, {s(SRD_WS, 4)}, {s(b)} offen{o} sc1")
        return e.vm(f"buffer_load_dwordx4 {v(dst + 4, 4)}, {v(VL)}, {s(SRD2, 4)}, {s(b)} offen{o} sc1")

    def issue_next():
        while pending and free:
            j = pending[0]
            if j >= YSTART and not state['y']:
                return
            if j > state.get('cur', -1) + ACAP:
                return
            pending.pop(0)
            r = free.pop(0)
            aslot[j] = r
            atok[j] = ld2(r, j)

    def ycheck_issue():
        e("s_mov_b64 exec, 0xffff")
        state['ytok'] = e.vm(f"buffer_load_dword v2, v1, {s(SRD_WS, 4)}, {s(S_K0)} offen sc1")
        e("s_mov_b64 exec, -1")

    def ycheck():
        lp, lo = e.newlabel("py"), e.newlabel("py_ok")
        e.wait(vm=state['ytok'])
        e(f"s_mov_b32 {s(S_SPIN)}, 0")
        e("s_mov_b64 exec, 0xffff")
        e.label(lp)
        e(f"v_cmp_ne_u32 vcc, {s(S_EPOCH)}, v2")
        e(f"s_cbranch_vccz {lo}")
        e("s_sleep 1")
        e(f"buffer_load_dword v2, v1, {s(SRD_WS, 4)}, {s(S_K0)} offen sc1")
        e("s_waitcnt vmcnt(0)")
        spin_tail(e, lp)
        e.label(lo)
        e("s_mov_b64 exec, -1")
        state['y'] = True

    issue_next()
    e(f"s_lshl_b32 {s(S_T0)}, {s(S_W)}, 2")
    e(f"s_add_u32 {s(S_T0)}, {s(S_T0)}, {32 * half}")
    e("v_lshrrev_b32 v3, 4, v0")
    e(f"v_add_u32 v3, {s(S_T0)}, v3")
    e("v_and_b32 v4, 15, v0")
    e(f"s_lshl_b32 {s(S_T1)}, {s(S_NT)}, 6")
    e(f"v_lshl_add_u32 v4, v4, 2, {s(S_T1)}")
    e("v_lshlrev_b32 v4, 1, v4")
    e(f"s_lshl_b32 {s(S_T1)}, {s(S_MT)}, 6")
    e(f"v_add_u32 v5, {s(S_T1)}, v3")
    e("v_lshl_add_u32 v5, v5, 10, v4")
    e("v_lshlrev_b32 v3, 2, v3")
    e(f"s_lshl_b32 {s(S_GOFF)}, {s(S_MT)}, 8")
    e(f"s_add_u32 {s(S_GOFF)}, {s(S_GOFF)}, {WS_G}")
    YI = 2 if half == 0 else 12
    YC = 5 if half == 0 else 15
    btok = {}

    def bread(j):
        r = j - 16
        for h2 in range(2):
            for rd in range(2):
                areg = (8 + h2) if r < 8 else (10 + h2)
                off = (r % 8) * 2048 + rd * 1024
                btok[j] = e.lds(f"ds_read_b64_tr_b16 {v(bbuf[j] + 4 * h2 + 2 * rd, 2)}, {v(areg)} offset:{off}")
    bbuf = {}
    for j in range(NS):
        if j == YI and not NOGATE:
            ycheck_issue()
        if j == YC and not NOGATE:
            ycheck()
            issue_next()
        if j == NS - 4:
            e.vm(f"buffer_load_dword v13, v3, {s(SRD_WS, 4)}, {s(S_GOFF)} offen sc1")
            e.vm(f"buffer_load_dword v14, v3, {s(SRD_WS, 4)}, {s(S_GOFF)} offen offset:64 sc1")
            e.vm(f"global_load_dwordx2 v[6:7], v4, {s(P_DSK, 2)}")
            e.vm(f"buffer_load_dwordx2 v[16:17], v5, {s(SRD_X, 4)}, 0 offen")
            e(f"s_mov_b32 {s(S_T0)}, {16 * 1024}")
            e.vm(f"buffer_load_dwordx2 v[18:19], v5, {s(SRD_X, 4)}, {s(S_T0)} offen")
        if half == 1 and j + 1 >= 16 and j + 1 < NS:
            bbuf[j + 1] = V_X + 8 * ((j + 1) % 2)
            bread(j + 1)
        a = aslot[j]
        b = V_X + 8 * j if j < 16 else bbuf[j]
        e.wait(vm=atok[j] - 1, lg=btok.get(j))
        mfma(e, AC, b, a, j == 0)
        mfma(e, AC + 16, b + 4, a, j == 0)
        e.wait(vm=atok[j])
        mfma(e, AC + 32, b, a + 4, j == 0)
        mfma(e, AC + 48, b + 4, a + 4, j == 0)
        free.append(a)
        if 2 <= j < 16:
            free.append(b)
        state['cur'] = j
        issue_next()
    stamp(e, SV, 46)
    e("v_and_b32 v1, 31, v0")
    e("v_lshrrev_b32 v2, 5, v0")
    e("v_and_b32 v8, 7, v0")
    e("v_xor_b32 v2, v2, v8")
    e("v_lshlrev_b32 v2, 4, v2")
    e("v_lshl_add_u32 v1, v1, 8, v2")
    e(f"v_add_u32 v8, {s(S_LBS)}, v1")
    for a in range(1, 4):
        e(f"v_xor_b32 {v(8 + a)}, {32 * a}, v8")
    e.nop(4)
    for mi in range(2):
        for ni in range(2):
            A = AC + 32 * mi + 16 * ni
            for a in range(4):
                e.lds(f"ds_write_b128 {v(8 + a)}, {v(A + 4 * a, 4)} offset:{mi * 8192 + ni * 128}")
    e("v_lshrrev_b32 v1, 4, v0")
    e("v_and_b32 v2, 15, v0")
    e("v_xor_b32 v2, v2, v1")
    e("v_lshlrev_b32 v2, 4, v2")
    e("v_lshl_add_u32 v1, v1, 8, v2")
    e(f"s_lshl_b32 {s(S_T0)}, {s(S_WV)}, 11")
    e(f"v_add_u32 v1, {s(S_T0)}, v1")
    e("v_xor_b32 v2, 64, v1")
    e("v_add_u32 v2, 1024, v2")
    e(f"v_add_u32 v3, {4 * REG}, v1")
    e(f"v_add_u32 v4, {4 * REG}, v2")
    e("v_lshlrev_b32 v5, 1, v5")
    e("s_waitcnt vmcnt(0)")
    SK, DS, FS = 24, 32, 40
    for k in range(2):
        e(f"v_lshlrev_b32 {v(DS + 2 * k)}, 16, {v(6 + k)}")
        e(f"v_and_b32 {v(DS + 2 * k + 1)}, 0xffff0000, {v(6 + k)}")
    for p in range(2):
        for k in range(2):
            e(f"v_lshlrev_b32 {v(SK + 4 * p + 2 * k)}, 16, {v(16 + 2 * p + k)}")
            e(f"v_and_b32 {v(SK + 4 * p + 2 * k + 1)}, 0xffff0000, {v(16 + 2 * p + k)}")
        for k in range(4):
            e(f"v_mul_f32 {v(SK + 4 * p + k)}, {v(SK + 4 * p + k)}, {v(DS + k)}")
        for k in range(2):
            e(f"v_cvt_pk_bf16_f32 v36, {v(SK + 4 * p + 2 * k)}, {v(SK + 4 * p + 2 * k + 1)}")
            e(f"v_lshlrev_b32 {v(SK + 4 * p + 2 * k)}, 16, v36")
            e(f"v_and_b32 {v(SK + 4 * p + 2 * k + 1)}, 0xffff0000, v36")
        e(f"v_sub_f32 {v(20 + p)}, 1.0, {v(13 + p)}")
        e(f"v_cvt_pk_bf16_f32 {v(20 + p)}, {v(20 + p)}, {v(20 + p)}")
        e(f"v_lshlrev_b32 {v(20 + p)}, 16, {v(20 + p)}")
    e.wait_all_lg()
    stamp(e, SV, 47)
    e("s_barrier")
    stamp(e, SV, 48)
    toks = []
    for q in range(8):
        for p in range(2):
            ar = (1 + p) if q < 4 else (3 + p)
            toks.append(e.lds(f"ds_read_b128 {v(AC + 8 * q + 4 * p, 4)}, {v(ar)} offset:{(q % 4) * REG}"))
    for q in range(4):
        e.wait(lg=toks[2 * q + 1])
        for k in range(8):
            e(f"v_add_f32 {v(SK + k)}, {v(SK + k)}, {v(AC + 8 * q + k)}")
    for k in range(8):
        e(f"v_mul_f32 {v(SK + k)}, {v(13 + k // 4)}, {v(SK + k)}")
    e.wait(lg=toks[11])
    for k in range(8):
        e(f"v_add_f32 {v(FS + k)}, {v(AC + 32 + k)}, {v(AC + 40 + k)}")
    e.wait(lg=toks[15])
    for k in range(8):
        e(f"v_add_f32 {v(AC + 48 + k)}, {v(AC + 48 + k)}, {v(AC + 56 + k)}")
    for k in range(8):
        e(f"v_add_f32 {v(FS + k)}, {v(FS + k)}, {v(AC + 48 + k)}")
    for k in range(8):
        e(f"v_fmac_f32 {v(SK + k)}, {v(20 + k // 4)}, {v(FS + k)}")
    e.vm(f"buffer_store_dwordx4 {v(SK, 4)}, v5, {s(SO, 4)}, 0 offen{OUTP}")
    e(f"s_mov_b32 {s(S_T0)}, {16 * 2048}")
    e.vm(f"buffer_store_dwordx4 {v(SK + 4, 4)}, v5, {s(SO, 4)}, {s(S_T0)} offen{OUTP}")
    if STAMPS:
        stamp(e, SV, 49)
        e("s_waitcnt vmcnt(0)")
        stamp(e, SV, 50)
        stamp(e, SV, 61, True)
        e("s_lshl_b32 s96, s2, 3")
        e(f"s_add_u32 s96, s96, {s(S_WV)}")
        e("s_lshl_b32 s96, s96, 8")
        e(f"s_add_u32 s96, s96, {WS_STAMP}")
        e("v_lshl_add_u32 v1, v0, 2, s96")
        e(f"global_store_dword v1, {v(SV)}, {s(P_WS, 2)}")
        if STMAP:
            lab = e.newlabel("dbgw")
            e(f"s_cmp_lg_u32 s2, {DBGWG}")
            e(f"s_cbranch_scc1 {lab}")
            e(f"s_cmp_lg_u32 {s(S_WV)}, {DBGWV}")
            e(f"s_cbranch_scc1 {lab}")
            e("v_lshlrev_b32 v1, 2, v0")
            e(f"v_subrev_u32 {v(SV)}, s98, {v(SV)}")
            e(f"global_store_dword v1, {v(SV)}, {s(P_DBG, 2)}")
            e.label(lab)
    if DBGT and half == 1:
        lab = e.newlabel("dbgt")
        e(f"s_cmp_lg_u32 {s(S_W)}, 0")
        e(f"s_cbranch_scc1 {lab}")
        e("s_waitcnt vmcnt(0)")
        e("s_memrealtime s[96:97]")
        e("s_memtime s[12:13]")
        e("s_waitcnt lgkmcnt(0)")
        e("s_not_b32 s100, s100")
        e("s_sub_u32 s12, s12, s98")
        e("v_mov_b32 v1, 8")
        e("v_mov_b32 v2, s100")
        e("v_mov_b32 v3, s96")
        e("v_mov_b32 v4, s12")
        e("s_mov_b64 exec, 1")
        e(f"global_atomic_umax v1, v2, {s(P_DBG, 2)} sc1")
        e(f"global_atomic_umax v1, v3, {s(P_DBG, 2)} offset:4 sc1")
        e(f"global_atomic_umax v1, v4, {s(P_DBG, 2)} offset:8 sc1")
        e.label(lab)
    e("s_endpgm")


def gen():
    e = Path()
    prologue_common(e)
    out = [e]
    for typ, half, lab in (('X', 0, None), ('X', 1, 'L_X1'), ('Y', 0, 'L_Y0'), ('Y', 1, 'L_Y1')):
        p = e.fork()
        if lab:
            p.label(lab)
        path(p, typ, half)
        out.append(p)
    for half in range(2):
        z = Path()
        phase2(z, half)
        out.append(z)
    z = Path()
    z.label("L_exit")
    z("s_endpgm")
    z.label("L_code_end")
    out.append(z)
    return "".join(x.text() for x in out)


HERE = os.path.dirname(os.path.abspath(__file__))
HEADER = open(os.path.join(HERE, "..", "cdna_kernels", NAME + ".s.ref")).read()


def main():
    hdr = []
    for line in HEADER.splitlines():
        if line.startswith(";") and "@launch" not in line:
            hdr.append(line)
        elif not line.startswith(";"):
            break
    out = "\n".join(hdr) + "\n"
    out += f"; @launch grid=(256,1,1) block=(512,1,1) lds={LDS_BYTES}\n"
    out += '.amdgcn_target "amdgcn-amd-amdhsa--gfx950"\n.text\n'
    name = NAME + "_kernel"
    out += f".globl {name}\n.p2align 8\n.type {name},@function\n{name}:\n" + gen()
    out += '.section .rodata,"a"\n'
    out += f""".p2align 6
.amdhsa_kernel {name}
  .amdhsa_next_free_vgpr 256
  .amdhsa_next_free_sgpr 102
  .amdhsa_accum_offset 256
  .amdhsa_group_segment_fixed_size 0
  .amdhsa_kernarg_size 136
  .amdhsa_user_sgpr_count 2
  .amdhsa_user_sgpr_kernarg_segment_ptr 1
  .amdhsa_system_sgpr_workgroup_id_x 1
  .amdhsa_float_denorm_mode_32 3
  .amdhsa_float_denorm_mode_16_64 3
.end_amdhsa_kernel
"""
    dst = sys.argv[1] if len(sys.argv) > 1 else os.path.join(HERE, "..", "cdna_kernels", NAME + ".s")
    open(dst, "w").write(out)
    print("wrote", dst, len(out), "bytes")


if __name__ == "__main__":
    main()
```
